```python
import torch

def _softmax(x, axis=-1):
    return torch.softmax(x, dim=axis)

def _gelu(x):
    return torch.nn.functional.gelu(x, approximate='tanh')

def _silu(x):
    return torch.nn.functional.silu(x)

def _sigmoid(x):
    return torch.sigmoid(x)

def _layernorm(x, axis=-1, eps=1e-05):
    m = x.mean(dim=axis, keepdim=True)
    v = x.var(dim=axis, keepdim=True, unbiased=False)
    return (x - m) / torch.sqrt(v + eps)

def _scatter_add(tgt, idx, src, axis=0):
    return tgt.clone().index_add_(axis, idx, src)

def _segment_sum(src, seg, n):
    out = torch.zeros((n,) + src.shape[1:], dtype=src.dtype)
    return out.index_add_(0, seg, src)

def _pad(x, pw):
    flat = tuple((v for pair in reversed(pw) for v in pair))
    return torch.nn.functional.pad(x, flat)
kernel_name = 'parallel_sum__memory_aug_recurrent_mem_tr__dense_activation_silu__prompt'

def setup_inputs():

    _w = lambda a: (lambda t: t.to(torch.bfloat16) if t.is_floating_point() else t)(torch.as_tensor(a))

    def _A_setup():
        B, S, Dm = (1, 2048, 640)
        H, Dh = (32, 192)
        M, seg = (8, 32)
        seg = min(seg, S)
        S = S // seg * seg
        return {'x': _w((lambda *s: torch.randn(*s, dtype=torch.bfloat16) * 0.05)(B, S, Dm)), 'mem0': _w((lambda *s: torch.randn(*s, dtype=torch.bfloat16) * 0.2)(B, M, Dm)), 'Wq': _w((lambda *s: torch.randn(*s, dtype=torch.bfloat16) * 1.6)(Dm, H, Dh) * Dm ** (-0.5)), 'Wk': _w((lambda *s: torch.randn(*s, dtype=torch.bfloat16) * 1.6)(Dm, H, Dh) * Dm ** (-0.5)), 'Wv': _w((lambda *s: torch.randn(*s, dtype=torch.bfloat16) * 0.2)(Dm, H, Dh) * Dm ** (-0.5)), 'Wo': _w((lambda *s: torch.randn(*s, dtype=torch.bfloat16) * 0.2)(H, Dh, Dm) * (H * Dh) ** (-0.5)), 'seg_len': seg}
    _A_in = _A_setup()

    def _B_setup():
        B, S, D, F = (1, 2048, 640, 1536)
        return {'x': _w((lambda *s: torch.randn(*s, dtype=torch.bfloat16) * 0.05)(B, S, D)), 'w1': _w((lambda *s: torch.randn(*s, dtype=torch.bfloat16) * 0.8)(D, F) * D ** (-0.5)), 'w2': _w((lambda *s: torch.randn(*s, dtype=torch.bfloat16) * 0.1)(F, D) * F ** (-0.5))}
    _B_in = _B_setup()
    return {'A_x': _A_in['x'], 'A_mem0': _A_in['mem0'], 'A_Wq': _A_in['Wq'], 'A_Wk': _A_in['Wk'], 'A_Wv': _A_in['Wv'], 'A_Wo': _A_in['Wo'], 'A_seg_len': _A_in['seg_len'], 'B_x': _B_in['x'], 'B_w1': _B_in['w1'], 'B_w2': _B_in['w2']}

def reference(A_x, A_mem0, A_Wq, A_Wk, A_Wv, A_Wo, A_seg_len, B_x, B_w1, B_w2):

    def _A_ref(x, mem0, Wq, Wk, Wv, Wo, seg_len):
        B, S, Dm = x.shape
        H, Dh = (Wq.shape[1], Wq.shape[2])
        M = mem0.shape[1]
        scale = Dh ** (-0.5)
        n_seg = S // seg_len
        L = M + seg_len
        idx = torch.arange(L)
        mask = (idx[:, None] < M) | (idx[:, None] >= idx[None, :])
        mem = mem0
        outs = []
        for s in range(n_seg):
            xs = x[:, s * seg_len:(s + 1) * seg_len, :].clone()
            h = torch.concatenate([mem, xs], axis=1)
            q = torch.einsum('btd,dhe->bhte', h, Wq)
            k = torch.einsum('btd,dhe->bhte', h, Wk)
            v = torch.einsum('btd,dhe->bhte', h, Wv)
            scores = torch.einsum('bhqe,bhke->bhqk', q, k) * scale
            scores = torch.where(mask[None, None], scores, -1000000000.0)
            p = _softmax(scores, axis=-1)
            o = torch.einsum('bhqk,bhke->bhqe', p, v)
            o = torch.einsum('bhte,hed->btd', o, Wo)
            mem = o[:, :M, :].clone()
            outs.append(o[:, M:, :])
        return torch.concatenate(outs, axis=1)

    def _B_ref(x, w1, w2):
        h = torch.einsum('bsd,df->bsf', x, w1)
        h = _silu(h)
        out = torch.einsum('bsf,fd->bsd', h, w2)
        return out
    x = A_x
    xn = _layernorm(x, axis=-1)
    return x + _A_ref(xn, A_mem0, A_Wq, A_Wk, A_Wv, A_Wo, A_seg_len) + _B_ref(xn, B_w1, B_w2)
```

```python
class A:
    def __init__(self):
        self.L = []
        self.uid = 0
    def __call__(self, s):
        for ln in s.split('\n'):
            ln = ln.strip()
            if ln:
                self.L.append(('' if ln.endswith(':') else '    ') + ln)
    def lab(self, base='L'):
        self.uid += 1
        return f'{base}_{self.uid}'
    def text(self):
        return '\n'.join(self.L) + '\n'

def v(i, n=1):
    return f'v{i}' if n == 1 else f'v[{i}:{i+n-1}]'
def a(i, n=1):
    return f'a{i}' if n == 1 else f'a[{i}:{i+n-1}]'
def s(i, n=1):
    return f's{i}' if n == 1 else f's[{i}:{i+n-1}]'

def kernel_desc(name, vgpr=256, sgpr=102, accum=256):
    return f'''.section .rodata,"a"
.p2align 6
.amdhsa_kernel {name}
  .amdhsa_next_free_vgpr {vgpr}
  .amdhsa_next_free_sgpr {sgpr}
  .amdhsa_accum_offset {accum}
  .amdhsa_group_segment_fixed_size 0
  .amdhsa_kernarg_size 104
  .amdhsa_user_sgpr_count 2
  .amdhsa_user_sgpr_kernarg_segment_ptr 1
  .amdhsa_system_sgpr_workgroup_id_x 1
  .amdhsa_float_denorm_mode_32 3
  .amdhsa_float_denorm_mode_16_64 3
.end_amdhsa_kernel
.text
'''
def kernel_head(name):
    return f'''.globl {name}
.p2align 8
.type {name},@function
{name}:
'''
```

```python
import re
REG = re.compile(r'\b([vas])(\d+)\b|\b([vas])\[(\d+):(\d+)\]|\b(vcc|exec|m0)(_lo|_hi)?\b')
TRANS = ('v_exp_f32', 'v_log_f32', 'v_rcp_f32', 'v_rsq_f32', 'v_sqrt_f32', 'v_sin_f32', 'v_cos_f32')
def regs(op):
    out = []
    for m in REG.finditer(op):
        if m.group(1): out.append((m.group(1), int(m.group(2))))
        elif m.group(3): out += [(m.group(3), i) for i in range(int(m.group(4)), int(m.group(5))+1)]
        else: out.append((m.group(6), 0))
    return out
def split_ops(rest):
    ops, d, cur = [], 0, ''
    for ch in rest:
        if ch == '[': d += 1
        if ch == ']': d -= 1
        if ch == ',' and d == 0: ops.append(cur.strip()); cur = ''
        else: cur += ch
    if cur.strip(): ops.append(cur.strip())
    return ops
class I: pass
def parse(line):
    t = line.split(';')[0].strip()
    p = t.split(None, 1); i = I(); i.op = p[0]; ops = split_ops(p[1]) if len(p) > 1 else []
    op = i.op; i.W = []; i.R = []; i.kind = 'other'; i.A = i.B = i.C = []
    i.dpp = ('quad_perm' in t or 'row_' in t.replace('row_mask', '') and any(k in t for k in ('row_ror', 'row_shr', 'row_shl', 'row_bcast', 'row_mirror', 'row_half_mirror', 'row_newbcast')))
    if op.startswith('v_mfma') or op.startswith('v_smfmac'):
        i.kind = 'mfma'; i.W = regs(ops[0]); i.A = regs(ops[1]); i.B = regs(ops[2])
        last = ops[3].split()[0]
        if op.startswith('v_smfmac'): i.C = list(i.W); i.B = i.B + regs(last)
        else: i.C = regs(last)
        i.R = i.A + i.B + i.C
        i.passes = 8 if '32x32' in op else 4
    elif op.startswith('v_'):
        i.kind = 'valu'
        rs = [regs(o) for o in ops]
        if op.startswith('v_cmp'): i.W = rs[0]; i.R = sum(rs[1:], [])
        elif op.startswith('v_permlane'): i.W = rs[0] + rs[1]; i.R = rs[0] + rs[1]
        elif op.startswith('v_add_co') or op.startswith('v_addc_co'): i.W = rs[0] + rs[1]; i.R = sum(rs[2:], [])
        else:
            i.W = rs[0]; i.R = sum(rs[1:], [])
            if op.startswith(('v_fmac', 'v_writelane')) or i.dpp: i.R = i.R + rs[0]
            if op.startswith('v_cndmask') and len(ops) == 3: i.R.append(('vcc', 0))
    elif op.startswith('ds_'):
        i.kind = 'ds'; rs = [regs(o) for o in ops]
        if op.startswith(('ds_read', 'ds_bpermute', 'ds_permute', 'ds_swizzle')): i.W = rs[0]; i.R = sum(rs[1:], [])
        else: i.R = sum(rs, [])
    elif op.startswith(('buffer_', 'global_')):
        i.kind = 'vmem'; rs = [regs(o) for o in ops]
        i.lds = bool(re.search(r'\blds\b', t)) or '_lds_' in op
        if 'load' in op and not i.lds: i.W = rs[0]; i.R = sum(rs[1:], [])
        elif 'atomic' in op and 'sc0' in t: i.W = rs[0]; i.R = sum(rs, [])
        else: i.R = sum(rs, [])
        i.wide = ('store_dwordx4' in op or 'store_dwordx3' in op)
        if i.wide: i.data = rs[0] if op.startswith('buffer_') else rs[1]
    elif op.startswith('s_'):
        i.kind = 'salu'; rs = [regs(o) for o in ops]
        if op.startswith(('s_cmp', 's_cbranch', 's_branch', 's_waitcnt', 's_nop', 's_barrier', 's_endpgm', 's_sleep', 's_setprio', 's_bitcmp')): i.R = sum(rs, [])
        else: i.W = rs[0]; i.R = sum(rs[1:], [])
        i.ops = ops
    return i
def run(lines):
    out = []; t = 0
    st = {}
    snaps = {}
    BIG = -10**9
    def age(k): return t - st.get(k, BIG) - 1
    nins = 0
    for ln in lines:
        s = ln.strip()
        if '\n' in s or not s or s.startswith((';', '.')):
            out.append(ln); continue
        if s.endswith(':'):
            lab = s[:-1]
            for (tt, snap) in snaps.pop(lab, []):
                for k, tv in snap.items():
                    rel = t - (tt - tv)
                    if rel > st.get(k, BIG): st[k] = rel
            out.append(ln); continue
        i = parse(s); need = 0
        def req(k, n):
            nonlocal need
            need = max(need, n - age(k))
        vg = lambda L: [r for r in L if r[0] in 'va']
        sg = lambda L: [r for r in L if r[0] in ('s', 'vcc')]
        if i.kind == 'mfma':
            for r in vg(i.R): req(('valu', r), 2)
            for r in i.A + i.B:
                req(('mf4', r), 8); req(('mf8', r), 12)
            same = st.get('lastshape', {})
            for r in vg(i.C):
                for p, n in ((4, 6), (8, 10)):
                    if same.get(r) != (i.op, tuple(i.C)): req((f'mf{p}', r), n)
            if tuple(i.W) != tuple(i.C):
                for r in i.W: req(('mf4', r), 8); req(('mf8', r), 12)
            req(('valuexec',), 4)
        elif i.kind == 'valu':
            for r in vg(i.R + i.W): req(('mf4', r), 8); req(('mf8', r), 12)
            for r in vg(i.W): req(('mfC4', r), 3); req(('mfC8', r), 7); req(('wide', r), 2)
            if i.op not in TRANS:
                for r in vg(i.R): req(('trans', r), 1)
            if i.dpp or i.op.startswith('v_permlane'):
                for r in vg(i.R): req(('valu', r), 2)
            if i.op.startswith(('v_readlane', 'v_readfirstlane')):
                for r in vg(i.R): req(('valu', r), 1)
            for r in sg(i.R): req(('vsg', r), 4 if i.op.startswith(('v_readlane', 'v_writelane')) else 2)
        elif i.kind in ('ds', 'vmem'):
            for r in vg(i.R + i.W): req(('mf4', r), 8); req(('mf8', r), 12)
            for r in vg(i.W): req(('wide', r), 1); req(('mfC4', r), 3)
            for r in vg(i.R): req(('trans', r), 1)
            if i.kind == 'vmem':
                for r in sg(i.R): req(('vsg', r), 5)
                if i.lds: req(('m0',), 1)
        elif i.kind == 'salu':
            for r in sg(i.R): req(('vsg', r), 1)
            if i.op.startswith('s_cbranch_vcc'): req(('vsg', ('vcc', 0)), 0)
        while need > 0:
            n = min(need, 16); out.append(f'    s_nop {n-1}'); t += n; need -= n; nins += 1
        if i.kind == 'mfma':
            sh = dict(st.get('lastshape', {}))
            for r in i.W: st[(f'mf{i.passes}', r)] = t; sh[r] = (i.op, tuple(i.W))
            for r in vg(i.C): st[(f'mfC{i.passes}', r)] = t
            st['lastshape'] = sh
        elif i.kind == 'valu':
            for r in vg(i.W):
                st[('valu', r)] = t
                if i.op in TRANS: st[('trans', r)] = t
            for r in sg(i.W): st[('vsg', r)] = t
            if i.op.startswith('v_cmpx'): st[('valuexec',)] = t
        elif i.kind == 'vmem' and i.wide:
            for r in i.data: st[('wide', r)] = t
        elif i.kind == 'salu':
            if ('m0', 0) in i.W: st[('m0',)] = t
        out.append(ln)
        if i.op == 's_nop': t += int(i.ops[0], 0) + 1
        else: t += 1
        if i.op.startswith(('s_cbranch', 's_branch')):
            snaps.setdefault(i.ops[0], []).append((t, {k: v for k, v in st.items() if k != 'lastshape' and t - v < 24}))
            if i.op == 's_branch':
                sh = st.get('lastshape', {}); st.clear(); st['lastshape'] = {}
        if i.op == 's_endpgm': st.clear()
    return out, nins
```

```python
import sys
from asmlib import *
import hazard

NAME = 'parallel_sum__memory_aug_recurrent_mem_tr__dense_activation_silu__prompt_kernel'
BS = 16384
BULK = 36 << 20
XN = 164 << 20
DBGW = 170 << 20
B_MEM, B_P, B_FL, B_VOM, B_CAL = 0, 8, 20, 21, 62
B_PT, B_VF = 100, 110
L_X, L_MISC, L_W = 0, 40960, 57344
WPW = 26624
TMO = 1 << 17
LOG2E = 1.4426950408889634
import struct
def f2u(x): return struct.unpack('<I', struct.pack('<f', x))[0]
CSC = f2u(LOG2E / 192 ** 0.5)

sWS, sA, sB, sDBG = 's[4:7]', 's[8:11]', 's[12:15]', 's[16:19]'
sXQ, sJ, sSIDE, sW, sU, sS, sTO, sC0 = 's20', 's21', 's22', 's23', 's25', 's26', 's27', 's28'

class G(A):
    def __init__(self, **o):
        super().__init__(); self.o = dict(leadQ=23, rflag=32, stamps=0, roles='LVFQR', nseg=64); self.o.update(o)
    def crit_off(self, dst, add=0, t0='s40', t1='s41'):
        e = self
        e(f's_add_u32 {t0}, {sS}, {add}\ns_lshr_b32 {t1}, {t0}, 2\ns_xor_b32 {t1}, {t1}, {t0}\ns_xor_b32 {t1}, {t1}, {sC0}\ns_and_b32 {t1}, {t1}, 1\ns_lshl_b32 {t1}, {t1}, 13')
        e(f's_lshr_b32 {t0}, {t0}, 1\ns_lshl_b32 {t0}, {t0}, 20\ns_or_b32 {dst}, {t0}, {t1}')
    def bulk_off(self, dst, add=0, t0='s40', t1='s41'):
        e = self
        e(f's_add_u32 {t0}, {sS}, {add}\ns_xor_b32 {t1}, {t0}, {sC0}\ns_and_b32 {t1}, {t1}, 1\ns_lshl_b32 {t1}, {t1}, 13')
        e(f's_lshr_b32 {t0}, {t0}, 1\ns_lshl_b32 {t0}, {t0}, 22\ns_add_u32 {t0}, {t0}, {BULK}\ns_or_b32 {dst}, {t0}, {t1}')
    def tmo(self, again):
        self(f's_add_u32 {sTO}, {sTO}, 1\ns_cmp_lt_u32 {sTO}, {TMO}\ns_cbranch_scc1 {again}\ns_branch L_abort')
    def srd(self, dst, slot, nbytes):
        self(f's_load_dwordx2 s[{dst}:{dst+1}], s[0:1], {slot*8}\ns_mov_b32 s{dst+2}, {nbytes}\ns_mov_b32 s{dst+3}, 0x20000')
    def arrive(self, extra=None, vt=2):
        e = self
        e(f'v_mov_b32 v{vt}, 0')
        e(f'v_mov_b32 v{vt+1}, {"1" if extra is None else extra}')
        e(f's_mov_b64 exec, 1\nbuffer_atomic_add v{vt+1}, v{vt}, {sDBG}, 0 offen sc1\ns_mov_b64 exec, -1')
    def wait_start(self, vt=2):
        e = self; lp = e.lab('ws'); dn = e.lab('wsd')
        e(f'v_mov_b32 v{vt}, 0\n{lp}:\nbuffer_load_dword v{vt+1}, v{vt}, {sDBG}, 0 offen sc1\ns_waitcnt vmcnt(0)')
        e(f'v_readfirstlane_b32 s40, v{vt+1}\ns_and_b32 s41, s40, 0xffff\ns_cmp_eq_u32 s41, 256\ns_cbranch_scc1 {dn}\ns_sleep 6')
        e.tmo(lp)
        e(f'{dn}:\ns_lshr_b32 {sC0}, s40, 16\ns_and_b32 {sC0}, {sC0}, 1')
    def poll(self, vaddr, soff, r0, D=3):
        e = self; lp = e.lab('poll'); dn = e.lab('pd')
        iss = lambda i: e(f'buffer_load_dword v{r0+i}, {vaddr}, {sWS}, {soff} offen sc1')
        for i in range(D):
            iss(i)
            if i < D-1: e('s_nop 15')
        e(f'{lp}:')
        for i in range(D):
            e(f's_waitcnt vmcnt({D-1})\nv_cmp_eq_u32 vcc, -1, v{r0+i}\ns_cbranch_vccz {dn}')
            iss(i)
        e.tmo(lp)
        e(f'{dn}:')
    def ts(self, i):
        if self.o['stamps']: self(f's_memrealtime s[{70+2*i}:{71+2*i}]')
    def tsflush(self, n, vbase):
        if not self.o['stamps']: return
        e = self
        e(f's_waitcnt lgkmcnt(0)\ns_lshl_b32 s40, s2, 2\ns_add_u32 s40, s40, {sW}\ns_lshl_b32 s40, s40, 6\ns_add_u32 s40, s40, {sS}\ns_lshl_b32 s40, s40, 6\ns_add_u32 s40, s40, {DBGW}')
        e(f'v_mov_b32 v{vbase}, 0')
        for i in range(n): e(f'v_writelane_b32 v{vbase}, s{70+2*i}, {i}')
        e(f'v_lshlrev_b32 v{vbase+1}, 2, v1\ns_mov_b64 exec, 0xffff\nbuffer_store_dword v{vbase}, v{vbase+1}, {sWS}, s40 offen\ns_mov_b64 exec, -1')

def xsum(e, r, t, op='v_add_f32', steps=(16, 32)):
    for st in steps:
        e(f'v_mov_b32 v{t}, v{r}\nv_permlane{st}_swap_b32 v{r}, v{t}\n{op} v{r}, v{r}, v{t}')

def role_ln(e):
    e('L_LN:')
    e.srd(8, 0, 2621440)
    e(f's_and_b32 s40, s2, 7\ns_lshl_b32 s40, s40, 2\ns_add_u32 s40, s40, {sJ}\ns_sub_u32 s40, s40, 28\ns_lshl_b32 s40, s40, 2\ns_add_u32 s42, s40, {sW}')
    e(f'v_and_b32 v2, 15, v1\nv_lshrrev_b32 v3, 4, v1\nv_mul_u32_u24 v2, 1280, v2\nv_lshl_add_u32 v2, v3, 4, v2\ns_mul_i32 s43, s42, {16*1280}\ns_waitcnt lgkmcnt(0)')
    R0, F0 = 8, 88
    for k in range(20): e(f'buffer_load_dwordx4 {v(R0+4*k,4)}, v2, {sA}, s43 offen offset:{k*64}')
    e('v_mov_b32 v4, 0\nv_mov_b32 v5, 0')
    for k in range(20):
        e(f's_waitcnt vmcnt({19-k})')
        for r in range(4):
            x = R0+4*k+r; f = F0+8*k+2*r
            e(f'v_lshlrev_b32 v{f}, 16, v{x}\nv_and_b32 v{f+1}, 0xffff0000, v{x}\nv_add_f32 v4, v4, v{f}\nv_add_f32 v5, v5, v{f+1}')
    e('v_add_f32 v4, v4, v5'); xsum(e, 4, 5)
    e(f'v_mul_f32 v4, {f2u(1/640)}, v4')
    e('v_mov_b32 v5, 0\nv_mov_b32 v6, 0')
    for i in range(0, 160, 2):
        e(f'v_sub_f32 v7, v{F0+i}, v4\nv_sub_f32 v248, v{F0+i+1}, v4\nv_fmac_f32 v5, v7, v7\nv_fmac_f32 v6, v248, v248')
    e('v_add_f32 v5, v5, v6'); xsum(e, 5, 6)
    e(f'v_mul_f32 v5, {f2u(1/640)}, v5')
    e('v_cvt_pk_bf16_f32 v6, v4, v5\nv_lshlrev_b32 v4, 16, v6\nv_and_b32 v5, 0xffff0000, v6')
    e(f'v_add_f32 v5, {f2u(1e-5)}, v5\nv_cvt_pk_bf16_f32 v5, v5, v5\nv_lshlrev_b32 v5, 16, v5\nv_sqrt_f32 v5, v5\nv_cvt_pk_bf16_f32 v5, v5, v5\nv_lshlrev_b32 v5, 16, v5\nv_rcp_f32 v5, v5')
    e(f's_lshr_b32 s40, s42, 1\ns_mul_i32 s40, s40, 40960\ns_and_b32 s41, s42, 1\ns_lshl_b32 s41, s41, 10\ns_add_u32 s40, s40, s41\ns_add_u32 s40, s40, {XN}\nv_lshlrev_b32 v2, 4, v1')
    for k in range(20):
        for r in range(4):
            x = R0+4*k+r; f = F0+8*k+2*r
            e(f'v_sub_f32 v{f}, v{f}, v4\nv_sub_f32 v{f+1}, v{f+1}, v4\nv_cvt_pk_bf16_f32 v6, v{f}, v{f+1}\nv_lshlrev_b32 v{f}, 16, v6\nv_and_b32 v{f+1}, 0xffff0000, v6')
            e(f'v_mul_f32 v{f}, v{f}, v5\nv_mul_f32 v{f+1}, v{f+1}, v5\nv_cvt_pk_bf16_f32 v{x}, v{f}, v{f+1}')
        e(f'buffer_store_dwordx4 {v(R0+4*k,4)}, v2, {sWS}, s40 offen offset:{(k%2)*2048} sc1')
        if k % 2: e('s_add_u32 s40, s40, 4096')
    e(f's_waitcnt vmcnt(0)\ns_barrier\ns_cmp_lg_u32 {sW}, 0\ns_cbranch_scc1 L_end')
    e.arrive()
    e('s_branch L_end')

class Units:
    def __init__(self, keys_reg, keys_lds):
        self.m = {}
        for i, k in enumerate(keys_reg):
            self.m[k] = ('a', 8*i) if i < 32 else ('v', 136 + 8*(i-32))
        assert len(keys_reg) <= 47 and len(keys_lds) <= 13
        for i, k in enumerate(keys_lds): self.m[k] = ('l', i)
    def reg(self, k, off=0, n=8):
        t, r = self.m[k]; assert t != 'l'
        return (a if t == 'a' else v)(r+off, n)
    def islds(self, k): return self.m[k][0] == 'l'
    def ldsoff(self, k, half): return self.m[k][1]*2048 + half*1024

vL16, vWL = 'v2', 'v3'

def common_wsetup(e):
    e(f'v_lshlrev_b32 {vL16}, 4, v1\ns_mul_i32 s40, {sW}, {WPW}\ns_add_u32 s40, s40, {L_W}\nv_add_u32 {vWL}, s40, {vL16}')

def load_weights(e, U, chunks, mid):
    n = len(chunks); TMP = 40
    e(f's_mul_i32 s44, {sW}, 3072')
    def issue(c):
        ch = chunks[c]
        ch['soff'](); base = (c % 4)*12288
        for ii in range(3):
            e(f's_add_u32 m0, s44, {base + 1024*ii}\nbuffer_load_dwordx4 v{ch["voff"]+ii}, {ch["srd"]}, s45 offen sc1 lds')
    mid()
    for c in range(3): issue(c)
    for c in range(n):
        infl = min(n-1-c, 2)
        e(f's_waitcnt vmcnt({3*infl})\ns_barrier')
        if c+3 < n: issue(c+3)
        base = (c % 4)*12288; pend = []; t = TMP
        for (key, ro, va, imm) in chunks[c]['reads']:
            if U.islds(key):
                e(f'ds_read_b64_tr_b16 {v(t,2)}, {va} offset:{base+imm}'); pend.append((key, ro, t)); t += 2
            else:
                e(f'ds_read_b64_tr_b16 {U.reg(key, ro, 2)}, {va} offset:{base+imm}')
        e('s_waitcnt lgkmcnt(0)')
        for i in range(0, len(pend), 2):
            key, ro, t = pend[i]; assert pend[i+1][0] == key and pend[i+1][1] == ro+2 and ro % 4 == 0
            e(f'ds_write_b128 {vWL}, {v(t,4)} offset:{U.ldsoff(key, ro//4)}')
    e('s_waitcnt lgkmcnt(0)\ns_barrier')

def setup_colchunk(e, vo, vr, sStride):
    for ii in range(3):
        e(f'v_add_u32 v10, {64*ii}, v1\nv_mul_u32_u24 v11, 2731, v10\nv_lshrrev_b32 v11, 16, v11')
        e(f'v_mul_u32_u24 v12, 24, v11\nv_sub_u32 v10, v10, v12\ns_lshl_b32 s40, {sW}, 3\nv_add_u32 v11, s40, v11\nv_mul_lo_u32 v11, v11, {sStride}\nv_lshl_add_u32 v{vo+ii}, v10, 4, v11')
    e(f'v_lshrrev_b32 v10, 4, v1\nv_lshlrev_b32 v10, 3, v10\nv_bfe_u32 v11, v1, 2, 2\nv_add_u32 v10, v10, v11\nv_mul_u32_u24 v10, 384, v10')
    e(f'v_and_b32 v11, 3, v1\nv_lshl_add_u32 v10, v11, 3, v10\ns_mul_i32 s40, {sW}, 96\nv_add_u32 v{vr}, s40, v10')

def col_chunks(e, srd, vo, vr, sBase, sStep, keyf):
    out = []
    for kp in range(20):
        def soff(kp=kp): e(f's_mul_i32 s45, {sStep}, {kp}\ns_add_u32 s45, s45, {sBase}')
        reads = []
        for t in range(3):
            for q in range(2): reads.append((keyf(t, kp//2), 4*(kp % 2)+2*q, f'v{vr}', 32*t + 1536*q))
        out.append(dict(srd=srd, voff=vo, soff=soff, reads=reads))
    return out

def xdma(e, k0, k1, sX):
    per = (k1-k0)*2 // 4
    e(f's_mul_i32 s40, {sW}, {per*1024}\ns_add_u32 s40, s40, {k0*2048}\ns_add_u32 s41, s40, {sX}')
    for i in range(per):
        e(f's_add_u32 m0, s40, {L_X + i*1024}\nbuffer_load_dwordx4 {vL16}, {sWS}, s41 offen sc1 lds')
        if i < per-1: e('s_add_u32 s41, s41, 1024')
    return per

def memloads_def(e, MF, sM):
    def ld(k, fl=''):
        e(f'buffer_load_dwordx4 {v(MF+4*k,4)}, {vL16}, {sWS}, {sM[k//4]} offen offset:{(k%4)*1024} {fl}')
    return ld

def smf(D, Af, B, idx='v4'): return f'v_smfmac_f32_16x16x64_bf16 {v(D,4)}, {v(Af,4)}, {B}, {idx}'
def mf32(D, Aop, Bop, C=None): return f'v_mfma_f32_16x16x32_bf16 {v(D,4)}, {Aop}, {Bop}, {"0" if C is None else v(C,4)}'
def mf16(D, Aop, Bop, C=None): return f'v_mfma_f32_16x16x16_bf16 {v(D,4)}, {Aop}, {Bop}, {"0" if C is None else v(C,4)}'

class Ring:
    def __init__(self, e, U, keys, base, ns):
        self.e, self.U, self.keys, self.base, self.ns = e, U, [k for k in keys if U.islds(k)], base, ns
        self.q = 0; self.issued = 0
    def issue(self):
        if self.issued < len(self.keys):
            k = self.keys[self.issued]; r = self.base + 8*(self.issued % self.ns)
            self.e(f'ds_read_b128 {v(r,4)}, {vWL} offset:{self.U.ldsoff(k,0)}\nds_read_b128 {v(r+4,4)}, {vWL} offset:{self.U.ldsoff(k,1)}')
            self.issued += 1
    def prime(self):
        self.q = 0; self.issued = 0
        for _ in range(self.ns): self.issue()
    def op(self, D, Af, key):
        e = self.e
        if not self.U.islds(key): e(smf(D, Af, self.U.reg(key))); return
        assert self.keys[self.q] == key
        e(f's_waitcnt lgkmcnt({2*(self.issued-1-self.q)})')
        e(smf(D, Af, v(self.base + 8*(self.q % self.ns), 8)))
        self.q += 1; self.issue()

NPRE = 7
def crit_pass1(e, ring, MF, sM, tiles, vMax, zero_regs):
    ld = memloads_def(e, MF, sM)
    slow, ok = e.lab('slow'), e.lab('ok')
    e.ts(1)
    for k in range(NPRE):
        ld(k)
        if k < NPRE-1: e('s_nop 13')
    issued = NPRE
    st = (ring.q, ring.issued)
    for k in range(10):
        e(f's_waitcnt vmcnt({issued-1-k})')
        if k == 0: e.ts(2)
        for i, (D, kf) in enumerate(tiles):
            ring.op(D, MF+4*k, kf(k))
            r = MF+4*k
            if i == 0:
                if issued < 10: ld(issued); issued += 1
                if k == 0: e(f'v_max3_u32 {vMax}, v{r}, v{r+1}, v{r+2}\nv_max_u32 {vMax}, {vMax}, v{r+3}')
                else: e(f'v_max3_u32 {vMax}, {vMax}, v{r}, v{r+1}\nv_max3_u32 {vMax}, {vMax}, v{r+2}, v{r+3}')
            if i == 1 and k in (0, 9):
                e(f'v_cmp_eq_u32 vcc, -1, {vMax}\ns_cbranch_vccnz {slow}')
    end = (ring.q, ring.issued)
    def slowpath():
        again = e.lab('again'); good = e.lab('good')
        e(f'{slow}:\ns_mov_b32 s34, 1\ns_waitcnt vmcnt(0) lgkmcnt(0)\n{again}:')
        for k in range(10): ld(k, 'sc1')
        e(f'v_mov_b32 {vMax}, 0\ns_waitcnt vmcnt(0)')
        for k in range(10):
            r = MF+4*k; e(f'v_max3_u32 {vMax}, {vMax}, v{r}, v{r+1}\nv_max3_u32 {vMax}, {vMax}, v{r+2}, v{r+3}')
        e(f'v_cmp_eq_u32 vcc, -1, {vMax}\ns_cbranch_vccz {good}'); e.tmo(again); e(f'{good}:')
        for r in zero_regs: e(f'v_mov_b32 v{r}, 0')
        ring.prime(); assert (ring.q, ring.issued) == st
        for k in range(10):
            for (D, kf) in tiles: ring.op(D, MF+4*k, kf(k))
        assert (ring.q, ring.issued) == end
        e(f's_nop 7\ns_branch {ok}')
    e(f'{ok}:')
    return slowpath

def tok_stage1(e, U, tiles, XB, ST, hooks):
    def lds_keys(kp): return [kf(kp//2) for (_, kf) in tiles if U.islds(kf(kp//2))]
    def reads(kp):
        out = []
        b = kp % 3
        for tt in range(2): out.append(f'ds_read_b128 {v(XB+8*b+4*tt,4)}, {vL16} offset:{L_X + kp*2048 + tt*1024}')
        for i, k in enumerate(lds_keys(kp)): out.append(f'ds_read_b128 {v(ST+8*b+4*i,4)}, {vWL} offset:{U.ldsoff(k, kp%2)}')
        return out
    for kp in range(2):
        for r in reads(kp): e(r)
    for kp in range(20):
        nxt = reads(kp+2) if kp+2 < 20 else []
        e(f's_waitcnt lgkmcnt({len(reads(kp+1)) if kp+1 < 20 else 0})')
        b = kp % 3; lk = lds_keys(kp)
        for (acc, kf) in tiles:
            k = kf(kp//2)
            Aop = v(ST+8*b+4*lk.index(k), 4) if U.islds(k) else U.reg(k, 4*(kp % 2), 4)
            for tt in range(2):
                e(mf32(acc+4*tt, Aop, v(XB+8*b+4*tt, 4), None if kp == 0 else acc+4*tt))
                if nxt: e(nxt.pop(0))
        assert not nxt
        if kp in hooks: hooks[kp]()

def flagclear_bulk(e, blk, vt):
    e(f'v_lshlrev_b32 v{vt}, 22, v1\ns_lshl_b32 s40, {sSIDE}, 13\ns_add_u32 s40, s40, s42\ns_add_u32 s40, s40, {BULK + blk*BS}')
    e(f'v_mov_b32 v{vt+1}, -1\ns_mov_b32 exec_hi, 0\nbuffer_store_dword v{vt+1}, v{vt}, {sWS}, s40 offen sc1\ns_mov_b32 exec_hi, -1')

def role_vo(e):
    keys_l = [('v', 2, k) for k in range(10)] + [('v', 1, k) for k in (2, 5, 8)]
    keys_r = [('o', u, k) for u in range(10) for k in range(3)] + [('v', t, k) for t in range(2) for k in range(10) if ('v', t, k) not in keys_l]
    U = Units(keys_r, keys_l)
    sFFN, sSTR, sWB, sSTP, sOB = 's29', 's30', 's31', 's32', 's33'
    sCR, sCR2, sB0, sB1, sX, sM = 's35', 's36', 's37', 's38', 's39', ('s46', 's47', 's48')
    sSL, sFR = 's49', 's50'
    L_VX, L_VM = L_MISC, L_MISC + 12288
    e('L_VO:')
    e.srd(8, 4, 7864320); e.srd(12, 5, 7864320)
    e(f's_lshl_b32 {sU}, {sXQ}, 3\ns_add_u32 {sU}, {sU}, {sJ}\ns_sub_u32 {sU}, {sU}, 8\ns_mov_b32 {sFFN}, 0\ns_mov_b32 {sSTR}, 12288\ns_mov_b32 s42, {sU}\ns_branch L_VF')
    e('L_FFN:')
    e.srd(8, 8, 1966080); e.srd(12, 9, 1966080)
    e(f's_lshl_b32 {sU}, {sXQ}, 1\ns_add_u32 {sU}, {sU}, {sJ}\ns_sub_u32 {sU}, {sU}, 26\ns_mov_b32 {sFFN}, 1\ns_mov_b32 {sSTR}, 3072\ns_add_u32 s42, {sU}, 32')
    e('L_VF:')
    e(f's_lshr_b32 s40, s42, 3\ns_lshl_b32 s40, s40, 14\ns_and_b32 s41, s42, 7\ns_lshl_b32 s41, s41, 10\ns_add_u32 {sSL}, s40, s41\ns_lshl_b32 s51, s42, 7')
    e(f's_mul_i32 {sWB}, {sU}, 384\ns_lshl_b32 {sSTP}, {sSTR}, 5\ns_mul_i32 {sOB}, {sU}, 245760')
    common_wsetup(e)
    VO1, VR1, VO2, VR2 = 16, 19, 20, 23
    setup_colchunk(e, VO1, VR1, sSTR)
    for ii in range(3):
        e(f's_mul_i32 s40, {sW}, 192\ns_add_u32 s40, s40, {64*ii}\nv_add_u32 v10, s40, v1\nv_mul_u32_u24 v11, 1639, v10\nv_lshrrev_b32 v11, 16, v11')
        e(f'v_mul_u32_u24 v12, 40, v11\nv_sub_u32 v12, v10, v12\nv_mul_u32_u24 v11, 1280, v11\nv_lshl_add_u32 v{VO2+ii}, v12, 4, v11')
        e(f'v_mov_b32 v11, 0x40000000\nv_cmp_gt_u32 vcc, 640, v10\nv_cndmask_b32 v{VO2+ii}, v11, v{VO2+ii}, vcc')
    e(f'v_lshrrev_b32 v10, 2, v1\nv_mul_u32_u24 v10, 640, v10\nv_and_b32 v11, 3, v1\nv_lshl_add_u32 v10, v11, 3, v10\ns_mul_i32 s40, {sW}, 160\nv_add_u32 v{VR2}, s40, v10')
    chunks = col_chunks(e, sA, VO1, VR1, sWB, sSTP, lambda t, k: ('v', t, k))
    for r16 in range(12):
        for hf in range(2):
            def soff(r16=r16, hf=hf): e(f's_add_u32 s45, {sOB}, {r16*16*1280 + hf*640}')
            chunks.append(dict(srd=sB, voff=VO2, soff=soff, reads=[(('o', 5*hf+uu, r16//4), 2*(r16 % 4), f'v{VR2}', 32*uu) for uu in range(5)]))
    e(f'v_and_b32 v13, 15, v1\nv_lshrrev_b32 v14, 4, v1')
    e(f'v_mov_b32 v4, 0x4444\nv_mov_b32 v10, 0xeeee\nv_cmp_lt_u32 vcc, 7, v13\nv_cndmask_b32 v4, v4, v10, vcc')
    for (dst, tau) in ((5, 0), (6, 1)):
        e(f's_mul_i32 s40, {sW}, 3\ns_add_u32 s40, s40, {tau}\ns_lshr_b32 s41, s40, 1\ns_and_b32 s40, s40, 1')
        e(f's_lshl_b32 s43, s41, 10\ns_lshl_b32 s44, s40, 3\ns_add_u32 s43, s43, s44\ns_add_u32 s43, s43, {L_VX}\nv_add_u32 v{dst}, s43, {vL16}')
        e(f's_lshl_b32 s43, s41, 9\ns_lshl_b32 s44, s40, 2\ns_add_u32 s43, s43, s44\ns_add_u32 s43, s43, {L_VM}\nv_mov_b32 v{dst+2}, s43')
    e('''v_lshrrev_b32 v10, 3, v13
    v_lshlrev_b32 v10, 8, v10
    v_bfe_u32 v11, v13, 1, 1
    v_lshl_add_u32 v10, v11, 7, v10
    v_bfe_u32 v11, v13, 2, 1
    v_lshl_add_u32 v10, v11, 3, v10
    v_and_b32 v11, 1, v13
    v_lshl_add_u32 v10, v11, 1, v10
    v_and_b32 v11, 1, v14
    v_lshl_add_u32 v10, v11, 6, v10
    v_lshrrev_b32 v11, 1, v14
    v_lshl_add_u32 v10, v11, 4, v10
    v_add_u32 v7, v7, v10
    v_add_u32 v8, v8, v10''')
    e(f'''v_and_b32 v10, 1, v14
    v_lshrrev_b32 v11, 1, v14
    v_lshl_add_u32 v12, v10, 1, v11
    s_mul_i32 s40, {sW}, 5
    s_add_u32 s40, s40, {B_VOM}
    s_lshl_b32 s40, s40, 14
    s_lshl_b32 s41, {sU}, 8
    s_add_u32 s40, s40, s41
    v_lshl_add_u32 v15, v13, 4, s40
    v_lshl_add_u32 v9, v12, 14, v15
    v_lshlrev_b32 v10, 3, v10
    v_add_u32 v11, 23, v11
    v_lshl_add_u32 v11, v11, 14, v15
    v_add_u32 v11, v11, v10
    v_add_u32 v10, {19*BS}, v9
    v_add_u32 v15, {4*BS}, v9
    v_cmp_eq_u32 vcc, 0, v12
    v_cndmask_b32 v10, v10, v15, vcc
    v_mov_b32 v12, 0''')
    def clear_vom(so):
        for r in range(124, 128): e(f'v_mov_b32 v{r}, -1')
        e(f'buffer_store_dwordx4 v[124:127], v9, {sWS}, {so} offen sc1\nbuffer_store_dwordx4 v[124:127], v10, {sWS}, {so} offen sc1\nbuffer_store_dwordx2 v[124:125], v11, {sWS}, {so} offen sc1')
    def mid():
        l = e.lab('nc')
        e('s_waitcnt lgkmcnt(0)\ns_mov_b32 s42, s51')
        flagclear_bulk(e, B_VF, 30)
        e(f's_cmp_lg_u32 {sFFN}, 0\ns_cbranch_scc1 {l}\ns_lshl_b32 s43, {sSIDE}, 13')
        clear_vom('s43')
        e(f'{l}:')
    load_weights(e, U, chunks, mid)
    l = e.lab('na'); e(f's_cmp_lg_u32 {sW}, 0\ns_cbranch_scc1 {l}'); e.arrive(vt=30); e(f'{l}:')
    e.wait_start(vt=30)
    e(f's_mov_b32 {sS}, {sSIDE}\ns_mul_i32 {sX}, {sS}, 40960\ns_add_u32 {sX}, {sX}, {XN}')
    xdma(e, 0, 20, sX)
    e('s_waitcnt vmcnt(0)\ns_barrier')
    e('L_VF_loop:')
    e.ts(0)
    e.crit_off(sCR); e.crit_off(sCR2, 2); e.bulk_off(sB0)
    e(f's_add_u32 {sB1}, {sB0}, {2<<20}\ns_xor_b32 {sB1}, {sB1}, 8192\ns_add_u32 {sX}, {sX}, 81920')
    l = e.lab('nc'); e(f's_cmp_lg_u32 {sFFN}, 0\ns_cbranch_scc1 {l}'); clear_vom(sCR2); e(f'{l}:')
    XB, AC1, ST = 16, 40, 64
    tok_stage1(e, U, [(AC1+8*t, (lambda k, t=t: ('v', t, k))) for t in range(3)], XB, ST, {})
    l = e.lab('nsilu'); e(f's_nop 7\ns_cmp_eq_u32 {sFFN}, 0\ns_cbranch_scc1 {l}')
    for r in range(AC1, AC1+24, 2):
        e(f'v_cvt_pk_bf16_f32 v16, v{r}, v{r+1}\nv_lshlrev_b32 v{r}, 16, v16\nv_and_b32 v{r+1}, 0xffff0000, v16')
        e(f'v_mul_f32 v16, {f2u(-LOG2E)}, v{r}\nv_mul_f32 v17, {f2u(-LOG2E)}, v{r+1}\nv_exp_f32 v16, v16\nv_exp_f32 v17, v17\nv_add_f32 v16, 1.0, v16\nv_add_f32 v17, 1.0, v17')
        e(f'v_rcp_f32 v16, v16\nv_rcp_f32 v17, v17\nv_mul_f32 v{r}, v{r}, v16\nv_mul_f32 v{r+1}, v{r+1}, v17')
    e(f'{l}:')
    for t in range(3):
        for tt in range(2):
            r = AC1+8*t+4*tt; d = 16+4*t+2*tt
            e(f'v_cvt_pk_bf16_f32 v{d}, v{r}, v{r+1}\nv_cvt_pk_bf16_f32 v{d+1}, v{r+2}, v{r+3}')
            e(f'ds_write_b64 {"v6" if t == 1 else "v5"}, {v(d,2)} offset:{tt*6144 + (1024 if t == 2 else 0)}')
    e('s_waitcnt lgkmcnt(0)\ns_barrier')
    VF = 84
    for kp in range(6):
        for tt in range(2): e(f'ds_read_b128 {v(VF+8*kp+4*tt,4)}, {vL16} offset:{L_VX + (tt*6+kp)*1024}')
    xdma(e, 0, 20, sX)
    e(f's_mul_i32 s42, {sW}, {25*BS}\ns_add_u32 s42, s42, {sSL}\ns_add_u32 s43, s42, {sB1}\ns_add_u32 s42, s42, {sB0}')
    AC2, PK = 16, 32
    def fin(u):
        ac = AC2+8*(u % 2); pk = PK+4*(u % 2); sr = 's42' if u < 5 else 's43'
        return [f'v_cvt_pk_bf16_f32 v{pk+i}, v{ac+2*i}, v{ac+2*i+1}' for i in range(4)] + [f'buffer_store_dwordx4 {v(pk,4)}, {vL16}, {sWS}, {sr} offen sc1', f's_add_u32 {sr}, {sr}, {5*BS}']
    for u in range(10):
        ac = AC2+8*(u % 2); pend = fin(u-1) if u else []
        n = 0
        for kp in range(6):
            if u == 0: e(f's_waitcnt lgkmcnt({10-2*kp})')
            for tt in range(2):
                e(mf32(ac+4*tt, v(VF+8*kp+4*tt, 4), U.reg(('o', u, kp//2), 4*(kp % 2), 4), None if kp == 0 else ac+4*tt)); n += 1
                if n >= 7 and pend: e(pend.pop(0))
        for p in pend: e(p)
    for p in fin(9): e(p)
    MF, AC, RS, AD = 16, 56, 68, 92
    order = [('v', t, k) for k in range(10) for t in range(3)]
    ring = Ring(e, U, order, RS, 3)
    e(f's_lshl_b32 s40, {sXQ}, 15\ns_add_u32 {sM[0]}, {sCR}, s40\ns_add_u32 {sM[1]}, {sM[0]}, 4096\ns_add_u32 {sM[2]}, {sM[0]}, {BS}')
    e(f's_lshl_b32 s40, {sXQ}, 8\ns_add_u32 {sFR}, {sCR}, s40\ns_add_u32 {sFR}, {sFR}, {B_FL*BS}\ns_mov_b32 s34, 0')
    ring.prime()
    for r in list(range(AC, AC+12)) + list(range(AD, AD+40)): e(f'v_mov_b32 v{r}, 0')
    e('s_waitcnt vmcnt(0)\ns_barrier')
    l = e.lab('nf')
    e(f's_cmp_lg_u32 {sW}, 0\ns_cbranch_scc1 {l}\ns_add_u32 s40, {sB0}, s51\ns_add_u32 s40, s40, {B_VF*BS}\ns_mov_b64 exec, 1\nbuffer_store_dword v12, v12, {sWS}, s40 offen sc1\ns_mov_b64 exec, -1\n{l}:')
    e(f's_cmp_lg_u32 {sFFN}, 0\ns_cbranch_scc1 L_VF_next')
    e.ts(5)
    e.poll('v12', sFR, 132)
    slow = crit_pass1(e, ring, MF, sM, [(AC+4*t, (lambda k, t=t: ('v', t, k))) for t in range(3)], 'v13', range(AC, AC+12))
    for t in range(3):
        d = AC+4*t
        e(f'v_permlane32_swap_b32 v{d}, v{d+1}\nv_permlane32_swap_b32 v{d+2}, v{d+3}')
    for t in range(3):
        d = AC+4*t
        e(f'v_add_f32 v{d}, v{d}, v{d+1}\nv_add_f32 v{d+2}, v{d+2}, v{d+3}\nv_cvt_pk_bf16_f32 v{d}, v{d}, v{d+2}')
        va = 'v8' if t == 1 else 'v7'; o = 512 if t == 2 else 0
        e(f'ds_write_b16 {va}, v{d} offset:{o}\nds_write_b16_d16_hi {va}, v{d} offset:{o+32}')
    e('s_waitcnt lgkmcnt(0)\ns_barrier')
    for k in range(3): e(f'ds_read_b128 {v(MF+4*k,4)}, {vL16} offset:{L_VM + k*1024}')
    e.ts(3)
    OT = 28
    def pairfin(ua, o):
        da, db = AD+4*ua, AD+4*ua+4
        L = [f'v_permlane32_swap_b32 v{da+r}, v{db+r}' for r in range(4)] + [f'v_add_f32 v{da+r}, v{da+r}, v{db+r}' for r in range(4)]
        L += [f'v_cvt_pk_bf16_f32 v{o}, v{da}, v{da+1}', f'v_cvt_pk_bf16_f32 v{o+1}, v{da+2}, v{da+3}', f'v_min_u32 v{o}, -2, v{o}', f'v_min_u32 v{o+1}, -2, v{o+1}']
        return L
    def grpfin(gi):
        o = OT+4*gi
        return [f'v_permlane16_swap_b32 v{o}, v{o+2}', f'v_permlane16_swap_b32 v{o+1}, v{o+3}', f'buffer_store_dwordx4 {v(o,4)}, v{9+gi}, {sWS}, {sCR} offen sc1']
    pend = []
    for pi in range(5):
        for k in range(3):
            if pi == 0: e(f's_waitcnt lgkmcnt({2-k})')
            for u in (2*pi, 2*pi+1):
                e(smf(AD+4*u, MF+4*k, U.reg(('o', u, k))))
                if (k, u % 2) != (0, 0):
                    for _ in range(3):
                        if pend: e(pend.pop(0))
        pend += ['s_nop 0']*0 + pairfin(2*pi, OT+2*pi)
        if pi in (1, 3): pend += grpfin(pi//2)
    for p in pend: e(p)
    e(f'buffer_store_dwordx2 {v(OT+8,2)}, v11, {sWS}, {sCR} offen sc1')
    e.ts(4)
    e('L_VF_next:')
    e.tsflush(6, 130)
    e(f's_add_u32 {sS}, {sS}, 2\ns_cmp_lt_u32 {sS}, {e.o["nseg"]}\ns_cbranch_scc1 L_VF_loop\ns_branch L_end')
    slow()

def role_qk(e):
    keys_l = [('k', 1, k) for k in range(10)] + [('q', 2, k) for k in (1, 4, 7)]
    keys_r = [(m, t, k) for m in 'qk' for t in range(3) for k in range(10) if (m, t, k) not in keys_l]
    U = Units(keys_r, keys_l)
    sSTR, sWB, sSTP = 's30', 's31', 's32'
    sCR, sCR2, sB0, sX, sM = 's35', 's36', 's37', 's39', ('s46', 's47', 's48')
    sFR, sPT, sPTc, sLead, sC = 's50', 's51', 's52', 's53', 's54'
    mN8, mMM, m40 = 's[56:57]', 's[58:59]', 's[60:61]'
    L_SM, L_ST = L_MISC, L_MISC + 5120 + 1024
    e('L_QK:')
    e.srd(8, 2, 7864320); e.srd(12, 3, 7864320)
    e(f's_lshl_b32 {sU}, {sXQ}, 3\ns_add_u32 {sU}, {sU}, {sJ}\ns_mov_b32 {sSTR}, 12288\ns_mul_i32 {sWB}, {sU}, 384\ns_lshl_b32 {sSTP}, {sSTR}, 5')
    e(f's_mov_b32 s56, 0x00ff00ff\ns_mov_b32 s57, 0x00ff00ff\ns_mov_b32 s58, 0\ns_mov_b32 s59, 0x00ff00ff\ns_mov_b32 s60, -1\ns_mov_b32 s61, 0xff\ns_mov_b32 {sC}, {CSC}')
    e(f's_lshl_b32 s40, {sU}, 2\ns_add_u32 s40, s40, {sW}\ns_cmp_eq_u32 s40, 3\ns_cselect_b32 {sLead}, 1, 0')
    common_wsetup(e)
    VO1, VR1 = 16, 19
    setup_colchunk(e, VO1, VR1, sSTR)
    cq = col_chunks(e, sA, VO1, VR1, sWB, sSTP, lambda t, k: ('q', t, k))
    ck = col_chunks(e, sB, VO1, VR1, sWB, sSTP, lambda t, k: ('k', t, k))
    chunks = [c for p in zip(cq, ck) for c in p]
    e(f'v_and_b32 v20, 15, v1\nv_lshrrev_b32 v21, 4, v1\nv_and_b32 v22, 1, v21\nv_lshrrev_b32 v23, 1, v21')
    e(f'v_mov_b32 v4, 0x4444\nv_mov_b32 v10, 0xeeee\nv_cmp_lt_u32 vcc, 7, v20\nv_cndmask_b32 v4, v4, v10, vcc')
    e(f'''s_mul_i32 s40, {sW}, 1280
    s_add_u32 s40, s40, {L_SM}
    v_lshl_add_u32 v6, v20, 4, s40
    v_mul_u32_u24 v5, 640, v22
    v_lshl_add_u32 v5, v23, 8, v5
    v_add_u32 v5, v5, v6
    v_lshl_add_u32 v6, v22, 3, v6
    v_add_u32 v6, 512, v6
    v_lshlrev_b32 v7, 2, v1
    s_lshr_b32 s41, {sW}, 1
    s_lshl_b32 s40, s41, 10
    s_add_u32 s40, s40, {L_ST + 3*1024 + 128}
    v_lshl_add_u32 v8, v20, 2, s40
    v_lshl_add_u32 v8, v23, 6, v8
    v_lshl_add_u32 v8, v22, 9, v8
    s_lshl_b32 s40, s41, 4
    v_add_u32 v10, s40, v20
    v_lshlrev_b32 v11, 2, v21
    v_sub_u32 v10, v10, v11
    v_lshl_add_u32 v11, v20, 4, v11
    v_mov_b32 v12, 0''')
    e(f'''s_mul_i32 s41, s41, 40
    s_add_u32 s40, s41, {sU}
    s_lshr_b32 s42, s40, 3
    s_lshl_b32 s42, s42, 14
    s_and_b32 s40, s40, 7
    s_lshl_b32 s40, s40, 10
    s_add_u32 {sPTc}, s42, s40
    s_lshr_b32 s40, {sU}, 2
    s_add_u32 s40, s40, s41
    s_add_u32 s40, s40, 32
    s_lshr_b32 s42, s40, 3
    s_lshl_b32 s42, s42, 14
    s_and_b32 s40, s40, 7
    s_lshl_b32 s40, s40, 10
    s_add_u32 s42, s42, s40
    s_and_b32 s40, {sU}, 3
    s_lshl_b32 s40, s40, 8
    s_add_u32 s42, s42, s40
    s_sub_u32 s42, s42, {sPTc}
    v_add_u32 v11, s42, v11
    s_add_u32 {sPTc}, {sPTc}, {B_PT*BS}''')
    e(f'''s_lshr_b32 s40, {sU}, 3
    s_lshl_b32 s40, s40, 10
    s_and_b32 s41, {sU}, 1
    s_lshl_b32 s41, s41, 9
    s_add_u32 s40, s40, s41
    s_bfe_u32 s41, {sU}, 0x20001
    s_lshl_b32 s41, s41, 7
    s_add_u32 s40, s40, s41
    s_add_u32 s40, s40, {B_P*BS - 512}
    v_add_u32 v13, s40, {vL16}
    s_lshl_b32 s40, {sU}, 9
    s_add_u32 s40, s40, 4096
    s_lshr_b32 s41, s40, 13
    s_lshl_b32 s41, s41, 14
    s_and_b32 s40, s40, 8191
    s_add_u32 s40, s40, s41
    s_add_u32 s40, s40, {B_P*BS}
    v_add_u32 v9, s40, {vL16}
    v_cmp_gt_u32 vcc, 32, v1
    v_cndmask_b32 v9, v13, v9, vcc''')
    e('''v_lshlrev_b32 v13, 2, v21
    v_sub_u32 v13, v20, v13
    v_mov_b32 v24, 0x3f80
    v_mov_b32 v25, 0x3f800000
    v_cmp_eq_u32 vcc, 0, v13
    v_cndmask_b32 v14, 0, v24, vcc
    v_cmp_eq_u32 vcc, 1, v13
    v_cndmask_b32 v14, v14, v25, vcc
    v_cmp_eq_u32 vcc, 2, v13
    v_cndmask_b32 v15, 0, v24, vcc
    v_cmp_eq_u32 vcc, 3, v13
    v_cndmask_b32 v15, v15, v25, vcc''')
    def clear_p(so):
        for r in range(128, 132): e(f'v_mov_b32 v{r}, -1')
        e(f's_mul_i32 s40, {sW}, {3*BS}\ns_add_u32 s40, s40, {so}\ns_mov_b64 exec, {m40}\nbuffer_store_dwordx4 v[128:131], v9, {sWS}, s40 offen sc1\ns_mov_b64 exec, -1')
    def mid():
        l = e.lab('nl')
        e(f's_waitcnt lgkmcnt(0)\ns_lshl_b32 s43, {sSIDE}, 13')
        clear_p('s43')
        e(f's_cmp_lg_u32 {sU}, 0\ns_cbranch_scc1 {l}\nv_lshlrev_b32 v30, 20, v1\ns_lshl_b32 s40, {sW}, 8\ns_add_u32 s40, s40, s43\ns_add_u32 s40, s40, {B_FL*BS + 1024}')
        e(f's_mov_b32 exec_hi, 3\nbuffer_store_dword v128, v30, {sWS}, s40 offen sc1\ns_mov_b32 exec_hi, -1\n{l}:')
    load_weights(e, U, chunks, mid)
    for r in range(40, 44): e(f'v_mov_b32 v{r}, 0')
    for t in range(5): e(f'ds_write_b128 {vL16}, v[40:43] offset:{L_ST + t*1024}')
    l = e.lab('na'); e(f's_cmp_lg_u32 {sW}, 0\ns_cbranch_scc1 {l}'); e.arrive(vt=30); e(f'{l}:')
    e.wait_start(vt=30)
    e(f's_mov_b32 {sS}, {sSIDE}\ns_mul_i32 {sX}, {sS}, 40960\ns_add_u32 {sX}, {sX}, {XN}')
    xdma(e, 0, 20, sX)
    e('s_waitcnt vmcnt(0) lgkmcnt(0)\ns_barrier')
    e('L_QK_loop:')
    e.ts(0)
    e.crit_off(sCR); e.crit_off(sCR2, 2); e.bulk_off(sB0)
    e(f's_add_u32 {sX}, {sX}, 81920\ns_add_u32 {sPT}, {sB0}, {sPTc}')
    clear_p(sCR2)
    e(f'buffer_store_dwordx4 v[128:131], {vL16}, {sWS}, {sPT} offen sc1\nbuffer_store_dword v128, v11, {sWS}, {sPT} offen sc1')
    AC, XB, ST = 40, 88, 112
    Q = lambda tt: 16+6*tt
    Kt = lambda tt: 28+6*tt
    tiles = [(AC+8*(3*mi+t), (lambda k, m=m, t=t: (m, t, k))) for mi, m in enumerate('qk') for t in range(3)]
    def hk(k0, k1):
        def f(): e('s_barrier'); xdma(e, k0, k1, sX)
        return f
    tok_stage1(e, U, tiles, XB, ST, {5: hk(0, 6), 11: hk(6, 12), 15: hk(12, 16), 19: hk(16, 20)})
    for mi in range(2):
        for t in range(3):
            for tt in range(2):
                r = AC+8*(3*mi+t)+4*tt; d = (Kt if mi else Q)(tt)+2*t
                e(f'v_cvt_pk_bf16_f32 v{d}, v{r}, v{r+1}\nv_cvt_pk_bf16_f32 v{d+1}, v{r+2}, v{r+3}')
    tt3 = ((0, 0), (0, 1), (1, 1))
    for i, (tk, tq) in enumerate(tt3): e(mf32(40+4*i, v(Kt(tk), 4), v(Q(tq), 4)))
    MF, AD, RS, TP = 40, 80, 104, 128
    order = [kk for k in range(10) for kk in (('q', 0, k), ('k', 0, k), ('q', 1, k), ('k', 1, k))] + [kk for k in range(10) for kk in (('q', 2, k), ('k', 2, k))]
    ring = Ring(e, U, order, RS, 3)
    e(f's_lshl_b32 s40, {sXQ}, 15\ns_add_u32 {sM[0]}, {sCR}, s40\ns_add_u32 {sM[1]}, {sM[0]}, 4096\ns_add_u32 {sM[2]}, {sM[0]}, {BS}')
    for i, (tk, tq) in enumerate(tt3): e(mf16(40+4*i, v(Kt(tk)+4, 2), v(Q(tq)+4, 2), 40+4*i))
    e(f's_lshl_b32 s40, {sXQ}, 8\ns_add_u32 {sFR}, {sCR}, s40\ns_add_u32 {sFR}, {sFR}, {B_FL*BS}\ns_mov_b32 s34, 0')
    for r in range(AD, AD+24): e(f'v_mov_b32 v{r}, 0')
    for i in range(3):
        for r in range(4): e(f'ds_add_f32 v7, v{40+4*i+r} offset:{L_ST + i*1024 + r*256}')
    ring.prime()
    e('s_waitcnt vmcnt(0)')
    e.ts(5)
    e.poll('v12', sFR, 132)
    p1 = [(AD, lambda k: ('q', 0, k)), (AD+4, lambda k: ('k', 0, k)), (AD+8, lambda k: ('q', 1, k)), (AD+12, lambda k: ('k', 1, k))]
    slow = crit_pass1(e, ring, MF, sM, p1, 'v13', range(AD, AD+16))
    def flagQ(cond):
        l = e.lab('nf')
        e(f's_lshl_b32 s40, s34, 1\ns_or_b32 s40, s40, {sLead}\ns_cmp_lg_u32 s40, {1 + 2*cond}\ns_cbranch_scc1 {l}')
        e(f'v_lshlrev_b32 v135, 8, v1\ns_add_u32 s40, {sCR}, {B_FL*BS + 1024}\ns_mov_b64 exec, 15\nbuffer_store_dword v12, v135, {sWS}, s40 offen sc1\ns_mov_b64 exec, -1\n{l}:')
    def pairA(p):
        q, k = AD+8*p, AD+8*p+4
        return [f'v_permlane32_swap_b32 v{q+r}, v{k+r}' for r in range(4)] + [f'v_add_f32 v{q+r}, v{q+r}, v{k+r}' for r in range(4)] + \
               [f'v_cvt_pk_bf16_f32 v{q}, v{q}, v{q+1}', f'v_cvt_pk_bf16_f32 v{q+1}, v{q+2}, v{q+3}']
    def pairT(p): return mf16(AD+8*p+4, v(AD+8*p, 2), 'v[14:15]')
    def pairB(p):
        k = AD+8*p+4
        return [f'v_cvt_pk_bf16_f32 v{TP+2*p}, v{k}, v{k+1}', f'v_cvt_pk_bf16_f32 v{TP+2*p+1}, v{k+2}, v{k+3}']
    SM, S0, S1 = AD, AD+4, AD+8
    sched = {}
    va = pairA(0) + pairA(1)
    for i in range(4, 14): sched[i] = [va.pop(0), va.pop(0)]
    sched[9].append(pairT(0)); sched[14] = [pairT(1)] + pairB(0)
    sched[18] = pairB(1)
    lq = e.o['leadQ']
    i = 0
    for k in range(10):
        for (D, kk) in ((AD+16, ('q', 2, k)), (AD+20, ('k', 2, k))):
            ring.op(D, MF+4*k, kk)
            for x in sched.get(i, []): e(x)
            if lq == i: flagQ(0)
            i += 1
    e(mf32(SM, v(TP, 4), v(TP, 4))); e(mf32(S0, v(Kt(0), 4), v(TP, 4))); e(mf32(S1, v(Kt(1), 4), v(TP, 4)))
    for x in pairA(2): e(x)
    e(pairT(2))
    if lq == 20: flagQ(0)
    for x in pairB(2): e(x)
    e(mf16(S0, v(Kt(0)+4, 2), v(TP+4, 2), S0)); e(mf16(S1, v(Kt(1)+4, 2), v(TP+4, 2), S1)); e(mf16(SM, v(TP+4, 2), v(TP+4, 2), SM))
    e(f's_mov_b64 exec, {mN8}')
    for p in range(2): e(f'ds_write2_b64 v5, {v(S0+2*p,2)}, {v(S1+2*p,2)} offset0:{16*p} offset1:{16*p+1}')
    e(f's_mov_b64 exec, {mMM}\nds_write2_b64 v6, {v(SM,2)}, {v(SM+2,2)} offset0:0 offset1:80\ns_mov_b64 exec, -1')
    if lq == 21: flagQ(0)
    e('s_waitcnt lgkmcnt(0)\ns_barrier')
    if lq == 22: flagQ(0)
    e.ts(3)
    l = e.lab('nw0'); e(f's_cmp_lg_u32 {sW}, 0\ns_cbranch_scc1 {l}')
    PB = 48
    for w in range(4):
        for u in range(2): e(f'ds_read_b128 {v(PB+8*w+4*u,4)}, {vL16} offset:{L_SM + w*1280 + u*640}')
    e(f'v_mov_b32 v40, 0xff800000\ns_add_u32 s41, {sCR}, {3*BS}\ns_add_u32 s42, {sCR}, {6*BS}\ns_add_u32 s43, {sCR}, {9*BS}')
    e('s_waitcnt lgkmcnt(4)')
    for i in range(0, 8, 2): e(f'v_pk_add_f32 {v(PB+i,2)}, {v(PB+i,2)}, {v(PB+8+i,2)}')
    e('s_waitcnt lgkmcnt(0)')
    for i in range(0, 8, 2): e(f'v_pk_add_f32 {v(PB+16+i,2)}, {v(PB+16+i,2)}, {v(PB+24+i,2)}')
    for i in range(0, 8, 2): e(f'v_pk_add_f32 {v(PB+i,2)}, {v(PB+i,2)}, {v(PB+16+i,2)}')
    def softmax(x0, n, m, t, mask, ror8):
        e(f'v_max3_f32 v{m}, v{x0}, v{x0+1}, v{x0+2}')
        i = 3
        while i < n:
            if i+1 < n: e(f'v_max3_f32 v{m}, v{m}, v{x0+i}, v{x0+i+1}'); i += 2
            else: e(f'v_max_f32 v{m}, v{m}, v{x0+i}'); i += 1
        if mask: e(f'v_cndmask_b32 v{m}, v40, v{m}, {mask}')
        if ror8: e(f'v_max_f32_dpp v{m}, v{m}, v{m} row_ror:8 row_mask:0xf bank_mask:0xf')
        xsum(e, m, t, 'v_max_f32')
        e(f'v_mul_f32 v{m}, {sC}, v{m}')
        for i in range(n): e(f'v_fma_f32 v{x0+i}, v{x0+i}, {sC}, -v{m}')
        for i in range(n): e(f'v_exp_f32 v{x0+i}, v{x0+i}')
        e(f'v_add_f32 v{m}, v{x0}, v{x0+1}\nv_add_f32 v{t}, v{x0+2}, v{x0+3}')
        for i in range(4, n, 2): e(f'v_add_f32 v{m}, v{m}, v{x0+i}\nv_add_f32 v{t}, v{t}, v{x0+i+1}')
        e(f'v_add_f32 v{m}, v{m}, v{t}')
        if mask: e(f'v_cndmask_b32 v{m}, 0, v{m}, {mask}')
        if ror8: e(f'v_add_f32_dpp v{m}, v{m}, v{m} row_ror:8 row_mask:0xf bank_mask:0xf')
        xsum(e, m, t)
        e(f'v_rcp_f32 v{m}, v{m}')
        for i in range(n): e(f'v_mul_f32 v{x0+i}, v{x0+i}, v{m}')
    softmax(PB, 8, 41, 42, m40, True)
    for i in range(4): e(f'v_cvt_pk_bf16_f32 v{44+i}, v{PB+2*i}, v{PB+2*i+1}')
    for i in range(4): e(f'v_min_u32 v{44+i}, -2, v{44+i}')
    e(f's_mov_b64 exec, {m40}')
    for so in (sCR, 's41', 's42', 's43'): e(f'buffer_store_dwordx4 v[44:47], v9, {sWS}, {so} offen sc1')
    e('s_mov_b64 exec, -1')
    e(f'{l}:')
    e.ts(4)
    for tq in range(2): e(mf32(64+4*tq, v(TP, 4), v(Q(tq), 4)))
    for tq in range(2): e(mf16(64+4*tq, v(TP+4, 2), v(Q(tq)+4, 2), 64+4*tq))
    for tq in range(2):
        for r in range(4): e(f'ds_add_f32 v7, v{64+4*tq+r} offset:{L_ST + (3+tq)*1024 + r*256}')
    e('s_waitcnt lgkmcnt(0)\ns_barrier')
    if lq >= 23: flagQ(0)
    flagQ(1)
    l = e.lab('nta')
    e(f's_add_u32 s40, {sW}, 1\ns_bitcmp1_b32 s40, 1\ns_cbranch_scc0 {l}')
    e(f's_lshr_b32 s40, {sW}, 1\ns_lshl_b32 s40, s40, 10\nv_add_u32 v40, s40, v7\nv_add_u32 v41, s40, v40\nv_add_u32 v42, s40, {vL16}\nv_add_u32 v43, s40, v42')
    X = 48; so = L_ST//256
    assert L_ST % 256 == 0 and so+3 < 256
    e(f'ds_read2st64_b32 {v(X,2)}, v40 offset0:{so} offset1:{so+1}\nds_read2st64_b32 {v(X+2,2)}, v40 offset0:{so+2} offset1:{so+3}')
    e(f'ds_read2st64_b32 {v(X+4,2)}, v41 offset0:{so} offset1:{so+1}\nds_read2st64_b32 {v(X+6,2)}, v41 offset0:{so+2} offset1:{so+3}')
    e(f'ds_read2st64_b32 {v(X+8,2)}, v8 offset0:0 offset1:1')
    for r in range(60, 64): e(f'v_mov_b32 v{r}, 0')
    e(f'v_mov_b32 v44, {f2u(-1e9 * 192**0.5)}')
    e(f'ds_write_b128 v42, v[60:63] offset:{L_ST}\nds_write_b128 v43, v[60:63] offset:{L_ST}\nds_write_b128 v42, v[60:63] offset:{L_ST+3072}')
    e('s_waitcnt lgkmcnt(3)')
    for i in range(8):
        e(f'v_cmp_le_i32 vcc, {(i//4)*16 + i % 4}, v10\nv_cndmask_b32 v{X+i}, v44, v{X+i}, vcc')
    softmax(X, 10, 45, 46, None, False)
    for i in range(5): e(f'v_cvt_pk_bf16_f32 v{64+i}, v{X+2*i}, v{X+2*i+1}')
    for i in range(5): e(f'v_min_u32 v{64+i}, -2, v{64+i}')
    e(f'buffer_store_dwordx4 v[64:67], {vL16}, {sWS}, {sPT} offen sc1\nbuffer_store_dword v68, v11, {sWS}, {sPT} offen sc1')
    e(f'{l}:')
    e.ts(6)
    e.tsflush(7, 72)
    e(f's_add_u32 {sS}, {sS}, 2\ns_cmp_lt_u32 {sS}, {e.o["nseg"]}\ns_cbranch_scc1 L_QK_loop\ns_branch L_end')
    slow()

def role_r(e):
    sCR, sCN, sB0, sTB = 's35', 's36', 's37', 's38'
    sP = ['s46', 's47', 's48', 's49', 's50']; sV = ['s51', 's52']; sFQ, sLead, sTC, sPG, sXO = 's53', 's54', 's55', 's56', 's57'
    sN = ['s58', 's59', 's60', 's61']
    e(f'L_R:\ns_cmp_lg_u32 {sW}, 0\ns_cbranch_scc1 L_end')
    e.srd(8, 0, 2621440); e.srd(12, 10, 2621440); e.srd(64, 1, 10240)
    e(f's_mul_i32 {sU}, {sXQ}, 10\ns_add_u32 {sU}, {sU}, {sJ}\ns_sub_u32 {sU}, {sU}, 16\ns_cmp_eq_u32 {sU}, 0\ns_cselect_b32 {sLead}, 15, 0')
    e(f's_cmp_ge_u32 {sU}, 20\ns_cselect_b32 {sPG}, 1, 0\ns_mul_i32 s40, {sPG}, 20\ns_sub_u32 s40, {sU}, s40\ns_mul_i32 {sTC}, s40, {5*BS}\ns_lshl_b32 s40, {sPG}, 21\ns_add_u32 {sTC}, {sTC}, s40\ns_lshl_b32 {sPG}, {sPG}, 13')
    e(f'''v_lshlrev_b32 {vL16}, 4, v1
    v_and_b32 v20, 15, v1
    v_lshrrev_b32 v21, 4, v1
    v_mov_b32 v4, 0x4444
    v_mov_b32 v10, 0xeeee
    v_cmp_lt_u32 vcc, 7, v20
    v_cndmask_b32 v4, v4, v10, vcc
    v_and_b32 v10, 7, v1
    v_lshlrev_b32 v10, 4, v10
    v_lshl_add_u32 v10, v21, 7, v10
    v_bfe_u32 v11, v1, 3, 1
    v_lshl_add_u32 v5, v11, 3, v10
    v_and_b32 v10, 1, v21
    v_lshlrev_b32 v10, 2, v10
    v_lshrrev_b32 v11, 1, v21
    v_add_u32 v10, v10, v11
    v_and_b32 v11, 1, v20
    v_lshl_add_u32 v10, v11, 1, v10
    v_mov_b32 v7, 0x05040100
    v_mov_b32 v22, 0x03020706
    v_cmp_eq_u32 vcc, 1, v11
    v_cndmask_b32 v7, v7, v22, vcc
    v_mul_u32_u24 v23, 1280, v10
    v_and_b32 v11, 14, v20
    v_lshl_add_u32 v23, v11, 1, v23
    s_lshl_b32 s40, {sU}, 5
    v_add_u32 v23, s40, v23
    v_bfe_u32 v11, v20, 1, 1
    v_lshl_add_u32 v10, v11, 3, v10
    v_lshlrev_b32 v10, 4, v10
    v_lshrrev_b32 v11, 2, v20
    v_lshl_add_u32 v10, v11, 2, v10
    s_lshl_b32 s41, {sU}, 8
    s_lshr_b32 s42, s41, 13
    s_lshl_b32 s42, s42, 14
    s_and_b32 s41, s41, 8191
    s_add_u32 s41, s41, s42
    v_add_u32 v6, s41, v10
    v_mul_u32_u24 v8, 1280, v20
    v_lshl_add_u32 v8, v21, 3, v8
    v_add_u32 v8, s40, v8
    v_min_u32 v9, 39, v1
    v_lshlrev_b32 v9, 7, v9
    v_lshlrev_b32 v3, 8, v1
    v_mov_b32 v12, 0
    v_mov_b32 v14, -1
    v_lshlrev_b32 v13, 2, v21
    v_sub_u32 v13, v20, v13
    v_mov_b32 v24, 0x3f80
    v_mov_b32 v25, 0x3f800000
    v_cmp_eq_u32 vcc, 0, v13
    v_cndmask_b32 v18, 0, v24, vcc
    v_cmp_eq_u32 vcc, 1, v13
    v_cndmask_b32 v18, v18, v25, vcc
    v_cmp_eq_u32 vcc, 2, v13
    v_cndmask_b32 v19, 0, v24, vcc
    v_cmp_eq_u32 vcc, 3, v13
    v_cndmask_b32 v19, v19, v25, vcc
    v_mov_b32 v16, 0
    v_mov_b32 v17, 0
    v_mov_b32 v20, 0
    v_mov_b32 v21, 0
    s_waitcnt lgkmcnt(0)
    buffer_load_dword v15, v23, s[64:67], 0 offen''')
    def reps(base):
        for r in range(4): e(f's_add_u32 {sN[r]}, {base}, {2*BS*r}')
    def pub(reg):
        for r in range(4): e(f'buffer_store_dword {reg}, v6, {sWS}, {sN[r]} offen sc1')
    e(f's_lshl_b32 s43, {sSIDE}, 13'); reps('s43'); pub('v14')
    l = e.lab('nl'); l2 = e.lab('nc')
    e(f's_mov_b32 s45, 1\ns_cmp_lg_u32 {sU}, 0\ns_cbranch_scc1 {l}\nv_lshlrev_b32 v30, 20, v1\ns_add_u32 s40, s43, {B_FL*BS}\ns_mov_b32 exec_hi, 3')
    for r in range(4): e(f'buffer_store_dword v14, v30, {sWS}, s40 offen offset:{256*r} sc1')
    e(f's_mov_b32 exec_hi, -1\ns_cmp_lg_u32 {sSIDE}, 0\ns_cbranch_scc1 {l}')
    e(f's_mov_b32 s40, {B_CAL*BS}\ns_mov_b32 s41, {B_CAL*BS + 8192}')
    for o in range(0, 4096, 1024):
        e(f'buffer_store_dwordx4 v[16:19], {vL16}, {sWS}, s40 offen offset:{o} sc1\nbuffer_store_dwordx4 v[16:19], {vL16}, {sWS}, s41 offen offset:{o} sc1')
    e('s_waitcnt vmcnt(0)\ns_mov_b32 s46, -1\ns_mov_b32 s47, -1')
    for k in range(8):
        for b in range(2):
            e(f's_memtime s[48:49]\ns_waitcnt lgkmcnt(0)\nbuffer_load_dword v31, v12, {sWS}, s{40+b} offen offset:{k*512 + (k&1)*128} sc1\ns_waitcnt vmcnt(0)\ns_memtime s[50:51]\ns_waitcnt lgkmcnt(0)')
            e(f's_sub_u32 s50, s50, s48\ns_min_u32 s{46+b}, s{46+b}, s50')
    e(f's_cmp_lt_u32 s47, s46\ns_cselect_b32 s45, 0x10001, 1')
    e(f'{l}:\ns_waitcnt vmcnt(0)')
    e.arrive(extra='s45', vt=30)
    e.wait_start(vt=30)
    def flagR(msk):
        e(f's_add_u32 s40, {sCN}, {B_FL*BS}\ns_mov_b32 exec_lo, {msk}\ns_mov_b32 exec_hi, 0\nbuffer_store_dword v12, v3, {sWS}, s40 offen sc1\ns_mov_b64 exec, -1')
    e(f's_cmp_eq_u32 {sSIDE}, 0\ns_cbranch_scc1 {l2}\ns_mov_b32 {sS}, 0')
    e.crit_off(sCN, 2); reps(sCN); pub('v14')
    e('s_waitcnt vmcnt(0)\nv_min_u32 v15, -2, v15')
    e.crit_off(sCN, 0); reps(sCN); pub('v15')
    e('s_waitcnt vmcnt(0)'); flagR(sLead)
    e(f'{l2}:\ns_mov_b32 {sS}, {sSIDE}')
    e('L_R_loop:')
    e.ts(0)
    e.crit_off(sCN, 3); reps(sCN); pub('v14')
    e.crit_off(sCR); e.crit_off(sCN, 1); reps(sCN); e.bulk_off(sB0)
    e(f's_xor_b32 {sTB}, {sB0}, {sPG}\ns_add_u32 {sTB}, {sTB}, {sTC}\ns_add_u32 s42, {sB0}, {B_VF*BS}')
    e(f's_mul_i32 s40, {sXQ}, {3*BS}\ns_add_u32 s40, s40, {sCR}')
    for g in range(5): e(f's_add_u32 {sP[g]}, s40, {(B_P + g//2)*BS + (g % 2)*4096}')
    e(f's_lshl_b32 s40, {sU}, 14\ns_add_u32 s40, s40, {sCR}\ns_add_u32 {sV[0]}, s40, {B_VOM*BS}\ns_add_u32 {sV[1]}, {sV[0]}, 4096')
    e(f's_lshl_b32 s40, {sXQ}, 8\ns_add_u32 {sFQ}, {sCR}, s40\ns_add_u32 {sFQ}, {sFQ}, {B_FL*BS + 1024}\ns_mul_i32 {sXO}, {sS}, 40960\ns_add_u32 s43, {sXO}, 20480')
    e(f'buffer_load_dwordx2 v[36:37], v8, {sA}, {sXO} offen\nbuffer_load_dwordx2 v[38:39], v8, {sA}, s43 offen')
    e.poll('v9', 's42', 252, D=1)
    e.ts(7)
    for k in range(40):
        if k % 4 == 0: e(f's_add_u32 s40, {sTB}, {(k//8)*BS + ((k//4) % 2)*4096}')
        e(f'buffer_load_dwordx4 {a(4*k,4)}, {vL16}, {sWS}, s40 offen offset:{(k%4)*1024} sc1')
    AC, AM, AT, BM = 24, 40, 56, 120
    e('s_mov_b32 s34, 0\ns_waitcnt vmcnt(0)')
    e.ts(5)
    e.poll('v12', sFQ, 252)
    e.ts(1)
    rt = e.lab('rt'); bad = e.lab('bad')
    e(f'{rt}:')
    for k in range(8): e(f'buffer_load_dwordx2 {v(AM+2*k,2)}, v5, {sWS}, {sP[0]} offen offset:{k*512} sc1')
    for k in range(16): e(f'buffer_load_dwordx4 {v(AT+4*k,4)}, {vL16}, {sWS}, {sP[1+k//4]} offen offset:{(k%4)*1024} sc1')
    for k in range(8): e(f'buffer_load_dwordx4 {v(BM+4*k,4)}, {vL16}, {sWS}, {sV[k//4]} offen offset:{(k%4)*1024} sc1')
    for r in range(AC, AC+4): e(f'v_mov_b32 v{r}, 0')
    e('v_mov_b32 v13, 0')
    extra = 0; rf = e.o['rflag']
    for i in range(32):
        if i < 8 and i % 2 == 0: continue
        e(f's_waitcnt vmcnt({31-i+extra})')
        if i == 1: e.ts(2)
        if i < 8: r = AM+2*(i-1)
        elif i < 24: r = AT+4*(i-8); e(smf(AC, r, a(8*(i-8), 8)))
        else:
            r = BM+4*(i-24)
            if i % 2: e(smf(AC, AM+4*((i-24)//2), v(r-4, 8)))
        e(f'v_max3_u32 v13, v13, v{r}, v{r+1}\nv_max3_u32 v13, v13, v{r+2}, v{r+3}')
        if i == rf or i == 31: e(f'v_cmp_eq_u32 vcc, -1, v13\ns_cbranch_vccnz {bad}')
        if i == rf:
            e(f's_cmp_eq_u32 s34, 0\ns_cselect_b32 s41, {sLead}, 0'); flagR('s41'); extra = 1
    e.ts(3)
    e(f'v_permlane32_swap_b32 v{AC}, v{AC+1}\nv_permlane32_swap_b32 v{AC+2}, v{AC+3}\nv_add_f32 v{AC}, v{AC}, v{AC+1}\nv_add_f32 v{AC+2}, v{AC+2}, v{AC+3}')
    e(f'v_cvt_pk_bf16_f32 v{AC}, v{AC}, v{AC+2}\nv_mov_b32_dpp v{AC+1}, v{AC} quad_perm:[1,0,3,2] row_mask:0xf bank_mask:0xf\nv_perm_b32 v{AC}, v{AC+1}, v{AC}, v7\nv_min_u32 v{AC}, -2, v{AC}')
    pub(f'v{AC}')
    if rf < 32: e(f's_cmp_eq_u32 s34, 1\ns_cselect_b32 s41, {sLead}, 0'); flagR('s41')
    else: flagR(sLead)
    e.ts(4)
    ro = e.lab('ro'); okO = e.lab('okO')
    AO = 28
    ringr = list(range(152, 252, 4)) + list(range(40, 120, 4)); NR = 44; ringr = ringr[:NR]
    e(f'{ro}:\ns_add_u32 s42, {sB0}, {B_PT*BS}')
    def ldp(n):
        j, tt = n//2, n % 2
        if tt == 0 and j % 4 == 0:
            o = (j//8)*BS + ((j//4) % 2)*4096
            e(f's_add_u32 s40, s42, {o}\ns_add_u32 s41, s42, {o + 5*BS}')
        e(f'buffer_load_dwordx4 {v(ringr[n % NR],4)}, {vL16}, {sWS}, {"s41" if tt else "s40"} offen offset:{(j%4)*1024} sc1')
    for n in range(NR): ldp(n)
    e('v_mov_b32 v13, 0')
    for k in range(8):
        for tt in range(2): e(mf32(AO+4*tt, a(128+4*k, 4), 'v[16:19]' if tt else 'v[18:21]', None if k == 0 else AO+4*tt))
    iss = NR
    for n in range(80):
        j, tt = n//2, n % 2; r = ringr[n % NR]
        e(f's_waitcnt vmcnt({iss-1-n})')
        e(mf32(AO+4*tt, a(4*j, 4) if j < 32 else v(BM+4*(j-32), 4), v(r, 4), AO+4*tt))
        e(f'v_max3_u32 v13, v13, v{r}, v{r+1}\nv_max3_u32 v13, v13, v{r+2}, v{r+3}')
        if iss < 80: ldp(iss); iss += 1
    e(f'v_cmp_eq_u32 vcc, -1, v13\ns_cbranch_vccz {okO}'); e.tmo(ro); e(f'{okO}:')
    for tt in range(2):
        for i in range(2):
            x = 36+2*tt+i; d = AO+4*tt+2*i
            e(f'v_lshlrev_b32 v40, 16, v{x}\nv_and_b32 v41, 0xffff0000, v{x}\nv_add_f32 v40, v40, v{d}\nv_add_f32 v41, v41, v{d+1}\nv_cvt_pk_bf16_f32 v{42+2*tt+i}, v40, v41')
    e(f's_add_u32 s43, {sXO}, 20480\nbuffer_store_dwordx2 v[42:43], v8, {sB}, {sXO} offen\nbuffer_store_dwordx2 v[44:45], v8, {sB}, s43 offen')
    e.ts(6)
    e.tsflush(8, 48)
    e(f's_add_u32 {sS}, {sS}, 2\ns_cmp_lt_u32 {sS}, {e.o["nseg"]}\ns_cbranch_scc1 L_R_loop\ns_branch L_end')
    e(f'{bad}:\ns_mov_b32 s34, 1\ns_waitcnt vmcnt(0)\ns_nop 7'); e.tmo(rt)

HEAD = open('cdna_kernels/' + NAME[:-7] + '.s.ref').read().split('; Override launch')[0]
def gen(aslist=False, **o):
    e = G(**o)
    e(f'''s_cmp_ge_u32 s2, 256
    s_cbranch_scc1 L_end
    s_load_dwordx2 s[4:5], s[0:1], 96
    s_load_dwordx2 s[16:17], s[0:1], 88
    v_and_b32 v1, 63, v0
    v_lshrrev_b32 v2, 6, v0
    s_and_b32 {sXQ}, s2, 3
    v_readfirstlane_b32 {sW}, v2
    s_bfe_u32 {sSIDE}, s2, 0x10002
    s_lshr_b32 {sJ}, s2, 3
    s_mov_b32 {sTO}, 0
    s_mov_b32 s18, 256
    s_mov_b32 s19, 0x20000
    s_mov_b32 s6, {252<<20}
    s_mov_b32 s7, 0x20000
    s_waitcnt lgkmcnt(0)
    s_add_u32 s4, s4, 0x3fffff
    s_addc_u32 s5, s5, 0
    s_and_b32 s4, s4, 0xffc00000
    s_cmp_lt_u32 {sJ}, 8
    s_cbranch_scc1 L_QK
    s_cmp_lt_u32 {sJ}, 16
    s_cbranch_scc1 L_VO
    s_cmp_lt_u32 {sJ}, 26
    s_cbranch_scc1 L_R
    s_cmp_lt_u32 {sJ}, 28
    s_cbranch_scc1 L_FFN''')
    role_ln(e); role_qk(e); role_vo(e); role_r(e)
    e(f'L_abort:\nv_mov_b32 v30, 4\nv_mov_b32 v31, 1\ns_mov_b64 exec, 1\nbuffer_atomic_add v31, v30, {sDBG}, 0 offen sc1\nL_end:\ns_endpgm')
    body, nn = hazard.run(e.L)
    launch = f'; @launch kernel={NAME} grid=(256,1,1) block=(256,1,1) lds=163840' if aslist else '; @launch grid=(256,1,1) block=(256,1,1) lds=163840'
    return HEAD + launch + '\n.amdgcn_target "amdgcn-amd-amdhsa--gfx950"\n.text\n' + kernel_head(NAME) + '\n'.join(body) + '\n' + kernel_desc(NAME, 512, 102, 256)

if __name__ == '__main__':
    o = dict(kv.split('=') for kv in sys.argv[2:]); o = {k: int(x) for k, x in o.items()}
    open(sys.argv[1], 'w').write(gen(**o))
```

```python
import re
REG = re.compile(r'\b([vas])(\d+)\b|\b([vas])\[(\d+):(\d+)\]|\b(vcc|exec|m0)(_lo|_hi)?\b')
TRANS = ('v_exp_f32', 'v_log_f32', 'v_rcp_f32', 'v_rsq_f32', 'v_sqrt_f32', 'v_sin_f32', 'v_cos_f32')
def regs(op):
    out = []
    for m in REG.finditer(op):
        if m.group(1): out.append((m.group(1), int(m.group(2))))
        elif m.group(3): out += [(m.group(3), i) for i in range(int(m.group(4)), int(m.group(5))+1)]
        else: out.append((m.group(6), 0))
    return out
def split_ops(rest):
    ops, d, cur = [], 0, ''
    for ch in rest:
        if ch == '[': d += 1
        if ch == ']': d -= 1
        if ch == ',' and d == 0: ops.append(cur.strip()); cur = ''
        else: cur += ch
    if cur.strip(): ops.append(cur.strip())
    return ops
class I: pass
def parse(line):
    t = line.split(';')[0].strip()
    p = t.split(None, 1); i = I(); i.op = p[0]; ops = split_ops(p[1]) if len(p) > 1 else []
    op = i.op; i.W = []; i.R = []; i.kind = 'other'; i.A = i.B = i.C = []
    i.dpp = ('quad_perm' in t or 'row_' in t.replace('row_mask', '') and any(k in t for k in ('row_ror', 'row_shr', 'row_shl', 'row_bcast', 'row_mirror', 'row_half_mirror', 'row_newbcast')))
    if op.startswith('v_mfma') or op.startswith('v_smfmac'):
        i.kind = 'mfma'; i.W = regs(ops[0]); i.A = regs(ops[1]); i.B = regs(ops[2])
        last = ops[3].split()[0]
        if op.startswith('v_smfmac'): i.C = list(i.W); i.B = i.B + regs(last)
        else: i.C = regs(last)
        i.R = i.A + i.B + i.C
        i.passes = 8 if '32x32' in op else 4
    elif op.startswith('v_'):
        i.kind = 'valu'
        rs = [regs(o) for o in ops]
        if op.startswith('v_cmp'): i.W = rs[0]; i.R = sum(rs[1:], [])
        elif op.startswith('v_permlane'): i.W = rs[0] + rs[1]; i.R = rs[0] + rs[1]
        elif op.startswith('v_add_co') or op.startswith('v_addc_co'): i.W = rs[0] + rs[1]; i.R = sum(rs[2:], [])
        else:
            i.W = rs[0]; i.R = sum(rs[1:], [])
            if op.startswith(('v_fmac', 'v_writelane')): i.R = i.R + rs[0]
            if op.startswith('v_cndmask') and len(ops) == 3: i.R.append(('vcc', 0))
    elif op.startswith('ds_'):
        i.kind = 'ds'; rs = [regs(o) for o in ops]
        if op.startswith(('ds_read', 'ds_bpermute', 'ds_permute', 'ds_swizzle')): i.W = rs[0]; i.R = sum(rs[1:], [])
        else: i.R = sum(rs, [])
    elif op.startswith(('buffer_', 'global_')):
        i.kind = 'vmem'; rs = [regs(o) for o in ops]
        i.lds = bool(re.search(r'\blds\b', t)) or '_lds_' in op
        if 'load' in op and not i.lds: i.W = rs[0]; i.R = sum(rs[1:], [])
        elif 'atomic' in op and 'sc0' in t: i.W = rs[0]; i.R = sum(rs, [])
        else: i.R = sum(rs, [])
        i.wide = ('store_dwordx4' in op or 'store_dwordx3' in op)
        if i.wide: i.data = rs[0] if op.startswith('buffer_') else rs[1]
    elif op.startswith('s_'):
        i.kind = 'salu'; rs = [regs(o) for o in ops]
        if op.startswith(('s_cmp', 's_cbranch', 's_branch', 's_waitcnt', 's_nop', 's_barrier', 's_endpgm', 's_sleep', 's_setprio', 's_bitcmp')): i.R = sum(rs, [])
        else: i.W = rs[0]; i.R = sum(rs[1:], [])
        i.ops = ops
    return i
def run(lines):
    out = []; t = 0
    st = {}
    snaps = {}
    BIG = -10**9
    mf = []
    def age(k):
        p = st.get(k, BIG); a = t - p - 1
        if k[0] in ('mf4', 'mfC4') and p in mf:
            n = len(mf) - 1 - mf.index(p)
            if n: a = max(a, 4*n + (t - mf[-1]) - 1)
        return a
    nins = 0
    for ln in lines:
        s = ln.strip()
        if '\n' in s or not s or s.startswith((';', '.')):
            out.append(ln); continue
        if s.endswith(':'):
            lab = s[:-1]
            if lab in snaps: mf.clear()
            for (tt, snap) in snaps.pop(lab, []):
                for k, tv in snap.items():
                    rel = t - (tt - tv)
                    if rel > st.get(k, BIG): st[k] = rel
            out.append(ln); continue
        i = parse(s); need = 0
        def req(k, n):
            nonlocal need
            need = max(need, n - age(k))
        vg = lambda L: [r for r in L if r[0] in 'va']
        sg = lambda L: [r for r in L if r[0] in ('s', 'vcc')]
        if i.kind == 'mfma':
            for r in vg(i.R): req(('valu', r), 2)
            for r in i.A + i.B:
                req(('mf4', r), 8); req(('mf8', r), 12)
            same = st.get('lastshape', {})
            for r in vg(i.C):
                for p, n in ((4, 6), (8, 10)):
                    if same.get(r) != (i.op, tuple(i.C)): req((f'mf{p}', r), n)
            if tuple(i.W) != tuple(i.C):
                for r in i.W: req(('mf4', r), 8); req(('mf8', r), 12)
            req(('valuexec',), 4)
        elif i.kind == 'valu':
            for r in vg(i.R + i.W): req(('mf4', r), 8); req(('mf8', r), 12)
            for r in vg(i.W): req(('mfC4', r), 3); req(('mfC8', r), 7); req(('wide', r), 2)
            if i.op not in TRANS:
                for r in vg(i.R): req(('trans', r), 1)
            if i.dpp or i.op.startswith('v_permlane'):
                for r in vg(i.R): req(('valu', r), 2)
            if i.op.startswith(('v_readlane', 'v_readfirstlane')):
                for r in vg(i.R): req(('valu', r), 1)
            for r in sg(i.R): req(('vsg', r), 4 if i.op.startswith(('v_readlane', 'v_writelane')) else 2)
        elif i.kind in ('ds', 'vmem'):
            for r in vg(i.R + i.W): req(('mf4', r), 8); req(('mf8', r), 12)
            for r in vg(i.W): req(('wide', r), 1); req(('mfC4', r), 3)
            for r in vg(i.R): req(('trans', r), 1)
            if i.kind == 'vmem':
                for r in sg(i.R): req(('vsg', r), 5)
                if i.lds: req(('m0',), 1)
        elif i.kind == 'salu':
            for r in sg(i.R): req(('vsg', r), 1)
            if i.op.startswith('s_cbranch_vcc'): req(('vsg', ('vcc', 0)), 0)
        while need > 0:
            n = min(need, 16); out.append(f'    s_nop {n-1}'); t += n; need -= n; nins += 1
        if i.kind == 'mfma':
            sh = dict(st.get('lastshape', {}))
            if i.passes == 4: mf.append(t); del mf[:-8]
            else: mf.clear()
            for r in i.W: st[(f'mf{i.passes}', r)] = t; sh[r] = (i.op, tuple(i.W))
            for r in vg(i.C): st[(f'mfC{i.passes}', r)] = t
            st['lastshape'] = sh
        elif i.kind == 'valu':
            for r in vg(i.W):
                st[('valu', r)] = t
                if i.op in TRANS: st[('trans', r)] = t
            for r in sg(i.W): st[('vsg', r)] = t
            if i.op.startswith('v_cmpx'): st[('valuexec',)] = t
        elif i.kind == 'vmem' and i.wide:
            for r in i.data: st[('wide', r)] = t
        elif i.kind == 'salu':
            if ('m0', 0) in i.W: st[('m0',)] = t
        out.append(ln)
        if i.op == 's_nop': t += int(i.ops[0], 0) + 1
        else: t += 1
        if i.op.startswith(('s_cbranch', 's_branch')):
            snaps.setdefault(i.ops[0], []).append((t, {k: v for k, v in st.items() if k != 'lastshape' and t - v < 24}))
            if i.op == 's_branch':
                st.clear(); st['lastshape'] = {}; mf.clear()
        if i.op == 's_endpgm': st.clear()
    return out, nins
```

```python
import sys
from asmlib import *
import hazard

NAME = 'parallel_sum__memory_aug_recurrent_mem_tr__dense_activation_silu__prompt_kernel'
BS = 16384
BULK = 36 << 20
XN = 164 << 20
DBGW = 170 << 20
B_MEM, B_P, B_FL, B_VOM, B_CAL = 0, 8, 20, 21, 62
B_PT, B_VF = 100, 110
L_X, L_MISC, L_W = 0, 40960, 57344
WPW = 26624
TMO = 1 << 17
NARR = 112
LOG2E = 1.4426950408889634
import struct
def f2u(x): return struct.unpack('<I', struct.pack('<f', x))[0]
CSC = f2u(LOG2E / 192 ** 0.5)

sWS, sA, sB, sDBG = 's[4:7]', 's[8:11]', 's[12:15]', 's[16:19]'
sXQ, sJ, sSIDE, sW, sU, sS, sTO, sC0 = 's20', 's21', 's22', 's23', 's25', 's26', 's27', 's28'

class G(A):
    def __init__(self, **o):
        super().__init__(); self.o = dict(leadQ=24, rflag=28, stamps=0, roles='LVFQR', nseg=64); self.o.update(o)
    def crit_off(self, dst, add=0, t0='s40', t1='s41'):
        e = self
        e(f's_add_u32 {t0}, {sS}, {add}\ns_lshr_b32 {t1}, {t0}, 2\ns_xor_b32 {t1}, {t1}, {t0}\ns_xor_b32 {t1}, {t1}, {sC0}\ns_and_b32 {t1}, {t1}, 1\ns_lshl_b32 {t1}, {t1}, 13')
        e(f's_lshr_b32 {t0}, {t0}, 1\ns_lshl_b32 {t0}, {t0}, 20\ns_or_b32 {dst}, {t0}, {t1}')
    def bulk_off(self, dst, add=0, t0='s40', t1='s41'):
        e = self
        e(f's_add_u32 {t0}, {sS}, {add}\ns_xor_b32 {t1}, {t0}, {sC0}\ns_and_b32 {t1}, {t1}, 1\ns_lshl_b32 {t1}, {t1}, 13')
        e(f's_lshr_b32 {t0}, {t0}, 1\ns_lshl_b32 {t0}, {t0}, 22\ns_add_u32 {t0}, {t0}, {BULK}\ns_or_b32 {dst}, {t0}, {t1}')
    def tmo(self, again):
        self(f's_add_u32 {sTO}, {sTO}, 1\ns_cmp_lt_u32 {sTO}, {TMO}\ns_cbranch_scc1 {again}\ns_branch L_abort')
    def srd(self, dst, slot, nbytes):
        self(f's_load_dwordx2 s[{dst}:{dst+1}], s[0:1], {slot*8}\ns_mov_b32 s{dst+2}, {nbytes}\ns_mov_b32 s{dst+3}, 0x20000')
    def arrive(self, extra=None, vt=2):
        e = self; l = e.lab('nla')
        x = "1" if extra is None else extra
        e(f'v_mov_b32 v{vt}, 0\nv_mov_b32 v{vt+1}, {x}')
        e(f's_mov_b64 exec, 1\nbuffer_atomic_add v{vt+1}, v{vt}, {sDBG}, 0 offen sc0 sc1\ns_waitcnt vmcnt(0)\nv_add_u32 v{vt+1}, {x}, v{vt+1}')
        e(f'v_readfirstlane_b32 s40, v{vt+1}\ns_and_b32 s40, s40, 0xffff\ns_cmp_lg_u32 s40, {NARR}\ns_cbranch_scc1 {l}')
        e(f'buffer_store_dword v{vt+1}, v{vt}, {sDBG}, 0 offen offset:128 sc1\n{l}:\ns_mov_b64 exec, -1')
    def wait_start(self, vt=2):
        e = self; lp = e.lab('ws'); dn = e.lab('wsd')
        e(f'v_mov_b32 v{vt}, 0\n{lp}:\nbuffer_load_dword v{vt+1}, v{vt}, {sDBG}, 0 offen offset:128 sc1\ns_waitcnt vmcnt(0)')
        e(f'v_readfirstlane_b32 s40, v{vt+1}\ns_cmp_lg_u32 s40, 0\ns_cbranch_scc1 {dn}\ns_sleep 4')
        e.tmo(lp)
        e(f'{dn}:\ns_lshr_b32 s40, s40, 16\ns_cmp_ge_u32 s40, 5\ns_cselect_b32 {sC0}, 1, 0')
        e.ts(3)
        if e.o['stamps']:
            e(f's_xor_b32 {sS}, {sSIDE}, 1'); e.tsflush(8, vt)
    def poll(self, vaddr, soff, r0, D=3):
        e = self; lp = e.lab('poll'); dn = e.lab('pd')
        iss = lambda i: e(f'buffer_load_dword v{r0+i}, {vaddr}, {sWS}, {soff} offen sc1')
        for i in range(D):
            iss(i)
            if i < D-1: e('s_nop 15')
        e(f'{lp}:')
        for i in range(D):
            e(f's_waitcnt vmcnt({D-1})\nv_cmp_eq_u32 vcc, -1, v{r0+i}\ns_cbranch_vccz {dn}')
            iss(i)
        e.tmo(lp)
        e(f'{dn}:')
    def ts(self, i):
        if self.o['stamps']: self(f'{"s_memrealtime" if self.o["stamps"] == 1 else "s_memtime"} s[{70+2*i}:{71+2*i}]')
    def tsflush(self, n, vbase):
        if not self.o['stamps']: return
        e = self
        e(f's_waitcnt lgkmcnt(0)\ns_lshl_b32 s40, s2, 2\ns_add_u32 s40, s40, {sW}\ns_lshl_b32 s40, s40, 6\ns_add_u32 s40, s40, {sS}\ns_lshl_b32 s40, s40, 6\ns_add_u32 s40, s40, {DBGW}')
        e(f'v_mov_b32 v{vbase}, 0')
        for i in range(n): e(f'v_writelane_b32 v{vbase}, s{70+2*i}, {i}')
        e(f'v_writelane_b32 v{vbase}, s34, 15')
        e(f'v_lshlrev_b32 v{vbase+1}, 2, v1\ns_mov_b64 exec, 0xffff\nbuffer_store_dword v{vbase}, v{vbase+1}, {sWS}, s40 offen\ns_mov_b64 exec, -1')

def xsum(e, r, t, op='v_add_f32', steps=(16, 32)):
    for st in steps:
        e(f'v_mov_b32 v{t}, v{r}\nv_permlane{st}_swap_b32 v{r}, v{t}\n{op} v{r}, v{r}, v{t}')

def role_ln(e):
    e('L_LN:')
    e.srd(8, 0, 2621440)
    e(f's_and_b32 s40, s2, 7\ns_lshl_b32 s40, s40, 2\ns_add_u32 s40, s40, {sJ}\ns_sub_u32 s40, s40, 28\ns_lshl_b32 s40, s40, 2\ns_add_u32 s42, s40, {sW}')
    e(f'v_and_b32 v2, 15, v1\nv_lshrrev_b32 v3, 4, v1\nv_mul_u32_u24 v2, 1280, v2\nv_lshl_add_u32 v2, v3, 4, v2\ns_mul_i32 s43, s42, {16*1280}\ns_waitcnt lgkmcnt(0)')
    R0, F0 = 8, 88
    for k in range(20): e(f'buffer_load_dwordx4 {v(R0+4*k,4)}, v2, {sA}, s43 offen offset:{k*64}')
    e('v_mov_b32 v4, 0\nv_mov_b32 v5, 0')
    for k in range(20):
        e(f's_waitcnt vmcnt({19-k})')
        for r in range(4):
            x = R0+4*k+r; f = F0+8*k+2*r
            e(f'v_lshlrev_b32 v{f}, 16, v{x}\nv_and_b32 v{f+1}, 0xffff0000, v{x}\nv_add_f32 v4, v4, v{f}\nv_add_f32 v5, v5, v{f+1}')
    e('v_add_f32 v4, v4, v5'); xsum(e, 4, 5)
    e(f'v_mul_f32 v4, {f2u(1/640)}, v4')
    e('v_mov_b32 v5, 0\nv_mov_b32 v6, 0')
    for i in range(0, 160, 2):
        e(f'v_sub_f32 v7, v{F0+i}, v4\nv_sub_f32 v248, v{F0+i+1}, v4\nv_fmac_f32 v5, v7, v7\nv_fmac_f32 v6, v248, v248')
    e('v_add_f32 v5, v5, v6'); xsum(e, 5, 6)
    e(f'v_mul_f32 v5, {f2u(1/640)}, v5')
    e('v_cvt_pk_bf16_f32 v6, v4, v5\nv_lshlrev_b32 v4, 16, v6\nv_and_b32 v5, 0xffff0000, v6')
    e(f'v_add_f32 v5, {f2u(1e-5)}, v5\nv_cvt_pk_bf16_f32 v5, v5, v5\nv_lshlrev_b32 v5, 16, v5\nv_sqrt_f32 v5, v5\nv_cvt_pk_bf16_f32 v5, v5, v5\nv_lshlrev_b32 v5, 16, v5\nv_rcp_f32 v5, v5')
    e(f's_lshr_b32 s40, s42, 1\ns_mul_i32 s40, s40, 40960\ns_and_b32 s41, s42, 1\ns_lshl_b32 s41, s41, 10\ns_add_u32 s40, s40, s41\ns_add_u32 s40, s40, {XN}\nv_lshlrev_b32 v2, 4, v1')
    for k in range(20):
        for r in range(4):
            x = R0+4*k+r; f = F0+8*k+2*r
            e(f'v_sub_f32 v{f}, v{f}, v4\nv_sub_f32 v{f+1}, v{f+1}, v4\nv_cvt_pk_bf16_f32 v6, v{f}, v{f+1}\nv_lshlrev_b32 v{f}, 16, v6\nv_and_b32 v{f+1}, 0xffff0000, v6')
            e(f'v_mul_f32 v{f}, v{f}, v5\nv_mul_f32 v{f+1}, v{f+1}, v5\nv_cvt_pk_bf16_f32 v{x}, v{f}, v{f+1}')
        e(f'buffer_store_dwordx4 {v(R0+4*k,4)}, v2, {sWS}, s40 offen offset:{(k%2)*2048} sc1')
        if k % 2: e('s_add_u32 s40, s40, 4096')
    e(f's_waitcnt vmcnt(0)\ns_barrier\ns_cmp_lg_u32 {sW}, 0\ns_cbranch_scc1 L_end')
    e.ts(2)
    if e.o['stamps']:
        e(f's_xor_b32 {sS}, {sSIDE}, 1'); e.tsflush(8, 4)
    e.arrive()
    e('s_branch L_end')

class Units:
    def __init__(self, keys_reg, keys_lds):
        self.m = {}
        for i, k in enumerate(keys_reg):
            self.m[k] = ('a', 8*i) if i < 32 else ('v', 136 + 8*(i-32))
        assert len(keys_reg) <= 47 and len(keys_lds) <= 13
        for i, k in enumerate(keys_lds): self.m[k] = ('l', i)
    def reg(self, k, off=0, n=8):
        t, r = self.m[k]; assert t != 'l'
        return (a if t == 'a' else v)(r+off, n)
    def islds(self, k): return self.m[k][0] == 'l'
    def ldsoff(self, k, half): return self.m[k][1]*2048 + half*1024

vL16, vWL = 'v2', 'v3'

def common_wsetup(e):
    e(f'v_lshlrev_b32 {vL16}, 4, v1\ns_mul_i32 s40, {sW}, {WPW}\ns_add_u32 s40, s40, {L_W}\nv_add_u32 {vWL}, s40, {vL16}')

def load_weights(e, U, chunks, mid):
    n = len(chunks); TMP = 40
    e(f's_mul_i32 s44, {sW}, 3072')
    def issue(c):
        ch = chunks[c]
        ch['soff'](); base = (c % 4)*12288
        for ii in range(3):
            e(f's_add_u32 m0, s44, {base + 1024*ii}\nbuffer_load_dwordx4 v{ch["voff"]+ii}, {ch["srd"]}, s45 offen sc1 lds')
    e.ts(1)
    mid()
    for c in range(3): issue(c)
    for c in range(n):
        infl = min(n-1-c, 2)
        e(f's_waitcnt vmcnt({3*infl})\ns_barrier')
        if c in (0, 10, 20, 30): e.ts(4 + c//10)
        if c+3 < n: issue(c+3)
        base = (c % 4)*12288; pend = []; t = TMP
        for (key, ro, va, imm) in chunks[c]['reads']:
            if U.islds(key):
                e(f'ds_read_b64_tr_b16 {v(t,2)}, {va} offset:{base+imm}'); pend.append((key, ro, t)); t += 2
            else:
                e(f'ds_read_b64_tr_b16 {U.reg(key, ro, 2)}, {va} offset:{base+imm}')
        e('s_waitcnt lgkmcnt(0)')
        for i in range(0, len(pend), 2):
            key, ro, t = pend[i]; assert pend[i+1][0] == key and pend[i+1][1] == ro+2 and ro % 4 == 0
            e(f'ds_write_b128 {vWL}, {v(t,4)} offset:{U.ldsoff(key, ro//4)}')
    e('s_waitcnt lgkmcnt(0)\ns_barrier')
    e.ts(2)

def setup_colchunk(e, vo, vr, sStride):
    for ii in range(3):
        e(f'v_add_u32 v10, {64*ii}, v1\nv_mul_u32_u24 v11, 2731, v10\nv_lshrrev_b32 v11, 16, v11')
        e(f'v_mul_u32_u24 v12, 24, v11\nv_sub_u32 v10, v10, v12\ns_lshl_b32 s40, {sW}, 3\nv_add_u32 v11, s40, v11\nv_mul_lo_u32 v11, v11, {sStride}\nv_lshl_add_u32 v{vo+ii}, v10, 4, v11')
    e(f'v_lshrrev_b32 v10, 4, v1\nv_lshlrev_b32 v10, 3, v10\nv_bfe_u32 v11, v1, 2, 2\nv_add_u32 v10, v10, v11\nv_mul_u32_u24 v10, 384, v10')
    e(f'v_and_b32 v11, 3, v1\nv_lshl_add_u32 v10, v11, 3, v10\ns_mul_i32 s40, {sW}, 96\nv_add_u32 v{vr}, s40, v10')

def col_chunks(e, srd, vo, vr, sBase, sStep, keyf):
    out = []
    for kp in range(20):
        def soff(kp=kp): e(f's_mul_i32 s45, {sStep}, {kp}\ns_add_u32 s45, s45, {sBase}')
        reads = []
        for t in range(3):
            for q in range(2): reads.append((keyf(t, kp//2), 4*(kp % 2)+2*q, f'v{vr}', 32*t + 1536*q))
        out.append(dict(srd=srd, voff=vo, soff=soff, reads=reads))
    return out

def xdma_list(k0, k1, sX, t0='s44', t1='s45'):
    per = (k1-k0)*2 // 4; L = []
    for i in range(per):
        x = f's_mul_i32 {t0}, {sW}, {per*1024}\ns_add_u32 {t0}, {t0}, {k0*2048}\ns_add_u32 {t1}, {t0}, {sX}\n' if i == 0 else f's_add_u32 {t1}, {t1}, 1024\n'
        L.append(f's_add_u32 m0, {t0}, {L_X + i*1024}\n' + x + f'buffer_load_dwordx4 {vL16}, {sWS}, {t1} offen sc1 lds' if i else x + f's_add_u32 m0, {t0}, {L_X}\ns_nop 0\nbuffer_load_dwordx4 {vL16}, {sWS}, {t1} offen sc1 lds')
    return L
def xdma(e, k0, k1, sX):
    for x in xdma_list(k0, k1, sX): e(x)

def memloads_def(e, MF, sM):
    def ld(k, fl=''):
        e(f'buffer_load_dwordx4 {v(MF+4*k,4)}, {vL16}, {sWS}, {sM[k//4]} offen offset:{(k%4)*1024} {fl}')
    return ld

def smf(D, Af, B, idx='v4'): return f'v_smfmac_f32_16x16x64_bf16 {v(D,4)}, {v(Af,4)}, {B}, {idx}'
def mf32(D, Aop, Bop, C=None): return f'v_mfma_f32_16x16x32_bf16 {v(D,4)}, {Aop}, {Bop}, {"0" if C is None else v(C,4)}'
def mf16(D, Aop, Bop, C=None): return f'v_mfma_f32_16x16x16_bf16 {v(D,4)}, {Aop}, {Bop}, {"0" if C is None else v(C,4)}'

class Ring:
    def __init__(self, e, U, keys, base, ns):
        self.e, self.U, self.keys, self.base, self.ns = e, U, [k for k in keys if U.islds(k)], base, ns
        self.reset()
    def reset(self): self.q = 0; self.nq = 0; self.emitted = 0; self.pend = []
    def queue(self):
        if self.nq < len(self.keys):
            k = self.keys[self.nq]; r = self.base + 8*(self.nq % self.ns)
            self.pend += [f'ds_read_b128 {v(r+4*h,4)}, {vWL} offset:{self.U.ldsoff(k,h)}' for h in range(2)]
            self.nq += 1
    def fill(self, n=1):
        c = 0
        while self.pend and c < n: self.e(self.pend.pop(0)); self.emitted += 1; c += 1
        return c
    def prime(self):
        self.reset()
        for _ in range(self.ns): self.queue()
        self.fill(99)
    def wait(self, key, other=0):
        if self.U.islds(key):
            assert self.keys[self.q] == key
            need = 2*(self.q+1)
            if self.emitted < need: self.fill(need - self.emitted)
            self.e(f's_waitcnt lgkmcnt({self.emitted - need + other})')
    def op(self, D, Af, key):
        if not self.U.islds(key): self.e(smf(D, Af, self.U.reg(key))); return
        self.e(smf(D, Af, v(self.base + 8*(self.q % self.ns), 8)))
        self.q += 1; self.queue()
    def state(self): return (self.q, self.nq, self.emitted, tuple(self.pend))

NPRE = 7
def crit_pass1(e, ring, MF, sM, tiles, vMax, zero_regs):
    ld = memloads_def(e, MF, sM)
    slow, ok = e.lab('slow'), e.lab('ok')
    def body(fl, first):
        zr = list(zero_regs); per = -(-len(zr)//(NPRE-1))
        for k in range(NPRE):
            ld(k, fl)
            if k == 0 and not first: e('s_waitcnt lgkmcnt(0)'); ring.prime()
            if k < NPRE-1:
                z = [zr.pop(0) for _ in range(min(per, len(zr)))]; left = 14 - len(z)
                for r in z:
                    n = left // len(z) if r != z[-1] else left - (left // len(z))*(len(z)-1)
                    e(f'v_mov_b32 v{r}, 0\ns_nop {n-1}')
        issued = NPRE
        for k in range(10):
            e(f's_waitcnt vmcnt({issued-1-k})')
            if k == 0 and first: e.ts(2)
            if k == 1 and first: e(f's_cbranch_vccnz {slow}')
            todo = ['ld'] if issued < 10 else []
            for i, (D, kf) in enumerate(tiles):
                ring.wait(kf(k))
                ring.op(D, MF+4*k, kf(k))
                if i == len(tiles)-1:
                    ring.fill(99)
                    if todo: ld(issued, fl); issued += 1
                    if k == 0 and first: e(f'v_cmp_u_f32 vcc, v{MF}, v{MF+3}')
                elif ring.fill(1): pass
                elif todo: todo.pop(); ld(issued, fl); issued += 1
    e.ts(1)
    body('', True)
    end = ring.state()
    backs = []
    def nancheck(D):
        c = e.lab('chk'); bk = e.lab('bk'); backs.append((c, bk))
        return [f'v_cmp_u_f32 s[62:63], v{D}, v{D+1}', f'v_cmp_u_f32 vcc, v{D+2}, v{D+3}', f's_or_b64 vcc, vcc, s[62:63]\ns_cbranch_scc1 {c}\n{bk}:']
    def slowpath():
        (c, bk), = backs
        e(f'{c}:\ns_cmp_lt_u32 s34, 2\ns_cbranch_scc1 {slow}\nv_mov_b32 {vMax}, 0')
        for k in range(10):
            r = MF+4*k; e(f'v_max3_u32 {vMax}, {vMax}, v{r}, v{r+1}\nv_max3_u32 {vMax}, {vMax}, v{r+2}, v{r+3}')
        e(f'v_cmp_eq_u32 vcc, -1, {vMax}\ns_cbranch_vccz {bk}')
        go = e.lab('go'); e.tmo(go); e(f'{go}:')
        e(f'{slow}:\ns_add_u32 s34, s34, 1\ns_mov_b64 s[30:31], 0\ns_nop 7')
        body('sc1', False)
        assert ring.state() == end
        e(f's_nop 7\ns_branch {ok}')
    e(f'{ok}:')
    return nancheck, slowpath

def tok_stage1(e, U, tiles, XB, ST, hooks, extra=None, pre=None):
    def lds_keys(kp): return [kf(kp//2) for (_, kf) in tiles if U.islds(kf(kp//2))]
    def reads(kp):
        out = []
        b = kp % 3
        for tt in range(2): out.append(f'ds_read_b128 {v(XB+8*b+4*tt,4)}, {vL16} offset:{L_X + kp*2048 + tt*1024}')
        for i, k in enumerate(lds_keys(kp)): out.append(f'ds_read_b128 {v(ST+8*b+4*i,4)}, {vWL} offset:{U.ldsoff(k, kp%2)}')
        return out
    extra = list(extra or []); hk = []; lastbar = False
    for kp in range(2):
        for r in reads(kp): e(r)
    if pre: pre(len(reads(0)) + len(reads(1)))
    for kp in range(20):
        nxt = reads(kp+2) if kp+2 < 20 else []
        e(f's_waitcnt lgkmcnt({len(reads(kp+1)) if kp+1 < 20 else 0})')
        b = kp % 3; lk = lds_keys(kp); n = 0
        for (acc, kf) in tiles:
            k = kf(kp//2)
            Aop = v(ST+8*b+4*lk.index(k), 4) if U.islds(k) else U.reg(k, 4*(kp % 2), 4)
            for tt in range(2):
                e(mf32(acc+4*tt, Aop, v(XB+8*b+4*tt, 4), None if kp == 0 else acc+4*tt)); n += 1
                if nxt: e(nxt.pop(0))
                elif hk and n % 4 == 1: e(hk.pop(0))
                else:
                    c = 0
                    while extra and c < 2:
                        x = extra.pop(0)
                        if x == '|':
                            if c or lastbar: lastbar = False; break
                            continue
                        lastbar = False
                        e(x); c += 2 if x.startswith(('v_exp', 'v_rcp', 'v_perml', 'buffer_')) else 1
        assert not nxt
        if kp in hooks: hk += hooks[kp]()
    for x in hk + extra:
        if x != '|': e(x)

def schedule(e, main, ops, pos0):
    pos = dict(pos0); n0 = len(e.L); ops = list(ops); main = list(main)
    cur = lambda: sum(1 for x in e.L[n0:] if not x.strip().endswith(':'))
    def dist(d):
        L = [x.strip() for x in e.L[n0:] if not x.strip().endswith(':')]
        a = len(L) - pos[d] - 1
        ism = lambda x: x.startswith(('v_mfma', 'v_smfmac'))
        if pos[d] < 0 or ism(L[pos[d]]):
            later = [i for i in range(max(pos[d]+1, 0), len(L)) if ism(L[i])]
            if later: a = max(a, 4*len(later) + len(L) - later[-1] - 1)
        return a
    def ready(o): return all(d in pos and dist(d) >= k for d, k in o[3])
    def emit(o): pos[o[0]] = cur(); e(o[1]); ops.remove(o)
    def fillers(n):
        for o in [o for o in ops if o[2] == 's' and ready(o)]: emit(o)
        for _ in range(n):
            c = [o for o in ops if o[2] == 'v' and ready(o)]
            if c: emit(c[0])
    while main:
        c = [o for o in ops if o[2] == 'm' and ready(o)]
        if c: emit(c[0]); fillers(2); continue
        nm, fn = main.pop(0); c0 = cur(); fn(); L = [x.strip() for x in e.L[n0:] if not x.strip().endswith(':')]; pos[nm] = max(i for i in range(c0, len(L)) if L[i].startswith('v_smf')); fillers(1)
    while ops:
        c = [o for o in ops if ready(o)]
        if c: emit(c[0])
        else: e('s_nop 0')

def flagclear_bulk(e, blk, vt):
    e(f'v_lshlrev_b32 v{vt}, 22, v1\ns_lshl_b32 s40, {sSIDE}, 13\ns_add_u32 s40, s40, s42\ns_add_u32 s40, s40, {BULK + blk*BS}')
    e(f'v_mov_b32 v{vt+1}, -1\ns_mov_b32 exec_hi, 0\nbuffer_store_dword v{vt+1}, v{vt}, {sWS}, s40 offen sc1\ns_mov_b32 exec_hi, -1')

def role_vo(e):
    keys_l = [('v', 2, k) for k in range(10)] + [('v', 1, k) for k in (2, 5, 8)]
    keys_r = [('o', u, k) for u in range(10) for k in range(3)] + [('v', t, k) for t in range(2) for k in range(10) if ('v', t, k) not in keys_l]
    U = Units(keys_r, keys_l)
    sFFN, sSTR, sWB, sSTP, sOB = 's29', 's30', 's31', 's32', 's33'
    sCR, sCR2, sB0, sB1, sX, sM = 's35', 's36', 's37', 's38', 's39', ('s46', 's47', 's48')
    sSL, sFR = 's49', 's50'
    L_VX, L_VM = L_MISC, L_MISC + 12288
    e('L_VO:')
    e.srd(8, 4, 7864320); e.srd(12, 5, 7864320)
    e(f's_lshl_b32 {sU}, {sXQ}, 3\ns_add_u32 {sU}, {sU}, {sJ}\ns_sub_u32 {sU}, {sU}, 8\ns_mov_b32 {sFFN}, 0\ns_mov_b32 {sSTR}, 12288\ns_mov_b32 s42, {sU}\ns_branch L_VF')
    e('L_FFN:')
    e.srd(8, 8, 1966080); e.srd(12, 9, 1966080)
    e(f's_lshl_b32 {sU}, {sXQ}, 1\ns_add_u32 {sU}, {sU}, {sJ}\ns_sub_u32 {sU}, {sU}, 26\ns_mov_b32 {sFFN}, 1\ns_mov_b32 {sSTR}, 3072\ns_add_u32 s42, {sU}, 32')
    e('L_VF:')
    e(f's_cmp_eq_u32 {sFFN}, 0\ns_cselect_b64 s[54:55], -1, 0\ns_cmp_eq_u32 {sW}, 0\ns_cselect_b64 s[56:57], 1, 0')
    e(f's_lshr_b32 s40, s42, 3\ns_lshl_b32 s40, s40, 14\ns_and_b32 s41, s42, 7\ns_lshl_b32 s41, s41, 10\ns_add_u32 {sSL}, s40, s41\ns_lshl_b32 s51, s42, 7')
    e(f's_mul_i32 {sWB}, {sU}, 384\ns_lshl_b32 {sSTP}, {sSTR}, 5\ns_mul_i32 {sOB}, {sU}, 245760')
    common_wsetup(e)
    VO1, VR1, VO2, VR2 = 16, 19, 20, 23
    setup_colchunk(e, VO1, VR1, sSTR)
    for ii in range(3):
        e(f's_mul_i32 s40, {sW}, 192\ns_add_u32 s40, s40, {64*ii}\nv_add_u32 v10, s40, v1\nv_mul_u32_u24 v11, 1639, v10\nv_lshrrev_b32 v11, 16, v11')
        e(f'v_mul_u32_u24 v12, 40, v11\nv_sub_u32 v12, v10, v12\nv_mul_u32_u24 v11, 1280, v11\nv_lshl_add_u32 v{VO2+ii}, v12, 4, v11')
        e(f'v_mov_b32 v11, 0x40000000\nv_cmp_gt_u32 vcc, 640, v10\nv_cndmask_b32 v{VO2+ii}, v11, v{VO2+ii}, vcc')
    e(f'v_lshrrev_b32 v10, 2, v1\nv_mul_u32_u24 v10, 640, v10\nv_and_b32 v11, 3, v1\nv_lshl_add_u32 v10, v11, 3, v10\ns_mul_i32 s40, {sW}, 160\nv_add_u32 v{VR2}, s40, v10')
    chunks = col_chunks(e, sA, VO1, VR1, sWB, sSTP, lambda t, k: ('v', t, k))
    for r16 in range(12):
        for hf in range(2):
            def soff(r16=r16, hf=hf): e(f's_add_u32 s45, {sOB}, {r16*16*1280 + hf*640}')
            chunks.append(dict(srd=sB, voff=VO2, soff=soff, reads=[(('o', 5*hf+uu, r16//4), 2*(r16 % 4), f'v{VR2}', 32*uu) for uu in range(5)]))
    e(f'v_and_b32 v13, 15, v1\nv_lshrrev_b32 v14, 4, v1')
    e(f'v_mov_b32 v4, 0x4444\nv_mov_b32 v10, 0xeeee\nv_cmp_lt_u32 vcc, 7, v13\nv_cndmask_b32 v4, v4, v10, vcc')
    for (dst, tau) in ((5, 0), (6, 1)):
        e(f's_mul_i32 s40, {sW}, 3\ns_add_u32 s40, s40, {tau}\ns_lshr_b32 s41, s40, 1\ns_and_b32 s40, s40, 1')
        e(f's_lshl_b32 s43, s41, 10\ns_lshl_b32 s44, s40, 3\ns_add_u32 s43, s43, s44\ns_add_u32 s43, s43, {L_VX}\nv_add_u32 v{dst}, s43, {vL16}')
        e(f's_lshl_b32 s43, s41, 9\ns_lshl_b32 s44, s40, 2\ns_add_u32 s43, s43, s44\ns_add_u32 s43, s43, {L_VM}\nv_mov_b32 v{dst+2}, s43')
    e('''v_lshrrev_b32 v10, 3, v13
    v_lshlrev_b32 v10, 8, v10
    v_bfe_u32 v11, v13, 1, 1
    v_lshl_add_u32 v10, v11, 7, v10
    v_bfe_u32 v11, v13, 2, 1
    v_lshl_add_u32 v10, v11, 3, v10
    v_and_b32 v11, 1, v13
    v_lshl_add_u32 v10, v11, 1, v10
    v_and_b32 v11, 1, v14
    v_lshl_add_u32 v10, v11, 6, v10
    v_lshrrev_b32 v11, 1, v14
    v_lshl_add_u32 v10, v11, 5, v10
    v_add_u32 v7, v7, v10
    v_add_u32 v8, v8, v10''')
    e(f'''v_and_b32 v10, 1, v14
    v_lshrrev_b32 v11, 1, v14
    v_lshl_add_u32 v12, v10, 1, v11
    s_mul_i32 s40, {sW}, 5
    s_add_u32 s40, s40, {B_VOM}
    s_lshl_b32 s40, s40, 14
    s_lshl_b32 s41, {sU}, 8
    s_add_u32 s40, s40, s41
    v_lshl_add_u32 v15, v13, 4, s40
    v_lshl_add_u32 v9, v12, 14, v15
    v_lshlrev_b32 v10, 3, v10
    v_add_u32 v11, 23, v11
    v_lshl_add_u32 v11, v11, 14, v15
    v_add_u32 v11, v11, v10
    v_add_u32 v10, {19*BS}, v9
    v_add_u32 v15, {4*BS}, v9
    v_cmp_eq_u32 vcc, 0, v12
    v_cndmask_b32 v10, v10, v15, vcc
    v_mov_b32 v12, 0''')
    def clear_vom(so):
        for r in range(124, 128): e(f'v_mov_b32 v{r}, -1')
        e(f'buffer_store_dwordx4 v[124:127], v9, {sWS}, {so} offen sc1\nbuffer_store_dwordx4 v[124:127], v10, {sWS}, {so} offen sc1\nbuffer_store_dwordx2 v[124:125], v11, {sWS}, {so} offen sc1')
    def mid(): e('s_waitcnt lgkmcnt(0)')
    load_weights(e, U, chunks, mid)
    e.wait_start(vt=30)
    e(f's_mov_b32 {sS}, {sSIDE}\ns_mul_i32 {sX}, {sS}, 40960\ns_add_u32 {sX}, {sX}, {XN}')
    xdma(e, 0, 20, sX)
    e('s_waitcnt vmcnt(0)\ns_barrier')
    e('L_VF_loop:')
    e.ts(0)
    t = G(**e.o); t.crit_off(sCR); t.crit_off(sCR2, 2); t.bulk_off(sB0)
    t(f's_add_u32 {sB1}, {sB0}, {2<<20}\ns_xor_b32 {sB1}, {sB1}, 8192\ns_add_u32 {sX}, {sX}, 81920')
    t(f's_mul_i32 s42, {sW}, {25*BS}\ns_add_u32 s42, s42, {sSL}\ns_add_u32 s43, s42, {sB1}\ns_add_u32 s42, s42, {sB0}')
    t(f's_lshl_b32 s40, {sXQ}, 15\ns_add_u32 {sM[0]}, {sCR}, s40\ns_add_u32 {sM[1]}, {sM[0]}, 4096\ns_add_u32 {sM[2]}, {sM[0]}, {BS}')
    t(f's_lshl_b32 s40, {sXQ}, 8\ns_add_u32 {sFR}, {sCR}, s40\ns_add_u32 {sFR}, {sFR}, {B_FL*BS}\ns_mov_b32 s34, 0')
    t(f's_add_u32 s52, {sB0}, s51\ns_add_u32 s52, s52, {B_VF*BS}')
    sal = [x.strip() for x in t.L]; ex = []
    for i in range(0, len(sal), 3): ex += ['\n'.join(sal[i:i+3]), '|']
    ex += [f'v_mov_b32 v{r}, -1' for r in range(124, 128)] + ['|']
    for x in (f'dwordx4 v[124:127], v9', 'dwordx4 v[124:127], v10', 'dwordx2 v[124:125], v11'):
        ex += [f's_mov_b64 exec, s[54:55]\nbuffer_store_{x}, {sWS}, {sCR2} offen sc1\ns_mov_b64 exec, -1', '|']
    XB, AC1, ST = 16, 40, 64
    tok_stage1(e, U, [(AC1+8*t, (lambda k, t=t: ('v', t, k))) for t in range(3)], XB, ST, {}, extra=ex)
    e.ts(6)
    l = e.lab('nsilu'); e(f's_cmp_lg_u32 {sFFN}, 0\ns_cbranch_scc1 L_silu\n{l}:')
    n0 = len(e.L); e('L_silu:\ns_nop 7')
    for r in range(AC1, AC1+24, 2):
        e(f'v_cvt_pk_bf16_f32 v16, v{r}, v{r+1}\nv_lshlrev_b32 v{r}, 16, v16\nv_and_b32 v{r+1}, 0xffff0000, v16')
        e(f'v_mul_f32 v16, {f2u(-LOG2E)}, v{r}\nv_mul_f32 v17, {f2u(-LOG2E)}, v{r+1}\nv_exp_f32 v16, v16\nv_exp_f32 v17, v17\nv_add_f32 v16, 1.0, v16\nv_add_f32 v17, 1.0, v17')
        e(f'v_rcp_f32 v16, v16\nv_rcp_f32 v17, v17\nv_mul_f32 v{r}, v{r}, v16\nv_mul_f32 v{r+1}, v{r+1}, v17')
    e(f's_branch {l}'); silu_code = e.L[n0:]; del e.L[n0:]
    for t in range(3):
        for tt in range(2):
            r = AC1+8*t+4*tt; d = 16+4*t+2*tt
            e(f'v_cvt_pk_bf16_f32 v{d}, v{r}, v{r+1}\nv_cvt_pk_bf16_f32 v{d+1}, v{r+2}, v{r+3}')
            e(f'ds_write_b64 {"v6" if t == 1 else "v5"}, {v(d,2)} offset:{tt*6144 + (1024 if t == 2 else 0)}')
    e('s_waitcnt lgkmcnt(0)\ns_barrier')
    VF = 84
    e.ts(7)
    for kp in range(6):
        for tt in range(2): e(f'ds_read_b128 {v(VF+8*kp+4*tt,4)}, {vL16} offset:{L_VX + (tt*6+kp)*1024}')
    dm = xdma_list(0, 20, sX)
    AC2, PK = 16, 32
    e.ts(8)
    def fin(u):
        ac = AC2+8*(u % 2); pk = PK+4*(u % 2); sr = 's42' if u < 5 else 's43'
        c = [f'v_cvt_pk_bf16_f32 v{pk+i}, v{ac+4*(i&1)+2*(i>>1)}, v{ac+4*(i&1)+2*(i>>1)+1}' for i in (0, 2, 1, 3)]
        return [c[0]+'\n'+c[1], c[2]+'\n'+c[3], f'buffer_store_dwordx4 {v(pk,4)}, {vL16}, {sWS}, {sr} offen sc1\ns_add_u32 {sr}, {sr}, {5*BS}']
    for u in range(10):
        ac = AC2+8*(u % 2); pend = fin(u-1) if u else []
        n = 0
        for kp in range(6):
            if u == 0: e(f's_waitcnt lgkmcnt({10-2*kp})')
            for tt in range(2):
                e(mf32(ac+4*tt, v(VF+8*kp+4*tt, 4), U.reg(('o', u, kp//2), 4*(kp % 2), 4), None if kp == 0 else ac+4*tt)); n += 1
                if n >= 8 and pend: e(pend.pop(0))
                if n == 3: e(dm.pop(0))
        for p in pend: e(p)
    for p in fin(9): e(p)
    e.ts(9)
    MF, AC, RS, AD = 16, 56, 68, 92
    order = [('v', t, k) for k in range(10) for t in (2, 1, 0)]
    ring = Ring(e, U, order, RS, 3)
    ring.prime()
    e('s_waitcnt vmcnt(0)\ns_barrier')
    e(f's_mov_b64 exec, s[56:57]\nbuffer_store_dword v12, v12, {sWS}, s52 offen sc1\ns_mov_b64 exec, -1')
    e(f's_cmp_lg_u32 {sFFN}, 0\ns_cbranch_scc1 L_VF_next')
    e.ts(5)
    e.poll('v12', sFR, 132)
    nanchk, slow = crit_pass1(e, ring, MF, sM, [(AC+4*t, (lambda k, t=t: ('v', t, k))) for t in (2, 1, 0)], 'v13', range(AC, AC+12))
    e.ts(10)
    for x in nanchk(AC+8): e(x)
    for t in (2, 1, 0):
        d = AC+4*t
        e(f'v_permlane32_swap_b32 v{d}, v{d+2}\nv_permlane32_swap_b32 v{d+1}, v{d+3}\nv_pk_add_f32 {v(d,2)}, {v(d,2)}, {v(d+2,2)}\nv_cvt_pk_bf16_f32 v{d}, v{d}, v{d+1}')
        va = 'v8' if t == 1 else 'v7'; o = 512 if t == 2 else 0
        e(f'ds_write_b16 {va}, v{d} offset:{o}\nds_write_b16_d16_hi {va}, v{d} offset:{o+16}')
    for r in range(AD, AD+16): e(f'v_mov_b32 v{r}, 0')
    e('s_waitcnt lgkmcnt(0)\ns_barrier')
    for k in range(3): e(f'ds_read_b128 {v(MF+4*k,4)}, {vL16} offset:{L_VM + k*1024}')
    for r in range(AD+16, AD+28): e(f'v_mov_b32 v{r}, 0')
    e.ts(3)
    OT = 28
    main = []; ops = [(f'z{r}', f'v_mov_b32 v{r}, 0' + (f'\nv_mov_b32 v{r+8}, 0' if r < AD+32 else ''), 'v', []) for r in range(AD+28, AD+36)]
    for pi in range(5):
        for k in range(3):
            for u in (2*pi, 2*pi+1):
                def fn(pi=pi, k=k, u=u):
                    if pi == 0 and u == 0: e(f's_waitcnt lgkmcnt({2-k})')
                    e(smf(AD+4*u, MF+4*k, U.reg(('o', u, k))))
                main.append((f's{u}_{k}', fn))
        da, db = AD+8*pi, AD+8*pi+4; o = OT+4*(pi//2)+(pi % 2)
        for r in range(4): ops.append((f'w{pi}_{r}', f'v_permlane32_swap_b32 v{da+r}, v{db+r}', 'v', [(f's{2*pi+1}_2', 8)]))
        o2 = o+2 if pi < 4 else o+1
        ops.append((f'a{pi}_0', f'v_add_f32 v{da}, v{da}, v{db}\nv_add_f32 v{da+1}, v{da+1}, v{db+1}\nv_cvt_pk_bf16_f32 v{o}, v{da}, v{da+1}', 'v', [(f'w{pi}_1', 0)]))
        ops.append((f'a{pi}_1', f'v_add_f32 v{da+2}, v{da+2}, v{db+2}\nv_add_f32 v{da+3}, v{da+3}, v{db+3}\nv_cvt_pk_bf16_f32 v{o2}, v{da+2}, v{da+3}', 'v', [(f'w{pi}_3', 0)]))
        if pi in (1, 3):
            g0 = OT+4*(pi//2)
            ops.append((f'x{pi}_0', f'v_permlane16_swap_b32 v{g0}, v{g0+1}', 'v', [(f'a{pi}_0', 4)]))
            ops.append((f'x{pi}_1', f'v_permlane16_swap_b32 v{g0+2}, v{g0+3}', 'v', [(f'a{pi}_1', 4)]))
            ops.append((f'st{pi}', f'buffer_store_dwordx4 {v(g0,4)}, v{9+pi//2}, {sWS}, {sCR} offen sc1', 'v', [(f'x{pi}_1', 0), (f'x{pi}_0', 0)]))
        if pi == 4:
            ops.append(('x4', f'v_permlane16_swap_b32 v{o}, v{o+1}', 'v', [('a4_1', 4), ('a4_0', 4)]))
            ops.append(('st4', f'buffer_store_dwordx2 {v(o,2)}, v11, {sWS}, {sCR} offen sc1', 'v', [('x4', 0)]))
    schedule(e, main, ops, {})
    e.ts(4)
    e('L_VF_next:')
    e.tsflush(11, 130)
    e(f's_add_u32 {sS}, {sS}, 2\ns_cmp_lt_u32 {sS}, {e.o["nseg"]}\ns_cbranch_scc1 L_VF_loop\ns_branch L_end')
    slow()
    e.L += silu_code

def dppred(op, m):
    return [f'{op}_dpp v{m}, v{m}, v{m} {c} row_mask:0xf bank_mask:0xf' for c in ('quad_perm:[1,0,3,2]', 'quad_perm:[2,3,0,1]', 'row_half_mirror', 'row_ror:8')]

def role_qk(e):
    keys_l = [('q', 2, k) for k in range(10)] + [('k', 1, k) for k in (1, 4, 7)]
    keys_r = [(m, t, k) for m in 'qk' for t in range(3) for k in range(10) if (m, t, k) not in keys_l]
    U = Units(keys_r, keys_l)
    sSTR, sWB, sSTP = 's30', 's31', 's32'
    sCR, sCR2, sB0, sX, sM = 's35', 's36', 's37', 's39', ('s46', 's47', 's48')
    sFR, sPT, sPTc, sLead, sRP, sPTo = 's50', 's51', 's52', 's53', 's49', 's33'
    sC2 = 's[54:55]'
    mN8, mMM, mV, mTA = 's[56:57]', 's[58:59]', 's[60:61]', 's[64:65]'
    L_SM, L_TM = L_MISC, L_MISC + 12288
    vZ = 'v6'; SEL = 12
    CM = [f's[{r}:{r+1}]' for r in (8, 10, 12, 14, 94, 96, 98, 100)]
    e('L_QK:')
    e.srd(8, 2, 7864320); e.srd(12, 3, 7864320)
    e(f's_lshl_b32 {sU}, {sXQ}, 3\ns_add_u32 {sU}, {sU}, {sJ}\ns_mov_b32 {sSTR}, 12288\ns_mul_i32 {sWB}, {sU}, 384\ns_lshl_b32 {sSTP}, {sSTR}, 5')
    e(f's_mov_b32 s56, 0x00ff00ff\ns_mov_b32 s57, 0x00ff00ff\ns_mov_b32 s58, 0\ns_mov_b32 s59, 0x00ff00ff\ns_mov_b32 s60, 0x03ff03ff\ns_mov_b32 s61, 0x03ff03ff\ns_mov_b32 s54, {CSC}\ns_mov_b32 s55, {CSC}')
    e(f's_lshl_b32 s40, {sU}, 2\ns_add_u32 s40, s40, {sW}\ns_cmp_eq_u32 s40, 3\ns_cselect_b32 {sLead}, 1, 0')
    e(f's_lshr_b32 s40, {sW}, 1\ns_mul_i32 {sRP}, s40, {6*BS}\ns_add_u32 s40, {sW}, 1\ns_bitcmp1_b32 s40, 1\ns_cselect_b64 {mTA}, -1, 0')
    common_wsetup(e)
    VO1, VR1 = 16, 19
    setup_colchunk(e, VO1, VR1, sSTR)
    cq = col_chunks(e, sA, VO1, VR1, sWB, sSTP, lambda t, k: ('q', t, k))
    ck = col_chunks(e, sB, VO1, VR1, sWB, sSTP, lambda t, k: ('k', t, k))
    chunks = [c for p in zip(cq, ck) for c in p]
    e(f'v_and_b32 v20, 15, v1\nv_lshrrev_b32 v21, 4, v1\nv_and_b32 v22, 1, v21\nv_lshrrev_b32 v23, 1, v21')
    e(f'v_mov_b32 v4, 0x4444\nv_mov_b32 v10, 0xeeee\nv_cmp_lt_u32 vcc, 7, v20\nv_cndmask_b32 v4, v4, v10, vcc')
    e(f"""s_mul_i32 s40, {sW}, 1280
    s_add_u32 s40, s40, {L_SM}
    v_mul_u32_u24 v5, 160, v20
    v_lshl_add_u32 v5, v21, 4, v5
    v_add_u32 v5, s40, v5
    v_lshrrev_b32 v24, 3, v20
    v_mul_u32_u24 v24, {6144-1280}, v24
    v_add_u32 v5, v5, v24
    s_and_b32 s43, {sW}, 1
    s_lshl_b32 s43, s43, 2
    v_add_u32 v24, s43, v21
    v_mul_u32_u24 v0, 160, v24
    v_lshl_add_u32 v0, v20, 4, v0
    v_mov_b32 {vZ}, 0
    s_lshl_b32 s40, {sW}, 10
    v_add_u32 v7, s40, {vL16}
    s_lshr_b32 s41, {sW}, 1
    s_lshl_b32 s40, s41, 9
    s_add_u32 s40, s40, {L_TM}
    v_lshl_add_u32 v8, v20, 4, s40
    v_lshl_add_u32 v8, v23, 8, v8
    v_lshl_add_u32 v8, v22, 3, v8
    s_lshl_b32 s40, s41, 4
    v_add_u32 v10, s40, v20
    v_lshlrev_b32 v11, 2, v21
    v_sub_u32 v10, v10, v11
    v_lshlrev_b32 v11, 4, v20
    v_lshl_add_u32 v11, v22, 3, v11
    v_lshl_add_u32 v11, v23, 2, v11""")
    e(f"""s_mul_i32 s41, s41, 40
    s_add_u32 s40, s41, {sU}
    s_lshr_b32 s42, s40, 3
    s_lshl_b32 s42, s42, 14
    s_and_b32 s40, s40, 7
    s_lshl_b32 s40, s40, 10
    s_add_u32 {sPTc}, s42, s40
    s_lshr_b32 s40, {sU}, 2
    s_add_u32 s40, s40, s41
    s_add_u32 s40, s40, 32
    s_lshr_b32 s42, s40, 3
    s_lshl_b32 s42, s42, 14
    s_and_b32 s40, s40, 7
    s_lshl_b32 s40, s40, 10
    s_add_u32 s42, s42, s40
    s_and_b32 s40, {sU}, 3
    s_lshl_b32 s40, s40, 8
    s_add_u32 s42, s42, s40
    s_sub_u32 s42, s42, {sPTc}
    v_add_u32 v11, s42, v11
    s_add_u32 {sPTc}, {sPTc}, {B_PT*BS}""")
    e(f"""v_lshlrev_b32 v25, 4, v24
    v_and_b32 v26, 1, v20
    v_lshl_add_u32 v27, v26, 7, v25
    v_lshl_add_u32 v25, v26, 3, v25
    s_lshr_b32 s40, {sU}, 1
    s_lshl_b32 s40, s40, 8
    s_and_b32 s41, {sU}, 1
    s_lshl_b32 s41, s41, 3
    s_add_u32 s40, s40, s41
    s_add_u32 s40, s40, {B_P*BS}
    v_add_u32 v27, s40, v27
    s_lshl_b32 s40, {sU}, 9
    s_add_u32 s40, s40, 4096
    s_lshr_b32 s41, s40, 13
    s_lshl_b32 s41, s41, 14
    s_and_b32 s40, s40, 8191
    s_add_u32 s40, s40, s41
    s_add_u32 s40, s40, {B_P*BS}
    v_bfe_u32 v26, v20, 1, 1
    v_lshl_add_u32 v25, v26, 8, v25
    v_bfe_u32 v26, v20, 2, 1
    v_lshl_add_u32 v25, v26, 7, v25
    v_add_u32 v9, s40, v25
    v_cmp_gt_u32 vcc, 8, v20
    v_cndmask_b32 v9, v27, v9, vcc""")
    e('v_lshlrev_b32 v25, 2, v22\nv_sub_u32 v25, v20, v25\nv_mov_b32 v26, 0x3f80\nv_mov_b32 v27, 0x3f800000')
    for r, j in ((0, 0), (1, 2), (2, 8), (3, 10)):
        e(f'v_cmp_eq_u32 vcc, {j}, v25\nv_cndmask_b32 v{SEL+r}, 0, v26, vcc\nv_cmp_eq_u32 vcc, {j+1}, v25\nv_cndmask_b32 v{SEL+r}, v{SEL+r}, v27, vcc')
    def mid(): e('s_waitcnt lgkmcnt(0)')
    load_weights(e, U, chunks, mid)
    e.wait_start(vt=30)
    e(f's_mov_b32 {sS}, {sSIDE}\ns_mul_i32 {sX}, {sS}, 40960\ns_add_u32 {sX}, {sX}, {XN}')
    xdma(e, 0, 20, sX)
    e(f's_mov_b64 s[66:67], 0\ns_mov_b32 {sPT}, 0\ns_waitcnt vmcnt(0) lgkmcnt(0)\ns_barrier')
    X = 16
    def ta_reads():
        e(f's_lshr_b32 s40, {sW}, 1\ns_lshl_b32 s40, s40, 12\nv_add_u32 v32, s40, {vL16}\nv_add_u32 v33, s40, v32')
        for w in range(4):
            r = X if w == 0 else 40+12*(w-1)
            e(f'ds_read_b128 {v(r,4)}, v32 offset:{L_MISC + w*1024}\nds_read_b128 {v(r+4,4)}, v33 offset:{L_MISC + w*1024}\nds_read_b64 {v(r+8,2)}, v8 offset:{w*1024}')
    def ta_sums(later):
        e(f's_waitcnt lgkmcnt({later+6})')
        for i in range(0, 10, 2): e(f'v_pk_add_f32 {v(X+i,2)}, {v(X+i,2)}, {v(40+i,2)}')
        e(f's_waitcnt lgkmcnt({later+3})')
        for i in range(0, 10, 2): e(f'v_pk_add_f32 {v(X+i,2)}, {v(X+i,2)}, {v(52+i,2)}')
        e(f's_waitcnt lgkmcnt({later})')
        for i in range(0, 10, 2): e(f'v_pk_add_f32 {v(X+i,2)}, {v(X+i,2)}, {v(64+i,2)}')
    def ta_ops():
        m, t = 34, 36
        L = []
        for i in range(8): L.append(f'v_cndmask_b32 v{X+i}, v37, v{X+i}, {CM[i]}')
        L += [f'v_max3_f32 v{m}, v{X}, v{X+1}, v{X+2}'] + [f'v_max3_f32 v{m}, v{m}, v{X+i}, v{X+i+1}' for i in (3, 5, 7)] + [f'v_max_f32 v{m}, v{m}, v{X+9}']
        def xs(op):
            o = []
            for st in (16, 32): o += [f'v_mov_b32 v{t}, v{m}\ns_nop 0', '|', f'v_permlane{st}_swap_b32 v{m}, v{t}', f'{op} v{m}, v{m}, v{t}']
            return o
        L += xs('v_max_f32')
        L += [f'v_mul_f32 v{m}, s54, v{m}']
        L += [f'v_fma_f32 v{X+i}, v{X+i}, s54, -v{m}' for i in range(10)]
        L += [f'v_exp_f32 v{X+i}, v{X+i}' for i in range(10)]
        L += [f'v_add_f32 v{m}, v{X}, v{X+1}'] + [f'v_add_f32 v{m}, v{m}, v{X+i}' for i in range(2, 10)]
        L += xs('v_add_f32')
        L += ['|', f'v_rcp_f32 v{m}, v{m}']
        L += [f'v_mul_f32 v{X+i}, v{X+i}, v{m}' for i in range(10)]
        L += [f'v_cvt_pk_bf16_f32 v{28+d}, v{X+4*(d&1)+2*(d>>1)}, v{X+4*(d&1)+2*(d>>1)+1}' for d in range(4)] + [f'v_cvt_pk_bf16_f32 v32, v{X+8}, v{X+9}', '|']
        L += [f's_mov_b64 exec, s[66:67]\nbuffer_store_dwordx4 v[28:31], {vL16}, {sWS}, {sPTo} offen sc1\ns_mov_b64 exec, -1', '|',
              f's_mov_b64 exec, s[66:67]\nbuffer_store_dword v32, v11, {sWS}, {sPTo} offen sc1\ns_mov_b64 exec, -1', '|',
              f's_mov_b64 exec, s[68:69]\nbuffer_store_dword {vZ}, {vL16}, {sWS}, s38 offen offset:1024 sc1\ns_mov_b64 exec, -1']
        return L
    for i in range(8): e(f'v_cmp_le_i32 {CM[i]}, {(i//4)*16 + i % 4}, v10')
    e(f's_mov_b64 s[68:69], 0\ns_mov_b32 s38, 0')
    e('L_QK_loop:')
    e.ts(0)
    ta_reads()
    AC, XB, ST = 40, 88, 112
    Q = lambda tt: 16+6*tt
    Kt = lambda tt: 28+6*tt
    tiles = [(AC+8*(3*mi+t), (lambda k, m=m, t=t: (m, t, k))) for mi, m in enumerate('qk') for t in range(3)]
    e(f's_mov_b32 {sPTo}, {sPT}\ns_add_u32 {sX}, {sX}, 81920')
    def hk(k0, k1):
        def f(): e('s_barrier'); return xdma_list(k0, k1, sX)
        return f
    def hk_clear():
        t = G(**e.o); t.crit_off(sCR); t.crit_off(sCR2, 2); t.bulk_off(sB0); t(f's_add_u32 {sPT}, {sB0}, {sPTc}')
        sal = [x.strip() for x in t.L]
        L = ['\n'.join(sal[i:i+3]) for i in range(0, len(sal), 3)]
        L += [f'v_mov_b32 v{r}, -1' for r in range(36, 40)] + ['|']
        L += [f's_add_u32 s40, {sRP}, {sCR2}\ns_mov_b64 exec, {mV}\nbuffer_store_dwordx2 v[36:37], v9, {sWS}, s40 offen sc1\ns_mov_b64 exec, -1', '|',
              f's_add_u32 s40, s40, {3*BS}\ns_mov_b64 exec, {mV}\nbuffer_store_dwordx2 v[36:37], v9, {sWS}, s40 offen sc1\ns_mov_b64 exec, -1', '|',
              f'buffer_store_dwordx4 v[36:39], {vL16}, {sWS}, {sPT} offen sc1', f'buffer_store_dword v36, v11, {sWS}, {sPT} offen sc1']
        out = []
        for x in L: out += [x, '|'] if x.startswith('s_') else [x]
        return out
    e(f'v_mov_b32 v37, {f2u(-1e9 * 192**0.5)}')
    tok_stage1(e, U, tiles, XB, ST, {5: hk(0, 6), 11: hk(6, 12), 15: hk(12, 16)}, extra=ta_ops() + ['|'] + hk_clear(), pre=ta_sums)
    e.ts(7)
    e('s_barrier'); dl = xdma_list(16, 20, sX)
    e(dl[0])
    MF, AD, RS, TQ = 40, 80, 104, 128
    def cv(mi, t, tt):
        r = AC+8*(3*mi+t)+4*tt; d = (Kt if mi else Q)(tt)+2*t
        e(f'v_cvt_pk_bf16_f32 v{d}, v{r}, v{r+1}\nv_cvt_pk_bf16_f32 v{d+1}, v{r+2}, v{r+3}')
    for t in range(3):
        for tt in range(2): cv(0, t, tt)
    e(dl[1])
    order = [('q', 2, k) for k in range(10)] + [('k', 1, k) for k in range(10)]
    ring = Ring(e, U, order, RS, 3)
    ring.prime()
    for t in range(3):
        for tt in range(2): cv(1, t, tt)
    e(f's_lshl_b32 s40, {sXQ}, 15\ns_add_u32 {sM[0]}, {sCR}, s40\ns_add_u32 {sM[1]}, {sM[0]}, 4096\ns_add_u32 {sM[2]}, {sM[0]}, {BS}')
    e(f's_lshl_b32 s40, {sXQ}, 8\ns_add_u32 {sFR}, {sCR}, s40\ns_add_u32 {sFR}, {sFR}, {B_FL*BS}\ns_mov_b32 s34, 0\ns_mov_b64 s[66:67], {mTA}')
    e(f's_add_u32 s42, {sCR}, {sRP}\ns_add_u32 s43, s42, {3*BS}\ns_mul_i32 s68, {sLead}, 0x10001\ns_mov_b32 s69, s68\ns_mov_b64 s[30:31], s[68:69]\ns_add_u32 s38, {sCR}, {B_FL*BS + 1024}')
    e.ts(8)
    e('s_waitcnt vmcnt(0)')
    e.ts(5)
    e.poll(vZ, sFR, 132)
    q0, k0, q1, q2, k1, k2 = (AD+4*i for i in range(6))
    p1 = [(q2, lambda k: ('q', 2, k)), (q0, lambda k: ('q', 0, k)), (k0, lambda k: ('k', 0, k)), (q1, lambda k: ('q', 1, k))]
    nanchk, slow = crit_pass1(e, ring, MF, sM, p1, 'v134', range(AD, AD+24))
    e.ts(9)
    def flagQ(cond, after='-1'):
        if cond == 0: return f's_mov_b64 exec, s[30:31]\nbuffer_store_dword {vZ}, {vL16}, {sWS}, s38 offen sc1\ns_mov_b64 exec, {after}'
        return f's_andn2_b64 exec, s[68:69], s[30:31]\nbuffer_store_dword {vZ}, {vL16}, {sWS}, s38 offen sc1\ns_mov_b64 exec, {after}'
    lq = e.o['leadQ']
    cvt = lambda d, r: f'v_cvt_pk_bf16_f32 v{d}, v{r}, v{r+1}'
    main = []
    for (D, m) in ((k1, ('k', 1)), (k2, ('k', 2))):
        for k in range(10):
            def fn(D=D, m=m, k=k):
                ring.op(D, MF+4*k, m + (k,))
                if m == ('k', 1) and k in (0, 3): e(f's_waitcnt lgkmcnt({4 if k == 0 else 0})')
            main.append((f'{m[0]}{m[1]}_{k}', fn))
    len_main = [0]
    nc = nanchk(q1)
    TK = q1; S0, S1, SM = q0, k0, q2
    Selq, Selk = v(SEL, 2), v(SEL+2, 2)
    T_a, T_b, T_c = 104, 108, 112
    slot = lambda j: RS + 8*((10+j) % 3)
    Ta, Tb, Tc = slot(0), slot(0)+4, slot(1)
    ops = [
        ('zq2a', cvt(q2, q2), 'v', [('q2', 8)]), ('zq2b', cvt(q2+1, q2+2), 'v', [('zq2a', 0)]),
        ('zq0a', cvt(q0, q0), 'v', [('q0', 8)]), ('zq0b', cvt(q0+1, q0+2), 'v', [('zq0a', 0)]),
        ('zk0a', cvt(q0+2, k0), 'v', [('k0', 8), ('zq0b', 0)]), ('zk0b', cvt(q0+3, k0+2), 'v', [('zk0a', 0)]),
        ('c1', nc[0], 'v', [('q1', 8)]), ('c2', nc[1], 'v', [('c1', 0)]), ('c3', nc[2], 's', [('c2', 4)]),
        ('zq1a', cvt(q1, q1), 'v', [('c2', 0)]), ('zq1b', cvt(q1+1, q1+2), 'v', [('zq1a', 0)]),
        ('Tq2', mf16(Ta, v(q2, 2), Selq), 'm', [('zq2b', 2), ('k1_1', 0)]),
        ('T0', mf32(Tb, v(q0, 4), v(SEL, 4)), 'm', [('zk0b', 2), ('k1_1', 0)]),
        ('Tq1', mf16(Tc, v(q1, 2), Selq), 'm', [('zq1b', 2), ('k1_4', 0)]),
        ('p2a', cvt(TQ+4, Ta), 'v', [('Tq2', 8)]), ('p2b', cvt(TQ+5, Ta+2), 'v', [('p2a', 0)]),
        ('p0a', cvt(TQ, Tb), 'v', [('T0', 8)]), ('p0b', cvt(TQ+1, Tb+2), 'v', [('p0a', 0)]),
        ('p1a', cvt(TQ+2, Tc), 'v', [('Tq1', 8)]), ('p1b', cvt(TQ+3, Tc+2), 'v', [('p1a', 0)]),
        ('zk1a', cvt(k1, k1), 'v', [('k1_9', 8)]), ('zk1b', cvt(k1+1, k1+2), 'v', [('zk1a', 0)]),
        ('S0a', mf16(S0, v(Kt(0)+4, 2), v(TQ+4, 2)), 'm', [('p2b', 2), ('T0', 0)]),
        ('S1a', mf16(S1, v(Kt(1)+4, 2), v(TQ+4, 2)), 'm', [('p2b', 2), ('T0', 0)]),
        ('S0b', mf32(S0, v(Kt(0), 4), v(TQ, 4), S0), 'm', [('p0b', 2), ('p1b', 2), ('S0a', 6)]),
        ('S1b', mf32(S1, v(Kt(1), 4), v(TQ, 4), S1), 'm', [('p0b', 2), ('p1b', 2), ('S1a', 6)]),
        ('w0', f'ds_write_b128 v5, {v(S0,4)}', 'v', [('S0b', 8)]),
        ('w1', f'ds_write_b128 v5, {v(S1,4)} offset:64', 'v', [('S1b', 8), ('w0', 2)]),
        ('zk2a', cvt(k2, k2), 'v', [('k2_9', 8)]), ('zk2b', cvt(k2+1, k2+2), 'v', [('zk2a', 0)]),
        ('Tk2', mf16(Tb, v(k2, 2), Selk), 'm', [('zk2b', 2)]),
        ('Tk1', mf16(Ta, v(k1, 2), Selk), 'm', [('zk1b', 2), ('k2_9', 0)]),
        ('SMa', mf16(SM, v(TQ, 2), v(TQ, 2)), 'm', [('p0b', 2), ('k2_9', 0)]),
        ('pk1a', cvt(TK, Ta), 'v', [('Tk1', 8)]), ('pk1b', cvt(TK+1, Ta+2), 'v', [('pk1a', 0)]),
        ('pk2a', cvt(TK+2, Tb), 'v', [('Tk2', 8)]), ('pk2b', cvt(TK+3, Tb+2), 'v', [('pk2a', 0)]),
        ('SMb', mf32(SM, v(TK, 4), v(TQ+2, 4), SM), 'm', [('pk2b', 2), ('pk1b', 2), ('SMa', 6)]),
    ]
    PB = 44
    for i in range(6): ops.append((f'pre{i}', f'v_mov_b32 v{PB-4+i if i < 4 else 60+i-4}, {f2u(-1e30)}', 'v', [('Tk2', 0)]))
    if lq < 20: ops.insert(0, ('fl', flagQ(0), 'v', [(main[lq][0], 0), ('c3', 0)]))
    if lq == 20: ops.append(('fl', flagQ(0), 'v', [('Tk2', 0)]))
    if lq == 21: ops.append(('fl', flagQ(0), 'v', [('SMb', 0)]))
    ops.append(('wm', f's_mov_b64 exec, {mMM}\nds_write_b128 v5, {v(SM,4)} offset:96', 'v', [('SMb', 7)]))
    schedule(e, main, ops, {'q2': -8, 'q0': -6, 'k0': -4, 'q1': -2})
    e.ts(10)
    SA = [64, 68, 72, 76, 104]
    tt3 = ((0, 0), (0, 1), (1, 1))
    h1 = [mf16(SA[i], v(Kt(tk)+4, 2), v(Q(tq)+4, 2)) for i, (tk, tq) in enumerate(tt3)] + [mf16(SA[3+tq], v(TQ, 2), v(Q(tq), 2)) for tq in range(2)]
    h2 = [mf32(SA[i], v(Kt(tk), 4), v(Q(tq), 4), SA[i]) for i, (tk, tq) in enumerate(tt3)] + [mf32(SA[3+tq], v(TK, 4), v(Q(tq)+2, 4), SA[3+tq]) for tq in range(2)]
    e('s_mov_b64 exec, -1')
    for x in h1: e(x)
    e('s_waitcnt lgkmcnt(0)\ns_barrier')
    e.ts(3)
    Tt, m, t = PB-4, 60, 62
    for w in range(4): e(f'ds_read_b128 {v(PB+4*w,4)}, v0 offset:{L_SM + w*1280}')
    nh = e.o.get('nh2', 3)
    if lq == 22: e(flagQ(0))
    for x in h2[:nh]: e(x)
    e(f's_mov_b64 exec, {mV}\ns_waitcnt lgkmcnt(2)')
    for i in (0, 2): e(f'v_pk_add_f32 {v(PB+i,2)}, {v(PB+i,2)}, {v(PB+4+i,2)}')
    for i in (0, 2): e(f'v_pk_mul_f32 {v(PB+i,2)}, {v(PB+i,2)}, {sC2}')
    e('s_waitcnt lgkmcnt(0)')
    for i in (0, 2): e(f'v_pk_add_f32 {v(PB+8+i,2)}, {v(PB+8+i,2)}, {v(PB+12+i,2)}')
    for i in (0, 2): e(f'v_pk_fma_f32 {v(Tt+i,2)}, {v(PB+8+i,2)}, {sC2}, {v(PB+i,2)}')
    e(f'v_max3_f32 v{m}, v{Tt}, v{Tt+1}, v{Tt+2}\nv_max_f32 v{m}, v{m}, v{Tt+3}\ns_mov_b64 exec, -1')
    for i, x in enumerate(dppred('v_max_f32', m)):
        e(x)
        if lq == 23 and i == 1: e(flagQ(0))
    for i in (0, 2): e(f'v_pk_add_f32 {v(Tt+i,2)}, {v(Tt+i,2)}, {v(m,2)} op_sel_hi:[1,0] neg_lo:[0,1] neg_hi:[0,1]')
    for i in range(4): e(f'v_exp_f32 v{Tt+i}, v{Tt+i}')
    e(f'v_add_f32 v{m}, v{Tt}, v{Tt+1}')
    e(f'v_add_f32 v{t}, v{Tt+2}, v{Tt+3}\nv_add_f32 v{m}, v{m}, v{t}')
    for x in dppred('v_add_f32', m): e(x)
    e(f'v_rcp_f32 v{m}, v{m}\ns_mov_b64 exec, {mV}')
    for i in (0, 2): e(f'v_pk_mul_f32 {v(Tt+i,2)}, {v(Tt+i,2)}, {v(m,2)} op_sel_hi:[1,0]')
    e(f'{cvt(PB, Tt)}\n{cvt(PB+1, Tt+2)}')
    e(f'buffer_store_dwordx2 {v(PB,2)}, v9, {sWS}, s42 offen sc1\nbuffer_store_dwordx2 {v(PB,2)}, v9, {sWS}, s43 offen sc1\ns_mov_b64 exec, -1')
    e.ts(4)
    for x in h2[nh:]: e(x)
    if lq >= 24: e(flagQ(0))
    e(flagQ(1))
    e('s_barrier')
    for i in range(3): e(f'ds_write_b128 v7, {v(SA[i],4)} offset:{L_MISC + i*4096}')
    e('s_mov_b32 exec_lo, 0')
    for tq in range(2): e(f'ds_write_b128 v7, {v(SA[3+tq],4)} offset:{L_TM - 512 + tq*512}')
    e('s_mov_b32 exec_lo, -1')
    e('s_waitcnt lgkmcnt(0)\ns_barrier')
    e.ts(11); e.ts(6)
    e.tsflush(12, 72)
    e(f's_add_u32 {sS}, {sS}, 2\ns_cmp_lt_u32 {sS}, {e.o["nseg"]}\ns_cbranch_scc1 L_QK_loop')
    ta_reads()
    e(f's_mov_b32 {sPTo}, {sPT}\nv_mov_b32 v37, {f2u(-1e9 * 192**0.5)}')
    ta_sums(0)
    for x in ta_ops():
        if x != '|': e(x)
    e('s_branch L_end')
    slow()

def role_r(e):
    sCR, sCN, sB0, sTB = 's35', 's36', 's37', 's38'
    sP = ['s46', 's47', 's48', 's49', 's50']; sV = ['s51', 's52']; sFQ, sLead, sTC, sPG, sXO = 's53', 's54', 's55', 's56', 's57'
    sN = ['s58', 's59', 's60', 's61']
    e(f'L_R:\ns_cmp_lg_u32 {sW}, 0\ns_cbranch_scc1 L_PF')
    e.srd(8, 0, 2621440); e.srd(12, 10, 2621440); e.srd(64, 1, 10240)
    e(f's_mul_i32 {sU}, {sXQ}, 10\ns_add_u32 {sU}, {sU}, {sJ}\ns_sub_u32 {sU}, {sU}, 16\ns_cmp_eq_u32 {sU}, 0\ns_cselect_b32 {sLead}, 0x10001, 0')
    e(f's_cmp_ge_u32 {sU}, 20\ns_cselect_b32 {sPG}, 1, 0\ns_mul_i32 s40, {sPG}, 20\ns_sub_u32 s40, {sU}, s40\ns_mul_i32 {sTC}, s40, {5*BS}\ns_lshl_b32 s40, {sPG}, 21\ns_add_u32 {sTC}, {sTC}, s40\ns_lshl_b32 {sPG}, {sPG}, 13')
    e(f'''v_lshlrev_b32 {vL16}, 4, v1
    v_and_b32 v20, 15, v1
    v_lshrrev_b32 v21, 4, v1
    v_mov_b32 v4, 0x4444
    v_mov_b32 v10, 0xeeee
    v_cmp_lt_u32 vcc, 7, v20
    v_cndmask_b32 v4, v4, v10, vcc
    v_and_b32 v10, 7, v1
    v_lshlrev_b32 v10, 4, v10
    v_lshl_add_u32 v10, v21, 7, v10
    v_bfe_u32 v11, v1, 3, 1
    v_lshl_add_u32 v5, v11, 3, v10
    v_and_b32 v10, 1, v21
    v_lshlrev_b32 v10, 2, v10
    v_lshrrev_b32 v11, 1, v21
    v_lshl_add_u32 v10, v11, 1, v10
    v_and_b32 v11, 1, v20
    v_add_u32 v10, v10, v11
    v_mov_b32 v7, 0x05040100
    v_mov_b32 v22, 0x03020706
    v_cmp_eq_u32 vcc, 1, v11
    v_cndmask_b32 v7, v7, v22, vcc
    v_mul_u32_u24 v23, 1280, v10
    v_and_b32 v11, 14, v20
    v_lshl_add_u32 v23, v11, 1, v23
    s_lshl_b32 s40, {sU}, 5
    v_add_u32 v23, s40, v23
    v_bfe_u32 v11, v20, 1, 1
    v_lshl_add_u32 v10, v11, 3, v10
    v_lshlrev_b32 v10, 4, v10
    v_lshrrev_b32 v11, 2, v20
    v_lshl_add_u32 v10, v11, 2, v10
    s_lshl_b32 s41, {sU}, 8
    s_lshr_b32 s42, s41, 13
    s_lshl_b32 s42, s42, 14
    s_and_b32 s41, s41, 8191
    s_add_u32 s41, s41, s42
    v_add_u32 v6, s41, v10
    v_mul_u32_u24 v8, 1280, v20
    v_lshl_add_u32 v8, v21, 3, v8
    v_add_u32 v8, s40, v8
    v_and_b32 v9, 31, v1
    v_lshlrev_b32 v9, 7, v9
    v_and_b32 v0, 7, v1
    v_lshlrev_b32 v0, 7, v0
    v_lshlrev_b32 v3, 8, v1
    v_mov_b32 v12, 0
    v_mov_b32 v14, -1
    v_lshlrev_b32 v13, 2, v21
    v_sub_u32 v13, v20, v13
    v_mov_b32 v24, 0x3f80
    v_mov_b32 v25, 0x3f800000
    s_waitcnt lgkmcnt(0)
    buffer_load_dword v15, v23, s[64:67], 0 offen
    v_cmp_eq_u32 vcc, 0, v13
    v_cndmask_b32 v16, 0, v24, vcc
    v_cmp_eq_u32 vcc, 1, v13
    v_cndmask_b32 v16, v16, v25, vcc
    v_cmp_eq_u32 vcc, 2, v13
    v_cndmask_b32 v18, 0, v24, vcc
    v_cmp_eq_u32 vcc, 3, v13
    v_cndmask_b32 v18, v18, v25, vcc
    v_mov_b32 v17, 0
    v_mov_b32 v19, 0
    v_mov_b32 v20, 0
    v_mov_b32 v21, v16
    v_mov_b32 v22, 0
    v_mov_b32 v23, v18''')
    def reps(base):
        for r in range(4): e(f's_add_u32 {sN[r]}, {base}, {2*BS*r}')
    def pub(reg):
        for r in range(4): e(f'buffer_store_dword {reg}, v6, {sWS}, {sN[r]} offen sc1')
    l = e.lab('nl'); l2 = e.lab('nc'); l3 = e.lab('ncl')
    for r in range(24, 28): e(f'v_mov_b32 v{r}, -1')
    e(f's_mul_i32 s42, {sSIDE}, 40\ns_add_u32 s42, s42, {sU}\ns_cmp_ge_u32 s42, 64\ns_cbranch_scc1 {l3}')
    e(f's_lshr_b32 s40, s42, 1\ns_and_b32 s41, s42, 1\ns_lshl_b32 s41, s41, 13\ns_lshl_b32 s43, s40, 20\ns_add_u32 s43, s43, s41\ns_add_u32 s43, s43, {B_FL*BS}')
    for o in range(3): e(f'buffer_store_dwordx4 v[24:27], {vL16}, {sWS}, s43 offen offset:{o*1024} sc1')
    e(f's_lshl_b32 s43, s40, 22\ns_add_u32 s43, s43, s41\ns_add_u32 s43, s43, {BULK + B_VF*BS}')
    for o in range(4): e(f'buffer_store_dwordx4 v[24:27], {vL16}, {sWS}, s43 offen offset:{o*1024} sc1')
    e(f's_add_u32 s43, s43, 4096\nbuffer_store_dwordx4 v[24:27], {vL16}, {sWS}, s43 offen sc1')
    e(f's_cmp_ge_u32 s42, 61\ns_cbranch_scc1 {l3}\ns_lshl_b32 s43, s42, 14')
    for o in range(16):
        e(f'buffer_store_dwordx4 v[24:27], {vL16}, {sWS}, s43 offen offset:{(o % 4)*1024} sc1')
        if o % 4 == 3: e('s_add_u32 s43, s43, 4096')
    e(f'{l3}:\ns_mov_b32 s45, 1\ns_cmp_lg_u32 {sJ}, 25\ns_cbranch_scc1 {l}')
    e(f's_and_b32 s40, s2, 7\ns_lshl_b32 s40, s40, 10\ns_add_u32 s40, s40, {B_CAL*BS}\ns_add_u32 s41, s40, 8192')
    e(f'buffer_store_dwordx4 v[24:27], {vL16}, {sWS}, s40 offen sc1\nbuffer_store_dwordx4 v[24:27], {vL16}, {sWS}, s41 offen sc1')
    e('s_waitcnt vmcnt(0)\ns_mov_b32 s46, -1\ns_mov_b32 s47, -1')
    for k in range(e.o.get('ncal', 6)):
        for b in range(2):
            e(f's_memtime s[48:49]\ns_waitcnt lgkmcnt(0)\nbuffer_load_dword v31, v12, {sWS}, s{40+b} offen offset:{k*128} sc1\ns_waitcnt vmcnt(0)\ns_memtime s[50:51]\ns_waitcnt lgkmcnt(0)')
            e(f's_sub_u32 s50, s50, s48\ns_min_u32 s{46+b}, s{46+b}, s50')
    e(f's_cmp_lt_u32 s47, s46\ns_cselect_b32 s45, 1, 0\ns_xor_b32 s45, s45, {sSIDE}\ns_lshl_b32 s45, s45, 16\ns_or_b32 s45, s45, 1')
    e(f'{l}:\ns_waitcnt vmcnt(0)')
    e.ts(2)
    e.arrive(extra='s45', vt=30)
    e.wait_start(vt=30)
    def flagR(msk):
        e(f's_add_u32 s40, {sCN}, {B_FL*BS}\ns_mov_b32 exec_lo, {msk}\ns_mov_b32 exec_hi, {msk}\nbuffer_store_dword v12, {vL16}, {sWS}, s40 offen sc1\ns_mov_b64 exec, -1')
    e(f's_cmp_eq_u32 {sSIDE}, 0\ns_cbranch_scc1 {l2}\ns_mov_b32 {sS}, 0')
    e.crit_off(sCN, 2); reps(sCN); pub('v14')
    e('s_waitcnt vmcnt(0)\nv_min_u32 v15, -2, v15')
    e.crit_off(sCN, 0); reps(sCN); pub('v15')
    e('s_waitcnt vmcnt(0)'); flagR(sLead)
    e(f'{l2}:\ns_mov_b32 {sS}, {sSIDE}')
    e('L_R_loop:')
    e.ts(0)
    e.crit_off(sCN, 3); reps(sCN); pub('v14')
    e.crit_off(sCR); e.crit_off(sCN, 1); reps(sCN); e.bulk_off(sB0)
    e(f's_xor_b32 {sTB}, {sB0}, {sPG}\ns_add_u32 {sTB}, {sTB}, {sTC}\ns_add_u32 s42, {sB0}, {B_VF*BS}')
    e(f's_mul_i32 s40, {sXQ}, {3*BS}\ns_add_u32 s40, s40, {sCR}')
    for g in range(5): e(f's_add_u32 {sP[g]}, s40, {(B_P + g//2)*BS + (g % 2)*4096}')
    e(f's_lshl_b32 s40, {sU}, 14\ns_add_u32 s40, s40, {sCR}\ns_add_u32 {sV[0]}, s40, {B_VOM*BS}\ns_add_u32 {sV[1]}, {sV[0]}, 4096')
    e(f's_lshl_b32 s40, {sXQ}, 8\ns_add_u32 {sFQ}, {sCR}, s40\ns_add_u32 {sFQ}, {sFQ}, {B_FL*BS + 1024}\ns_mul_i32 {sXO}, {sS}, 40960\ns_add_u32 s43, {sXO}, 20480')
    e(f'buffer_load_dwordx2 v[36:37], v8, {sA}, {sXO} offen\nbuffer_load_dwordx2 v[38:39], v8, {sA}, s43 offen')
    e.poll('v9', 's42', 252, D=1)
    e.ts(7)
    def ldvot(k0, k1):
        for k in range(k0, k1):
            if k % 4 == 0: e(f's_add_u32 s40, {sTB}, {(k//8)*BS + ((k//4) % 2)*4096}')
            e(f'buffer_load_dwordx4 {a(4*k,4)}, {vL16}, {sWS}, s40 offen offset:{(k%4)*1024} sc1')
    ldvot(0, 32)
    AC, AM, AT, BM = 24, 40, 56, 120
    e('s_mov_b32 s34, 0\ns_waitcnt vmcnt(0)')
    e.ts(5)
    e.poll('v12', sFQ, 252)
    e.ts(1)
    rt = e.lab('rt'); bad = e.lab('bad')
    e(f'{rt}:')
    for k in range(20): e(f'buffer_load_dwordx4 {v(AM+4*k,4)}, {vL16}, {sWS}, {sP[k//4]} offen offset:{(k%4)*1024} sc1')
    for k in range(8): e(f'buffer_load_dwordx4 {v(BM+4*k,4)}, {vL16}, {sWS}, {sV[k//4]} offen offset:{(k%4)*1024} sc1')
    for r in range(AC, AC+4): e(f'v_mov_b32 v{r}, 0')
    e('v_mov_b32 v13, 0')
    extra = 0; rf = e.o['rflag']
    chk = e.lab('chk'); bk = e.lab('bk')
    e(f's_cmp_eq_u32 s34, 0\ns_cselect_b32 s30, {sLead}, 0\ns_mov_b32 s31, s30\ns_add_u32 s33, {sCN}, {B_FL*BS}')
    for i in range(28):
        if i >= 20 and i % 2 == 0: continue
        e(f's_waitcnt vmcnt({27-i+extra})')
        if i == 0: e.ts(2)
        if i < 4:
            r = AM+4*i; e(f'v_max3_u32 v13, v13, v{r}, v{r+1}\nv_max3_u32 v13, v13, v{r+2}, v{r+3}')
            if i == 3: e(f'v_cmp_eq_u32 vcc, -1, v13\ns_cbranch_vccnz {bad}')
        elif i < 20: e(smf(AC, AT+4*(i-4), a(8*(i-4), 8)))
        else: e(smf(AC, AM+4*((i-20)//2), v(BM+4*(i-21), 8)))
        if i == rf:
            e(f's_mov_b64 exec, s[30:31]\nbuffer_store_dword v12, {vL16}, {sWS}, s33 offen sc1\ns_mov_b64 exec, -1'); extra = 1
    e.ts(3)
    e(f'v_permlane32_swap_b32 v{AC}, v{AC+2}\nv_permlane32_swap_b32 v{AC+1}, v{AC+3}\nv_pk_add_f32 {v(AC,2)}, {v(AC,2)}, {v(AC+2,2)}')
    e(f'v_cvt_pk_bf16_f32 v{AC+2}, v{AC}, v{AC+1}\nv_cmp_u_f32 vcc, v{AC}, v{AC+1}\ns_cbranch_vccnz {chk}\n{bk}:')
    e(f'v_mov_b32_dpp v{AC+1}, v{AC+2} quad_perm:[1,0,3,2] row_mask:0xf bank_mask:0xf\nv_perm_b32 v{AC}, v{AC+1}, v{AC+2}, v7')
    pub(f'v{AC}')
    if rf < 28: e(f's_cmp_lg_u32 s34, 0\ns_cselect_b32 s41, {sLead}, 0'); flagR('s41')
    else: flagR(sLead)
    e.ts(4)
    okO = e.lab('okO'); slowO = e.lab('slowO')
    AO = 28
    ringr = list(range(152, 252, 4)) + list(range(40, 120, 4)); NR = 44; ringr = ringr[:NR]
    def opass(explicit):
        e(f's_add_u32 s42, {sB0}, {B_PT*BS}')
        def ldp(n):
            j, tt = n//2, n % 2
            if tt == 0 and j % 4 == 0:
                o = (j//8)*BS + ((j//4) % 2)*4096
                e(f's_add_u32 s40, s42, {o}\ns_add_u32 s41, s42, {o + 5*BS}')
            e(f'buffer_load_dwordx4 {v(ringr[n % NR],4)}, {vL16}, {sWS}, {"s41" if tt else "s40"} offen offset:{(j%4)*1024} sc1')
        if not explicit:
            e(f's_add_u32 s43, {sB0}, {B_VF*BS + 4096}'); e.poll('v0', 's43', 252, D=1)
            ldvot(32, 40)
            e(f's_add_u32 s43, {sFQ}, 1024'); e.poll('v12', 's43', 252)
            e.ts(8)
            e(f's_sub_u32 s40, {sJ}, 16\ns_lshl_b32 s40, s40, 14\ns_add_u32 s40, s40, s42\nv_lshlrev_b32 v10, 7, v1\nbuffer_load_dword v11, v10, {sWS}, s40 offen sc1')
        for n in range(NR): ldp(n)
        for k in range(8):
            for tt in range(2): e(mf32(AO+4*tt, a(128+4*k, 4), 'v[20:23]' if tt else 'v[16:19]', None if k == 0 else AO+4*tt))
        if explicit: e('v_mov_b32 v13, 0')
        iss = NR
        for n in range(80):
            j, tt = n//2, n % 2; r = ringr[n % NR]
            e(f's_waitcnt vmcnt({iss-1-n})')
            e(mf32(AO+4*tt, a(4*j, 4) if j < 32 else v(BM+4*(j-32), 4), v(r, 4), AO+4*tt))
            if explicit: e(f'v_max3_u32 v13, v13, v{r}, v{r+1}\nv_max3_u32 v13, v13, v{r+2}, v{r+3}')
            if iss < 80: ldp(iss); iss += 1
    opass(False)
    e(f'v_cmp_u_f32 vcc, v{AO}, v{AO+4}\ns_cbranch_vccnz {slowO}\n{okO}:')
    for tt in range(2):
        for i in range(2):
            x = 36+2*tt+i; d = AO+4*tt+2*i
            e(f'v_lshlrev_b32 v40, 16, v{x}\nv_and_b32 v41, 0xffff0000, v{x}\nv_add_f32 v40, v40, v{d}\nv_add_f32 v41, v41, v{d+1}\nv_cvt_pk_bf16_f32 v{42+2*tt+i}, v40, v41')
    e(f's_add_u32 s43, {sXO}, 20480\nbuffer_store_dwordx2 v[42:43], v8, {sB}, {sXO} offen\nbuffer_store_dwordx2 v[44:45], v8, {sB}, s43 offen')
    e.ts(6)
    e.tsflush(9, 48)
    e(f's_add_u32 {sS}, {sS}, 2\ns_cmp_lt_u32 {sS}, {e.o["nseg"]}\ns_cbranch_scc1 L_R_loop\ns_branch L_end')
    e(f'{chk}:\ns_cmp_lt_u32 s34, 2\ns_cbranch_scc1 {bad}')
    for r in range(AT, BM+32, 2): e(f'v_max3_u32 v13, v13, v{r}, v{r+1}')
    e(f'v_cmp_eq_u32 vcc, -1, v13\ns_cbranch_vccz {bk}')
    e(f'{bad}:\ns_add_u32 s34, s34, 1'); e.tmo(rt)
    e(f'{slowO}:\ns_nop 7')
    opass(True)
    e(f's_nop 7\nv_cmp_eq_u32 vcc, -1, v13\ns_cbranch_vccz {okO}'); e.tmo(slowO)

def role_pf(e):
    e('L_PF:')
    pf = e.o.get('pf', 0)
    if not pf: e('s_branch L_end'); return
    e(f's_cmp_eq_u32 {sJ}, 25\ns_cbranch_scc1 L_end')
    for d, slot in ((8, 2), (12, 3), (44, 4), (48, 5)): e.srd(d, slot, 7864320)
    step = e.o.get('pfstride', 128); per = 3072 // step
    e(f's_sub_u32 s40, {sJ}, 16\ns_mul_i32 s40, s40, 3\ns_add_u32 s40, s40, {sW}\ns_sub_u32 s40, s40, 1')
    npc = 32*per; rounds = -(-(8*20480//step) // 1728)
    for r in range(rounds):
        e(f's_add_u32 s41, s40, {1728*r}\nv_mul_u32_u24 v2, 27, v1\nv_add_u32 v2, s41, v2\ns_mov_b32 s42, {-(-(1<<20)//per)}\nv_mul_lo_u32 v3, v2, s42\nv_lshrrev_b32 v3, 20, v3')
        e(f'v_mul_u32_u24 v4, {per}, v3\nv_sub_u32 v4, v2, v4\nv_mul_u32_u24 v3, 12288, v3\nv_mul_u32_u24 v4, {step}, v4\nv_add_u32 v3, v3, v4\ns_mul_i32 s41, {sXQ}, 3072\nv_add_u32 v3, s41, v3')
        e(f'v_mov_b32 v4, 0x40000000\nv_cmp_gt_u32 vcc, {npc}, v2\nv_cndmask_b32 v{10+r}, v4, v3, vcc')
        po = 20480 // step
        e(f's_mov_b32 s42, {-(-(1<<20)//po)}\nv_mul_lo_u32 v3, v2, s42\nv_lshrrev_b32 v3, 20, v3\nv_mul_u32_u24 v5, {po}, v3\nv_sub_u32 v5, v2, v5\ns_lshl_b32 s41, {sXQ}, 3\nv_add_u32 v3, s41, v3')
        e(f's_mov_b32 s42, 245760\nv_mul_lo_u32 v3, v3, s42\nv_mul_u32_u24 v5, {step}, v5\nv_add_u32 v3, v3, v5\nv_cmp_gt_u32 vcc, {8*po}, v2\nv_cndmask_b32 v{14+r}, v4, v3, vcc')
    e('s_waitcnt lgkmcnt(0)')
    L = []
    sel = e.o.get('pfsel', 2); st0 = e.o.get('pfstart', 3)
    for kp in range(20):
        if kp % 2 == 1 and 2*kp >= st0: L.append((2*kp/40, 's[8:11]', 10, kp*32*12288))
        if kp % 2 == 0 and 2*kp+1 >= st0: L.append(((2*kp+1)/40, 's[12:15]', 10, kp*32*12288))
        if kp % 2 == 1 and kp >= st0: L.append((kp/44, 's[44:47]', 10, kp*32*12288))
    for r16 in range(12):
        if r16 % 2 == 1: L.append(((20+2*r16)/44, 's[48:51]', 14, r16*20480))
    L.sort()
    dep = e.o.get('pfdepth', 4)
    for i, (_, srd, vb, so) in enumerate(L):
        e(f's_mov_b32 s41, {so}')
        for r in range(rounds if vb == 14 else 1): e(f'buffer_load_dword v{20+(i*rounds+r) % 32}, v{vb+r}, {srd}, s41 offen')
        e(f's_waitcnt vmcnt({dep})')
    e('s_branch L_end')

HEAD = open('cdna_kernels/' + NAME[:-7] + '.s.ref').read().split('; Override launch')[0]
def gen(aslist=False, **o):
    e = G(**o)
    e.ts(0)
    e(f'''s_cmp_ge_u32 s2, 256
    s_cbranch_scc1 L_end
    s_load_dwordx2 s[4:5], s[0:1], 96
    s_load_dwordx2 s[16:17], s[0:1], 88
    v_and_b32 v1, 63, v0
    v_lshrrev_b32 v2, 6, v0
    s_and_b32 {sXQ}, s2, 3
    v_readfirstlane_b32 {sW}, v2
    s_bfe_u32 {sSIDE}, s2, 0x10002
    s_lshr_b32 {sJ}, s2, 3
    s_mov_b32 {sTO}, 0
    s_mov_b32 s18, 256
    s_mov_b32 s19, 0x20000
    s_mov_b32 s6, {252<<20}
    s_mov_b32 s7, 0x20000
    s_waitcnt lgkmcnt(0)
    s_add_u32 s4, s4, 0x3fffff
    s_addc_u32 s5, s5, 0
    s_and_b32 s4, s4, 0xffc00000
    s_cmp_lt_u32 {sJ}, 8
    s_cbranch_scc1 L_QK
    s_cmp_lt_u32 {sJ}, 16
    s_cbranch_scc1 L_VO
    s_cmp_lt_u32 {sJ}, 26
    s_cbranch_scc1 L_R
    s_cmp_lt_u32 {sJ}, 28
    s_cbranch_scc1 L_FFN''')
    role_ln(e); role_qk(e); role_vo(e); role_r(e); role_pf(e)
    e(f'L_abort:\nv_mov_b32 v30, 4\nv_mov_b32 v31, 1\ns_mov_b64 exec, 1\nbuffer_atomic_add v31, v30, {sDBG}, 0 offen sc1\nL_end:\ns_endpgm')
    body, nn = hazard.run(e.L)
    launch = f'; @launch kernel={NAME} grid=(256,1,1) block=(256,1,1) lds=163840' if aslist else '; @launch grid=(256,1,1) block=(256,1,1) lds=163840'
    return HEAD + launch + '\n.amdgcn_target "amdgcn-amd-amdhsa--gfx950"\n.text\n' + kernel_head(NAME) + '\n'.join(body) + '\n' + kernel_desc(NAME, 512, 102, 256)

if __name__ == '__main__':
    o = dict(kv.split('=') for kv in sys.argv[2:]); o = {k: int(x) for k, x in o.items()}
    open(sys.argv[1], 'w').write(gen(**o))
```

```python
import sys
from asmlib import *
import hazard

NAME = 'parallel_sum__memory_aug_recurrent_mem_tr__dense_activation_silu__prompt_kernel'
BS = 16384
BULK = 36 << 20
XN = 164 << 20
DBGW = 172 << 20
B_MEM, B_P, B_FL, B_VOM, B_CAL = 0, 8, 20, 21, 62
B_PT, B_VF = 100, 110
L_X, L_MISC, L_W = 0, 40960, 57344
WPW = 26624
TMO = 1 << 17
NARR = 112
LOG2E = 1.4426950408889634
import struct
def f2u(x): return struct.unpack('<I', struct.pack('<f', x))[0]
CSC = f2u(LOG2E / 192 ** 0.5)

sWS, sA, sB, sDBG = 's[4:7]', 's[8:11]', 's[12:15]', 's[16:19]'
sXQ, sJ, sSIDE, sW, sU, sS, sTO, sC0 = 's20', 's21', 's22', 's23', 's25', 's26', 's27', 's28'

class G(A):
    def __init__(self, **o):
        super().__init__(); self.o = dict(leadQ=19, rflag=13, vfirst=8, fplead=20, stamps=0, nseg=64); self.o.update(o)
    def crit_off(self, dst, add=0, t0='s40', t1='s41'):
        e = self
        e(f's_add_u32 {t0}, {sS}, {add}\ns_lshr_b32 {t1}, {t0}, 2\ns_xor_b32 {t1}, {t1}, {t0}\ns_xor_b32 {t1}, {t1}, {sC0}\ns_and_b32 {t1}, {t1}, 1\ns_lshl_b32 {t1}, {t1}, 13')
        e(f's_lshr_b32 {t0}, {t0}, 1\ns_lshl_b32 {t0}, {t0}, 20\ns_or_b32 {dst}, {t0}, {t1}')
    def bulk_off(self, dst, add=0, t0='s40', t1='s41'):
        e = self
        e(f's_add_u32 {t0}, {sS}, {add}\ns_xor_b32 {t1}, {t0}, {sC0}\ns_and_b32 {t1}, {t1}, 1\ns_lshl_b32 {t1}, {t1}, 13')
        e(f's_lshr_b32 {t0}, {t0}, 1\ns_lshl_b32 {t0}, {t0}, 22\ns_add_u32 {t0}, {t0}, {BULK}\ns_or_b32 {dst}, {t0}, {t1}')
    def tmo(self, again):
        self(f's_add_u32 {sTO}, {sTO}, 1\ns_cmp_lt_u32 {sTO}, {TMO}\ns_cbranch_scc1 {again}\ns_branch L_abort')
    def srd(self, dst, slot, nbytes):
        self(f's_load_dwordx2 s[{dst}:{dst+1}], s[0:1], {slot*8}\ns_mov_b32 s{dst+2}, {nbytes}\ns_mov_b32 s{dst+3}, 0x20000')
    def arrive(self, extra=None, vt=2):
        e = self; l = e.lab('nla')
        x = "1" if extra is None else extra
        e(f'v_mov_b32 v{vt}, 0\nv_mov_b32 v{vt+1}, {x}')
        e(f's_mov_b64 exec, 1\nbuffer_atomic_add v{vt+1}, v{vt}, {sDBG}, 0 offen sc0 sc1\ns_waitcnt vmcnt(0)\nv_add_u32 v{vt+1}, {x}, v{vt+1}')
        e(f'v_readfirstlane_b32 s40, v{vt+1}\ns_and_b32 s40, s40, 0xffff\ns_cmp_lg_u32 s40, {NARR}\ns_cbranch_scc1 {l}')
        e(f'buffer_store_dword v{vt+1}, v{vt}, {sDBG}, 0 offen offset:128 sc1\n{l}:\ns_mov_b64 exec, -1')
    def wait_start(self, vt=2):
        e = self; lp = e.lab('ws'); dn = e.lab('wsd')
        e(f'v_mov_b32 v{vt}, 0\n{lp}:\nbuffer_load_dword v{vt+1}, v{vt}, {sDBG}, 0 offen offset:128 sc1\ns_waitcnt vmcnt(0)')
        e(f'v_readfirstlane_b32 s40, v{vt+1}\ns_cmp_lg_u32 s40, 0\ns_cbranch_scc1 {dn}\ns_sleep 4')
        e.tmo(lp)
        e(f'{dn}:\ns_lshr_b32 s40, s40, 16\ns_cmp_ge_u32 s40, 5\ns_cselect_b32 {sC0}, 1, 0')
        e.ts(3)
        if e.o['stamps']:
            e(f's_xor_b32 {sS}, {sSIDE}, 1'); e.tsflush(8, vt)
    def poll(self, vaddr, soff, r0, D=None, sleep=0):
        e = self; lp = e.lab('poll'); dn = e.lab('pd')
        one = D is None and e.o.get('poll1', 0)
        if D is None: D = e.o.get('pd', 3)
        if one: e('s_mov_b64 exec, 1')
        iss = lambda i: e(f'buffer_load_dword v{r0+i}, {vaddr}, {sWS}, {soff} offen sc1')
        for i in range(D):
            iss(i)
            if i < D-1: e('s_nop 15')
        e(f'{lp}:')
        for i in range(D):
            e(f's_waitcnt vmcnt({D-1})\nv_cmp_eq_u32 vcc, -1, v{r0+i}\ns_cbranch_vccz {dn}')
            if sleep: e(f's_sleep {sleep}')
            iss(i)
        e.tmo(lp)
        e(f'{dn}:')
        if one: e('s_mov_b64 exec, -1')
    def ts(self, i):
        if self.o['stamps'] and (self.o.get('tsmask', -1) >> i) & 1: self(f'{"s_memrealtime" if self.o["stamps"] == 1 else "s_memtime"} s[{70+2*i}:{71+2*i}]')
    def tsflush(self, n, vbase):
        if not self.o['stamps']: return
        e = self
        e(f's_waitcnt lgkmcnt(0)\ns_lshl_b32 s40, s2, 2\ns_add_u32 s40, s40, {sW}\ns_lshl_b32 s40, s40, 6\ns_add_u32 s40, s40, {sS}\ns_lshl_b32 s40, s40, 6\ns_add_u32 s40, s40, {DBGW}')
        e(f'v_mov_b32 v{vbase}, 0')
        for i in range(n): e(f'v_writelane_b32 v{vbase}, s{70+2*i}, {i}')
        e(f'v_writelane_b32 v{vbase}, s34, 15\nv_writelane_b32 v{vbase}, s29, 14')
        e(f'v_lshlrev_b32 v{vbase+1}, 2, v1\ns_mov_b64 exec, 0xffff\nbuffer_store_dword v{vbase}, v{vbase+1}, {sWS}, s40 offen\ns_mov_b64 exec, -1')

def resolve(lines):
    out = []; nl = nv = 0; tag = {}
    for ln in lines:
        t = ln.strip()
        if t.startswith('@wl '): out.append(f'    s_waitcnt lgkmcnt({min(15, nl - tag[t[4:]])})'); continue
        if t.startswith('@wv '): out.append(f'    s_waitcnt vmcnt({min(63, nv - tag[t[4:]])})'); continue
        if t.startswith('ds_'): nl += 1
        if t.startswith('buffer_'): nv += 1
        if ';@' in t:
            tag[t.split(';@')[1].strip()] = nl if t.startswith('ds_') else nv
            ln = ln.split(';@')[0].rstrip()
        out.append(ln)
    return out

def xsum(e, r, t, op='v_add_f32', steps=(16, 32)):
    for st in steps:
        e(f'v_mov_b32 v{t}, v{r}\nv_permlane{st}_swap_b32 v{r}, v{t}\n{op} v{r}, v{r}, v{t}')

def role_ln(e):
    e('L_LN:')
    e.srd(8, 0, 2621440)
    e(f's_and_b32 s40, s2, 7\ns_lshl_b32 s40, s40, 2\ns_add_u32 s40, s40, {sJ}\ns_sub_u32 s40, s40, 28\ns_lshl_b32 s40, s40, 2\ns_add_u32 s42, s40, {sW}')
    e(f'v_and_b32 v2, 15, v1\nv_lshrrev_b32 v3, 4, v1\nv_mul_u32_u24 v2, 1280, v2\nv_lshl_add_u32 v2, v3, 4, v2\ns_mul_i32 s43, s42, {16*1280}\ns_waitcnt lgkmcnt(0)')
    R0, F0 = 8, 88
    for k in range(20): e(f'buffer_load_dwordx4 {v(R0+4*k,4)}, v2, {sA}, s43 offen offset:{k*64}')
    e('v_mov_b32 v4, 0\nv_mov_b32 v5, 0')
    for k in range(20):
        e(f's_waitcnt vmcnt({19-k})')
        for r in range(4):
            x = R0+4*k+r; f = F0+8*k+2*r
            e(f'v_lshlrev_b32 v{f}, 16, v{x}\nv_and_b32 v{f+1}, 0xffff0000, v{x}\nv_add_f32 v4, v4, v{f}\nv_add_f32 v5, v5, v{f+1}')
    e('v_add_f32 v4, v4, v5'); xsum(e, 4, 5)
    e(f'v_mul_f32 v4, {f2u(1/640)}, v4')
    e('v_mov_b32 v5, 0\nv_mov_b32 v6, 0')
    for i in range(0, 160, 2):
        e(f'v_sub_f32 v7, v{F0+i}, v4\nv_sub_f32 v248, v{F0+i+1}, v4\nv_fmac_f32 v5, v7, v7\nv_fmac_f32 v6, v248, v248')
    e('v_add_f32 v5, v5, v6'); xsum(e, 5, 6)
    e(f'v_mul_f32 v5, {f2u(1/640)}, v5')
    e('v_cvt_pk_bf16_f32 v6, v4, v5\nv_lshlrev_b32 v4, 16, v6\nv_and_b32 v5, 0xffff0000, v6')
    e(f'v_add_f32 v5, {f2u(1e-5)}, v5\nv_cvt_pk_bf16_f32 v5, v5, v5\nv_lshlrev_b32 v5, 16, v5\nv_sqrt_f32 v5, v5\nv_cvt_pk_bf16_f32 v5, v5, v5\nv_lshlrev_b32 v5, 16, v5\nv_rcp_f32 v5, v5')
    e(f's_lshr_b32 s40, s42, 1\ns_lshl_b32 s40, s40, 16\ns_and_b32 s41, s42, 1\ns_lshl_b32 s41, s41, 10\ns_add_u32 s40, s40, s41\ns_add_u32 s40, s40, {XN}\nv_lshlrev_b32 v2, 4, v1\nv_add_u32 v3, 40960, v2')
    for k in range(20):
        for r in range(4):
            x = R0+4*k+r; f = F0+8*k+2*r
            e(f'v_sub_f32 v{f}, v{f}, v4\nv_sub_f32 v{f+1}, v{f+1}, v4\nv_cvt_pk_bf16_f32 v6, v{f}, v{f+1}\nv_lshlrev_b32 v{f}, 16, v6\nv_and_b32 v{f+1}, 0xffff0000, v6')
            e(f'v_mul_f32 v{f}, v{f}, v5\nv_mul_f32 v{f+1}, v{f+1}, v5\nv_cvt_pk_bf16_f32 v{x}, v{f}, v{f+1}')
        e(f'buffer_store_dwordx4 {v(R0+4*k,4)}, v2, {sWS}, s40 offen offset:{(k%2)*2048} sc1')
        if k < 12: e(f'buffer_store_dwordx4 {v(R0+4*k,4)}, v3, {sWS}, s40 offen offset:{(k%2)*2048} sc1')
        if k % 2: e('s_add_u32 s40, s40, 4096')
    e(f's_waitcnt vmcnt(0)\ns_barrier\ns_cmp_lg_u32 {sW}, 0\ns_cbranch_scc1 L_end')
    e.ts(2)
    if e.o['stamps']:
        e(f's_xor_b32 {sS}, {sSIDE}, 1'); e.tsflush(8, 4)
    e.arrive()
    e('s_branch L_end')

class Units:
    def __init__(self, keys_reg, keys_lds):
        self.m = {}
        for i, k in enumerate(keys_reg):
            self.m[k] = ('a', 8*i) if i < 32 else ('v', 136 + 8*(i-32))
        assert len(keys_reg) <= 47 and len(keys_lds) <= 13
        for i, k in enumerate(keys_lds): self.m[k] = ('l', i)
    def reg(self, k, off=0, n=8):
        t, r = self.m[k]; assert t != 'l'
        return (a if t == 'a' else v)(r+off, n)
    def islds(self, k): return self.m[k][0] == 'l'
    def ldsoff(self, k, half): return self.m[k][1]*2048 + half*1024

vL16, vWL = 'v2', 'v3'

def common_wsetup(e):
    e(f'v_lshlrev_b32 {vL16}, 4, v1\ns_mul_i32 s40, {sW}, {WPW}\ns_add_u32 s40, s40, {L_W}\nv_add_u32 {vWL}, s40, {vL16}')

def load_weights(e, U, chunks, mid):
    n = len(chunks); TMP = 40
    e(f's_mul_i32 s44, {sW}, 3072')
    def issue(c):
        ch = chunks[c]
        ch['soff'](); base = (c % 4)*12288
        for ii in range(3):
            e(f's_add_u32 m0, s44, {base + 1024*ii}\nbuffer_load_dwordx4 v{ch["voff"]+ii}, {ch["srd"]}, s45 offen {e.o.get("wfl", "sc1")} lds')
    e.ts(1)
    mid()
    for c in range(3): issue(c)
    for c in range(n):
        infl = min(n-1-c, 2)
        e(f's_waitcnt vmcnt({3*infl})\ns_barrier')
        if c in (0, 10, 20, 30): e.ts(4 + c//10)
        if c+3 < n: issue(c+3)
        base = (c % 4)*12288; pend = []; t = TMP
        for (key, ro, va, imm) in chunks[c]['reads']:
            if U.islds(key):
                e(f'ds_read_b64_tr_b16 {v(t,2)}, {va} offset:{base+imm}'); pend.append((key, ro, t)); t += 2
            else:
                e(f'ds_read_b64_tr_b16 {U.reg(key, ro, 2)}, {va} offset:{base+imm}')
        e('s_waitcnt lgkmcnt(0)')
        for i in range(0, len(pend), 2):
            key, ro, t = pend[i]; assert pend[i+1][0] == key and pend[i+1][1] == ro+2 and ro % 4 == 0
            e(f'ds_write_b128 {vWL}, {v(t,4)} offset:{U.ldsoff(key, ro//4)}')
    e('s_waitcnt lgkmcnt(0)\ns_barrier')
    e.ts(2)

def setup_colchunk(e, vo, vr, sStride):
    for ii in range(3):
        e(f'v_add_u32 v10, {64*ii}, v1\nv_mul_u32_u24 v11, 2731, v10\nv_lshrrev_b32 v11, 16, v11')
        e(f'v_mul_u32_u24 v12, 24, v11\nv_sub_u32 v10, v10, v12\ns_lshl_b32 s40, {sW}, 3\nv_add_u32 v11, s40, v11\nv_mul_lo_u32 v11, v11, {sStride}\nv_lshl_add_u32 v{vo+ii}, v10, 4, v11')
    e(f'v_lshrrev_b32 v10, 4, v1\nv_lshlrev_b32 v10, 3, v10\nv_bfe_u32 v11, v1, 2, 2\nv_add_u32 v10, v10, v11\nv_mul_u32_u24 v10, 384, v10')
    e(f'v_and_b32 v11, 3, v1\nv_lshl_add_u32 v10, v11, 3, v10\ns_mul_i32 s40, {sW}, 96\nv_add_u32 v{vr}, s40, v10')

def col_chunks(e, srd, vo, vr, sBase, sStep, keyf):
    out = []
    for kp in range(20):
        def soff(kp=kp): e(f's_mul_i32 s45, {sXQ}, {0 if e.o.get("norot") else 4}\ns_add_u32 s45, s45, {kp}\ns_cmp_ge_u32 s45, 20\ns_cselect_b32 s43, 20, 0\ns_sub_u32 s45, s45, s43\ns_mul_i32 s45, {sStep}, s45\ns_add_u32 s45, s45, {sBase}')
        reads = []
        for t in range(3):
            for q in range(2): reads.append((keyf(t, kp//2), 4*(kp % 2)+2*q, f'v{vr}', 32*t + 1536*q))
        out.append(dict(srd=srd, voff=vo, soff=soff, reads=reads))
    return out

def xdma_list(k0, k1, sX, t0='s44', t1='s45'):
    per = (k1-k0)*2 // 4; L = []
    for i in range(per):
        x = f's_mul_i32 {t0}, {sW}, {per*1024}\ns_add_u32 {t0}, {t0}, {k0*2048}\ns_add_u32 {t1}, {t0}, {sX}\n' if i == 0 else f's_add_u32 {t1}, {t1}, 1024\n'
        L.append(f's_add_u32 m0, {t0}, {L_X + i*1024}\n' + x + f'buffer_load_dwordx4 {vL16}, {sWS}, {t1} offen sc1 lds' if i else x + f's_add_u32 m0, {t0}, {L_X}\ns_nop 0\nbuffer_load_dwordx4 {vL16}, {sWS}, {t1} offen sc1 lds')
    return L
def xdma(e, k0, k1, sX):
    for x in xdma_list(k0, k1, sX): e(x)

def memloads_def(e, MF, sM):
    def ld(k, fl=''):
        e(f'buffer_load_dwordx4 {v(MF+4*k,4)}, {vL16}, {sWS}, {sM[k//2]} offen offset:{(k%2)*1024} {fl}')
    return ld

def mem_offs(t, sM, sCR):
    for pr in range(5):
        t(f's_add_u32 s40, {sXQ}, {pr}\ns_cmp_ge_u32 s40, 5\ns_cselect_b32 s41, 5, 0\ns_sub_u32 s40, s40, s41\ns_lshl_b32 s40, s40, 14\ns_add_u32 {sM[pr]}, {sCR}, s40')

def smf(D, Af, B, idx='v4'): return f'v_smfmac_f32_16x16x64_bf16 {v(D,4)}, {v(Af,4)}, {B}, {idx}'
def mf32(D, Aop, Bop, C=None): return f'v_mfma_f32_16x16x32_bf16 {v(D,4)}, {Aop}, {Bop}, {"0" if C is None else v(C,4)}'
def mf16(D, Aop, Bop, C=None): return f'v_mfma_f32_16x16x16_bf16 {v(D,4)}, {Aop}, {Bop}, {"0" if C is None else v(C,4)}'

class Ring:
    def __init__(self, e, U, keys, base, ns):
        self.e, self.U, self.keys, self.base, self.ns = e, U, [k for k in keys if U.islds(k)], base, ns
        self.reset()
    def reset(self): self.q = 0; self.nq = 0; self.emitted = 0; self.pend = []
    def queue(self):
        if self.nq < len(self.keys):
            k = self.keys[self.nq]; r = self.base + 8*(self.nq % self.ns)
            self.pend += [f'ds_read_b128 {v(r+4*h,4)}, {vWL} offset:{self.U.ldsoff(k,h)}' for h in range(2)]
            self.nq += 1
    def fill(self, n=1):
        c = 0
        while self.pend and c < n: self.e(self.pend.pop(0)); self.emitted += 1; c += 1
        return c
    def prime(self):
        self.reset()
        for _ in range(self.ns): self.queue()
        self.fill(99)
    def wait(self, key, other=0):
        if self.U.islds(key):
            assert self.keys[self.q] == key
            need = 2*(self.q+1)
            if self.emitted < need: self.fill(need - self.emitted)
            self.e(f's_waitcnt lgkmcnt({self.emitted - need + other})')
    def op(self, D, Af, key):
        if not self.U.islds(key): self.e(smf(D, Af, self.U.reg(key))); return
        self.e(smf(D, Af, v(self.base + 8*(self.q % self.ns), 8)))
        self.q += 1; self.queue()
    def state(self): return (self.q, self.nq, self.emitted, tuple(self.pend))

NPRE = 7
def crit_pass1(e, ring, MF, sM, tiles, vMax, zero_regs):
    ld = memloads_def(e, MF, sM)
    slow, ok = e.lab('slow'), e.lab('ok')
    NPRE = e.o.get('npre', 7); PACE = e.o.get('pace', 14)
    def body(fl, first):
        zr = list(zero_regs); per = -(-len(zr)//(NPRE-1))
        for k in range(NPRE):
            ld(k, fl)
            if k == 0 and not first: e('s_waitcnt lgkmcnt(0)'); ring.prime()
            if k < NPRE-1:
                z = [zr.pop(0) for _ in range(min(per, len(zr)))]; left = max(0, PACE - len(z))
                for j, r in enumerate(z):
                    n = (left*(j+1))//len(z) - (left*j)//len(z)
                    e(f'v_mov_b32 v{r}, 0' + (f'\ns_nop {n-1}' if n else ''))
        issued = NPRE
        for k in range(10):
            e(f's_waitcnt vmcnt({issued-1-k})')
            if k == 0 and first: e.ts(2)
            if k == 1 and first and e.o.get('early', 0): e(f's_cbranch_vccnz {slow}')
            todo = ['ld'] if issued < 10 else []
            for i, (D, kf) in enumerate(tiles):
                ring.wait(kf(k))
                ring.op(D, MF+4*k, kf(k))
                if i == len(tiles)-1:
                    ring.fill(99)
                    if todo: ld(issued, fl); issued += 1
                    if k == 0 and first and e.o.get('early', 0): e(f'v_cmp_u_f32 vcc, v{MF}, v{MF+3}')
                elif ring.fill(1): pass
                elif todo: todo.pop(); ld(issued, fl); issued += 1
    e.ts(1)
    body('', True)
    end = ring.state()
    backs = []
    def nancheck(D, summed=False):
        c = e.lab('chk'); bk = e.lab('bk'); backs.append((c, bk))
        if summed: return [f'v_cmp_u_f32 vcc, v{D}, v{D+2}', f's_cbranch_vccnz {c}\n{bk}:']
        return [f'v_cmp_u_f32 s[62:63], v{D}, v{D+1}', f'v_cmp_u_f32 vcc, v{D+2}, v{D+3}', f's_or_b64 vcc, vcc, s[62:63]\ns_cbranch_scc1 {c}\n{bk}:']
    def slowpath():
        (c, bk), = backs
        e(f'{c}:\ns_cmp_lt_u32 s34, 2\ns_cbranch_scc1 {slow}\nv_mov_b32 {vMax}, 0')
        for k in range(10):
            r = MF+4*k; e(f'v_max3_u32 {vMax}, {vMax}, v{r}, v{r+1}\nv_max3_u32 {vMax}, {vMax}, v{r+2}, v{r+3}')
        e(f'v_cmp_eq_u32 vcc, -1, {vMax}\ns_cbranch_vccz {bk}')
        go = e.lab('go'); e.tmo(go); e(f'{go}:')
        e(f'{slow}:\ns_add_u32 s34, s34, 1\ns_nop 7')
        if e.o.get('damp', 0): e('s_mov_b64 s[30:31], 0')
        body('sc1', False)
        assert ring.state() == end
        e(f's_nop 7\ns_branch {ok}')
    e(f'{ok}:')
    return nancheck, slowpath

class Tok1:
    def __init__(self, e, U, tiles, XB, ST):
        self.e, self.U, self.tiles, self.XB, self.ST, self.id = e, U, tiles, XB, ST, e.lab('t')
    def lds_keys(self, kp): return [kf(kp//2) for (_, kf) in self.tiles if self.U.islds(kf(kp//2))]
    def reads(self, kp):
        b = kp % 3
        out = [f'ds_read_b128 {v(self.XB+8*b+4*tt,4)}, {vL16} offset:{L_X + kp*2048 + tt*1024}' for tt in range(2)]
        out += [f'ds_read_b128 {v(self.ST+8*b+4*i,4)}, {vWL} offset:{self.U.ldsoff(k, kp%2)}' for i, k in enumerate(self.lds_keys(kp))]
        out[-1] += f' ;@{self.id}_{kp}'
        return out
    def prologue(self): return self.reads(0) + self.reads(1)
    def run(self, hooks, extra, late=None):
        e, U = self.e, self.U
        extra = list(extra); hk = list(hooks[-1]()) if -1 in hooks else []; late = late or {}
        for kp in range(20):
            nxt = self.reads(kp+2) if kp+2 < 20 else []
            e(f'@wl {self.id}_{kp}')
            b = kp % 3; lk = self.lds_keys(kp); n = 0
            for (acc, kf) in self.tiles:
                k = kf(kp//2)
                Aop = v(self.ST+8*b+4*lk.index(k), 4) if U.islds(k) else U.reg(k, 4*(kp % 2), 4)
                for tt in range(2):
                    e(mf32(acc+4*tt, Aop, v(self.XB+8*b+4*tt, 4), None if kp == 0 else acc+4*tt)); n += 1
                    if (kp, n) in late: e(late[(kp, n)])
                    elif nxt: e(nxt.pop(0))
                    elif hk and n % 4 == 1: e(hk.pop(0))
                    else:
                        c = 0
                        while extra and c < 2:
                            if extra[0] == '-':
                                if c == 0: extra.pop(0)
                                break
                            x = extra.pop(0)
                            if x == '|':
                                if c: break
                                continue
                            e(x); c += 2 if x.startswith(('v_exp', 'v_rcp', 'v_perml', 'buffer_', 'ds_', 's_')) or 'barrier' in x else 1
            assert not nxt
            if kp in hooks: hk += hooks[kp]()
        assert not hk and not [x for x in extra if x not in '|-'], (hk, extra)

def salu_groups(t):
    sal = [x.strip() for x in t.L]; L = []; cur = []
    for x in sal:
        if len(cur) == 3 or (x.startswith('s_cmp') and len(cur) == 2): L.append('\n'.join(cur)); cur = []
        cur.append(x)
    L.append('\n'.join(cur))
    return L

def schedule(e, main, ops, pos0, burst=99):
    pos = dict(pos0); n0 = len(e.L); ops = list(ops); main = list(main)
    cur = lambda: sum(1 for x in e.L[n0:] if not x.strip().endswith(':'))
    def dist(d):
        L = [x.strip() for x in e.L[n0:] if not x.strip().endswith(':')]
        a = len(L) - pos[d] - 1
        ism = lambda x: x.startswith(('v_mfma', 'v_smfmac'))
        if pos[d] < 0 or ism(L[pos[d]]):
            later = [i for i in range(max(pos[d]+1, 0), len(L)) if ism(L[i])]
            if later: a = max(a, 4*len(later) + len(L) - later[-1] - 1)
        return a
    def ready(o): return all(d in pos and dist(d) >= k for d, k in o[3])
    def emit(o): pos[o[0]] = cur(); e(o[1]); ops.remove(o)
    def fillers(n):
        for o in [o for o in ops if o[2] == 's' and ready(o)]: emit(o)
        for _ in range(n):
            c = [o for o in ops if o[2] == 'v' and ready(o)]
            if c: emit(c[0])
    while main:
        c = [o for o in ops if o[2] == 'm' and ready(o)]
        if c: emit(c[0]); fillers(2); continue
        nm, fn = main.pop(0); c0 = cur(); fn(); L = [x.strip() for x in e.L[n0:] if not x.strip().endswith(':')]; pos[nm] = max(i for i in range(c0, len(L)) if L[i].startswith('v_smf')); fillers(1)
        if len([o for o in ops if o[2] == 'v' and all(d in pos for d, _ in o[3])]) >= burst: fillers(1)
    while ops:
        c = [o for o in ops if ready(o)]
        if c: emit(c[0])
        else: e('s_nop 0')

def flagclear_bulk(e, blk, vt):
    e(f'v_lshlrev_b32 v{vt}, 22, v1\ns_lshl_b32 s40, {sSIDE}, 13\ns_add_u32 s40, s40, s42\ns_add_u32 s40, s40, {BULK + blk*BS}')
    e(f'v_mov_b32 v{vt+1}, -1\ns_mov_b32 exec_hi, 0\nbuffer_store_dword v{vt+1}, v{vt}, {sWS}, s40 offen sc1\ns_mov_b32 exec_hi, -1')

def role_vo(e):
    keys_l = [('v', 2, k) for k in range(10)] + [('v', 1, k) for k in (2, 5, 8)]
    keys_r = [('o', u, k) for u in range(10) for k in range(3)] + [('v', t, k) for t in range(2) for k in range(10) if ('v', t, k) not in keys_l]
    U = Units(keys_r, keys_l)
    sFFN, sSTR, sWB, sSTP, sOB = 's29', 's30', 's31', 's32', 's33'
    sCR, sCR2, sB0, sB1, sX, sM = 's35', 's36', 's37', 's38', 's39', ('s46', 's47', 's48', 's58', 's59')
    sSL, sFR = 's49', 's50'
    L_VX, L_VM = L_MISC, L_MISC + 12288
    e('L_VO:')
    e.srd(8, 4, 7864320); e.srd(12, 5, 7864320)
    e(f's_lshl_b32 {sU}, {sXQ}, 3\ns_add_u32 {sU}, {sU}, {sJ}\ns_sub_u32 {sU}, {sU}, 8\ns_mov_b32 {sFFN}, 0\ns_mov_b32 {sSTR}, 12288\ns_mov_b32 s42, {sU}\ns_branch L_VF')
    e('L_FFN:')
    e.srd(8, 8, 1966080); e.srd(12, 9, 1966080)
    e(f's_lshl_b32 {sU}, {sXQ}, 1\ns_add_u32 {sU}, {sU}, {sJ}\ns_sub_u32 {sU}, {sU}, 26\ns_mov_b32 {sFFN}, 1\ns_mov_b32 {sSTR}, 3072\ns_add_u32 s42, {sU}, 32')
    e('L_VF:')
    e(f's_lshr_b32 s40, s42, 3\ns_lshl_b32 s40, s40, 14\ns_and_b32 s41, s42, 7\ns_lshl_b32 s41, s41, 10\ns_add_u32 {sSL}, s40, s41\ns_lshl_b32 s51, s42, 7')
    e(f's_mul_i32 {sWB}, {sU}, 384\ns_lshl_b32 {sSTP}, {sSTR}, 5\ns_mul_i32 {sOB}, {sU}, 245760')
    common_wsetup(e)
    VO1, VR1, VO2, VR2 = 16, 19, 20, 23
    setup_colchunk(e, VO1, VR1, sSTR)
    for ii in range(3):
        e(f's_mul_i32 s40, {sW}, 192\ns_add_u32 s40, s40, {64*ii}\nv_add_u32 v10, s40, v1\nv_mul_u32_u24 v11, 1639, v10\nv_lshrrev_b32 v11, 16, v11')
        e(f'v_mul_u32_u24 v12, 40, v11\nv_sub_u32 v12, v10, v12\nv_mul_u32_u24 v11, 1280, v11\nv_lshl_add_u32 v{VO2+ii}, v12, 4, v11')
        e(f'v_mov_b32 v11, 0x40000000\nv_cmp_gt_u32 vcc, 640, v10\nv_cndmask_b32 v{VO2+ii}, v11, v{VO2+ii}, vcc')
    e(f'v_lshrrev_b32 v10, 2, v1\nv_mul_u32_u24 v10, 640, v10\nv_and_b32 v11, 3, v1\nv_lshl_add_u32 v10, v11, 3, v10\ns_mul_i32 s40, {sW}, 160\nv_add_u32 v{VR2}, s40, v10')
    chunks = col_chunks(e, sA, VO1, VR1, sWB, sSTP, lambda t, k: ('v', t, k))
    for r16 in range(12):
        for hf in range(2):
            def soff(r16=r16, hf=hf): e(f's_add_u32 s45, {sOB}, {r16*16*1280 + hf*640}')
            chunks.append(dict(srd=sB, voff=VO2, soff=soff, reads=[(('o', 5*hf+uu, r16//4), 2*(r16 % 4), f'v{VR2}', 32*uu) for uu in range(5)]))
    e(f'v_and_b32 v13, 15, v1\nv_lshrrev_b32 v14, 4, v1')
    e(f'v_and_b32 v4, 1, v1\nv_mul_u32_u24 v4, 0xaaaa, v4\nv_add_u32 v4, 0x4444, v4')
    for (dst, tau) in ((5, 0), (6, 1)):
        e(f's_mul_i32 s40, {sW}, 3\ns_add_u32 s40, s40, {tau}\ns_lshr_b32 s41, s40, 1\ns_and_b32 s40, s40, 1')
        e(f's_lshl_b32 s43, s41, 10\ns_lshl_b32 s44, s40, 3\ns_add_u32 s43, s43, s44\ns_add_u32 s43, s43, {L_VX}\nv_add_u32 v{dst}, s43, {vL16}')
        e(f's_lshl_b32 s43, s41, 9\ns_lshl_b32 s44, s40, 2\ns_add_u32 s43, s43, s44\ns_add_u32 s43, s43, {L_VM}\nv_mov_b32 v{dst+2}, s43')
    e('''v_lshrrev_b32 v10, 3, v13
    v_lshlrev_b32 v10, 8, v10
    v_bfe_u32 v11, v13, 1, 1
    v_lshl_add_u32 v10, v11, 4, v10
    v_bfe_u32 v11, v13, 2, 1
    v_lshl_add_u32 v10, v11, 3, v10
    v_and_b32 v11, 1, v13
    v_lshl_add_u32 v10, v11, 1, v10
    v_lshl_add_u32 v10, v14, 6, v10
    v_add_u32 v7, v7, v10
    v_add_u32 v8, v8, v10''')
    e(f'''v_and_b32 v10, 1, v14
    v_lshrrev_b32 v11, 1, v14
    v_lshl_add_u32 v12, v10, 1, v11
    s_mul_i32 s40, {sW}, 5
    s_add_u32 s40, s40, {B_VOM}
    s_lshl_b32 s40, s40, 14
    s_lshl_b32 s41, {sU}, 8
    s_add_u32 s40, s40, s41
    v_lshl_add_u32 v15, v13, 4, s40
    v_lshl_add_u32 v9, v12, 14, v15
    v_lshlrev_b32 v10, 3, v10
    v_add_u32 v11, 23, v11
    v_lshl_add_u32 v11, v11, 14, v15
    v_add_u32 v11, v11, v10
    v_add_u32 v10, {19*BS}, v9
    v_add_u32 v15, {4*BS}, v9
    v_cmp_eq_u32 vcc, 0, v12
    v_cndmask_b32 v10, v10, v15, vcc
    v_mov_b32 v12, 0''')
    def clear_vom(so):
        for r in range(124, 128): e(f'v_mov_b32 v{r}, -1')
        e(f'buffer_store_dwordx4 v[124:127], v9, {sWS}, {so} offen sc1\nbuffer_store_dwordx4 v[124:127], v10, {sWS}, {so} offen sc1\nbuffer_store_dwordx2 v[124:125], v11, {sWS}, {so} offen sc1')
    def mid(): e('s_waitcnt lgkmcnt(0)')
    load_weights(e, U, chunks, mid)
    e.wait_start(vt=30)
    e(f's_lshl_b32 {sX}, {sSIDE}, 3\ns_add_u32 {sX}, {sX}, {sXQ}\ns_lshl_b32 {sX}, {sX}, 13\ns_add_u32 {sX}, {sX}, {XN}')
    xdma(e, 0, 20, sX)
    XB, ST, AC1, VF, AC2, PK = 40, 64, 92, 84, 16, 32
    T1 = Tok1(e, U, [(AC1+8*t, (lambda k, t=t: ('v', t, k))) for t in range(3)], XB, ST)
    e(f's_sub_u32 {sS}, {sSIDE}, 2\ns_mov_b64 s[54:55], 0\ns_mov_b64 s[56:57], 0\ns_mov_b64 s[60:61], 0\ns_mov_b32 s53, 1\ns_mov_b32 s43, 0\ns_mov_b32 s52, 0')
    e('s_waitcnt vmcnt(0)\ns_barrier')
    for x in T1.prologue(): e(x.split(';@')[0])
    e('s_waitcnt lgkmcnt(0)\ns_branch L_VF_B')
    e('L_VF_loop:')
    e.ts(0)
    for kp in range(6):
        for tt in range(2): e(f'ds_read_b128 {v(VF+8*kp+4*tt,4)}, {vL16} offset:{L_VX + (tt*6+kp)*1024} ;@vf{kp}')
    t = G(**e.o); t(f's_add_u32 {sX}, {sX}, 131072\ns_mov_b32 s53, {sFFN}\ns_mov_b64 s[60:61], -1'); t.bulk_off(sB0)
    t(f's_add_u32 {sB1}, {sB0}, {2<<20}\ns_xor_b32 {sB1}, {sB1}, 8192')
    t(f's_mul_i32 s42, {sW}, {25*BS}\ns_add_u32 s42, s42, {sSL}\ns_add_u32 s43, s42, {sB1}\ns_add_u32 s42, s42, {sB0}')
    t(f's_add_u32 s52, {sB0}, s51\ns_add_u32 s52, s52, {B_VF*BS}')
    t(f's_cmp_eq_u32 {sFFN}, 0\ns_cselect_b64 s[54:55], -1, 0\ns_cmp_eq_u32 {sW}, 0\ns_cselect_b64 s[56:57], 1, 0')
    sa = salu_groups(t)
    dm = xdma_list(0, 20, sX); dm[-1] += ' ;@xdma'
    def fin(u):
        ac = AC2+8*(u % 2); pk = PK+4*(u % 2); sr = 's42' if u < 5 else 's43'
        c = [f'v_cvt_pk_bf16_f32 v{pk+i}, v{ac+4*(i&1)+2*(i>>1)}, v{ac+4*(i&1)+2*(i>>1)+1}' for i in (0, 2, 1, 3)]
        st = f'buffer_store_dwordx4 {v(pk,4)}, {vL16}, {sWS}, {sr} offen sc1'
        return [c[0]+'\n'+c[1], c[2]+'\n'+c[3], (f's_add_u32 {sr}, {sr}, {5*BS}\n' if u % 5 else '') + st]
    pro = T1.prologue()
    for u in range(10):
        ac = AC2+8*(u % 2); pend = fin(u-1) if u else []
        n = 0
        for kp in range(6):
            if u == 0: e(f'@wl vf{kp}')
            for tt in range(2):
                e(mf32(ac+4*tt, v(VF+8*kp+4*tt, 4), U.reg(('o', u, kp//2), 4*(kp % 2), 4), None if kp == 0 else ac+4*tt)); n += 1
                if u == 0:
                    if sa: e(sa.pop(0))
                elif n in (2, 3, 4): e(pend.pop(0))
                elif n in (7, 11) and dm: e(dm.pop(0))
                elif u == 9 and n == 5: e('@wv xdma\ns_barrier')
                elif u == 9 and n >= 6 and pro: e(pro.pop(0))
        assert not sa
    assert not pro and not dm
    e('L_VF_B:')
    e.ts(6)
    t = G(**e.o); t.crit_off(sCR); t.crit_off(sCR2, 2); mem_offs(t, sM, sCR)
    t(f's_lshl_b32 s40, {sW}, 2\ns_add_u32 s40, s40, {sXQ}\ns_lshl_b32 s40, s40, 8\ns_add_u32 {sFR}, {sCR}, s40\ns_add_u32 {sFR}, {sFR}, {B_FL*BS}\ns_mov_b32 s34, 0')
    f9 = fin(9); x = f9[2].split('\n')
    ex = [f9[0], '|', f9[1], '|', f'{x[0]}\ns_mov_b64 exec, s[60:61]\n{x[1]}\ns_mov_b64 exec, -1'] + salu_groups(t)
    ex += [f'v_mov_b32 v{r}, -1' for r in range(124, 128)]
    def hkflag():
        e('s_waitcnt vmcnt(0)\ns_barrier')
        return [f's_mov_b64 exec, s[56:57]\nbuffer_store_dword v12, v12, {sWS}, s52 offen sc1\ns_mov_b64 exec, -1']
    def hkclr(): return [f's_mov_b64 exec, s[54:55]\nbuffer_store_{x}, {sWS}, {sCR2} offen sc1\ns_mov_b64 exec, -1' for x in ('dwordx4 v[124:127], v9', 'dwordx4 v[124:127], v10', 'dwordx2 v[124:125], v11')]
    T1.run({7: hkflag, 11: hkclr}, ex)
    e.ts(7)
    l = e.lab('nsilu'); e(f's_cmp_lg_u32 {sFFN}, 0\ns_cbranch_scc1 L_silu\n{l}:')
    n0 = len(e.L); e('L_silu:\ns_nop 7')
    for r in range(AC1, AC1+24, 2):
        e(f'v_cvt_pk_bf16_f32 v16, v{r}, v{r+1}\nv_lshlrev_b32 v{r}, 16, v16\nv_and_b32 v{r+1}, 0xffff0000, v16')
        e(f'v_mul_f32 v16, {f2u(-LOG2E)}, v{r}\nv_mul_f32 v17, {f2u(-LOG2E)}, v{r+1}\nv_exp_f32 v16, v16\nv_exp_f32 v17, v17\nv_add_f32 v16, 1.0, v16\nv_add_f32 v17, 1.0, v17')
        e(f'v_rcp_f32 v16, v16\nv_rcp_f32 v17, v17\nv_mul_f32 v{r}, v{r}, v16\nv_mul_f32 v{r+1}, v{r+1}, v17')
    e(f's_branch {l}'); silu_code = e.L[n0:]; del e.L[n0:]
    for t in range(3):
        for tt in range(2):
            r = AC1+8*t+4*tt; d = 16+4*t+2*tt
            e(f'v_cvt_pk_bf16_f32 v{d}, v{r}, v{r+1}\nv_cvt_pk_bf16_f32 v{d+1}, v{r+2}, v{r+3}')
            e(f'ds_write_b64 {"v6" if t == 1 else "v5"}, {v(d,2)} offset:{tt*6144 + (1024 if t == 2 else 0)}')
    e(f's_cmp_lg_u32 s53, 0\ns_cbranch_scc1 L_VF_skip')
    MF, AC, RS, AD = 16, 56, 68, 92
    order = [('v', t, k) for k in range(10) for t in (2, 1, 0)]
    ring = Ring(e, U, order, RS, 3)
    ring.prime()
    e.ts(5)
    e.poll('v12', sFR, 132)
    e('s_barrier')
    nanchk, slow = crit_pass1(e, ring, MF, sM, [(AC+4*t, (lambda k, t=t: ('v', t, k))) for t in (2, 1, 0)], 'v13', list(range(AC, AC+12)) + list(range(AD, AD+40)))
    e.ts(10)
    nc = nanchk(AC+8, True)
    for t in (2, 1, 0):
        d = AC+4*t
        e(f'v_add_f32 v{d}, v{d}, v{d+1}\nv_add_f32 v{d+2}, v{d+2}, v{d+3}\nv_cvt_pk_bf16_f32 v{d+1}, v{d}, v{d+2}')
        va = 'v8' if t == 1 else 'v7'; o = 512 if t == 2 else 0
        e(f'ds_write_b16 {va}, v{d+1} offset:{o}\nds_write_b16_d16_hi {va}, v{d+1} offset:{o+32}')
    for x in nc: e(x)
    e('s_waitcnt lgkmcnt(0)\ns_barrier')
    for k in range(3): e(f'ds_read_b128 {v(MF+4*k,4)}, {vL16} offset:{L_VM + k*1024}')
    e.ts(3)
    OT = 28
    main = []; ops = []
    for pi in range(5):
        for u in (2*pi, 2*pi+1):
            for k in range(3):
                def fn(pi=pi, k=k, u=u):
                    if u == 0: e(f's_waitcnt lgkmcnt({2-k})')
                    e(smf(AD+4*u, MF+4*k, U.reg(('o', u, k))))
                main.append((f's{u}_{k}', fn))
        for u in (2*pi, 2*pi+1):
            d = AD+4*u; o = OT+u
            ops.append((f'a{u}', f'v_add_f32 v{d}, v{d}, v{d+1}', 'v', [(f's{u}_2', 8)]))
            ops.append((f'b{u}', f'v_add_f32 v{d+2}, v{d+2}, v{d+3}', 'v', [(f'a{u}', 0)]))
            ops.append((f'c{u}', f'v_cvt_pk_bf16_f32 v{o}, v{d}, v{d+2}', 'v', [(f'b{u}', 0)]))
        o = OT+2*pi
        ops.append((f'w{pi}', f'v_permlane32_swap_b32 v{o}, v{o+1}', 'v', [(f'c{2*pi}', 2), (f'c{2*pi+1}', 2)]))
        if pi in (1, 3):
            g0 = OT+4*(pi//2)
            ops.append((f'x{pi}_0', f'v_permlane16_swap_b32 v{g0}, v{g0+2}', 'v', [(f'w{pi}', 2), (f'w{pi-1}', 2)]))
            ops.append((f'x{pi}_1', f'v_permlane16_swap_b32 v{g0+1}, v{g0+3}', 'v', [(f'w{pi}', 2), (f'w{pi-1}', 2)]))
            ops.append((f'st{pi}', f'buffer_store_dwordx4 {v(g0,4)}, v{9+pi//2}, {sWS}, {sCR} offen sc1', 'v', [(f'x{pi}_1', 0), (f'x{pi}_0', 0)]))
        if pi == 4:
            ops.append(('st4', f'buffer_store_dwordx2 {v(o,2)}, v11, {sWS}, {sCR} offen sc1', 'v', [('w4', 0)]))
    schedule(e, main, ops, {}, burst=3)
    if e.o.get('ackts'): e.ts(9); e('s_waitcnt vmcnt(0)')
    e.ts(4)
    e.tsflush(11, 60)
    e('L_VF_next:')
    e(f's_add_u32 {sS}, {sS}, 2\ns_cmp_lt_u32 {sS}, {e.o["nseg"]}\ns_cbranch_scc1 L_VF_loop\ns_branch L_end')
    e('L_VF_skip:\ns_waitcnt lgkmcnt(0)\ns_barrier\ns_branch L_VF_next')
    slow()
    e.L += silu_code

def dppred(op, m):
    return [f'{op}_dpp v{m}, v{m}, v{m} {c} row_mask:0xf bank_mask:0xf' for c in ('quad_perm:[1,0,3,2]', 'quad_perm:[2,3,0,1]', 'row_half_mirror', 'row_ror:8')]

def role_qk(e):
    keys_l = [('q', 2, k) for k in range(10)] + [('k', 1, k) for k in (5, 7, 9)]
    K1ORD = [0, 5, 1, 2, 7, 3, 4, 9, 6, 8]
    keys_r = [(m, t, k) for m in 'qk' for t in range(3) for k in range(10) if (m, t, k) not in keys_l]
    U = Units(keys_r, keys_l)
    sSTR, sWB, sSTP = 's30', 's31', 's32'
    sCR, sCR2, sB0, sX, sM = 's35', 's36', 's37', 's39', ('s46', 's47', 's48', 's56', 's57')
    sFR, sPT, sPTc, sLead, sRP, sPTo = 's50', 's51', 's52', 's53', 's49', 's33'
    sC2 = 's[54:55]'
    mN8, mMM, mV, mTA = 's[56:57]', 's[58:59]', 's[60:61]', 's[64:65]'
    L_SM, L_TM = L_MISC, L_MISC + 12288
    vZ = 'v6'; SEL = 12
    CM = [f's[{r}:{r+1}]' for r in (8, 10, 12, 14, 94, 96, 98, 100)]
    e('L_QK:')
    e.srd(8, 2, 7864320); e.srd(12, 3, 7864320)
    e(f's_lshl_b32 {sU}, {sXQ}, 3\ns_add_u32 {sU}, {sU}, {sJ}\ns_mov_b32 {sSTR}, 12288\ns_mul_i32 {sWB}, {sU}, 384\ns_lshl_b32 {sSTP}, {sSTR}, 5')
    e(f's_mov_b32 s56, 0x00ff00ff\ns_mov_b32 s57, 0x00ff00ff\ns_mov_b32 s58, 0\ns_mov_b32 s59, 0x00ff00ff\ns_mov_b32 s60, 0x03ff03ff\ns_mov_b32 s61, 0x03ff03ff\ns_mov_b32 s54, {CSC}\ns_mov_b32 s55, {CSC}')
    e(f's_lshl_b32 s40, {sJ}, 2\ns_add_u32 s40, s40, {sW}\ns_cmp_eq_u32 s40, 3\ns_cselect_b32 {sLead}, 1, 0')
    e(f's_cmp_lt_u32 {sW}, 2\ns_cselect_b64 s[42:43], {mV}, 0\ns_mov_b32 s24, s42\ns_add_u32 s40, {sW}, 1\ns_bitcmp1_b32 s40, 1\ns_cselect_b64 {mTA}, -1, 0')
    common_wsetup(e)
    VO1, VR1 = 16, 19
    setup_colchunk(e, VO1, VR1, sSTR)
    cq = col_chunks(e, sA, VO1, VR1, sWB, sSTP, lambda t, k: ('q', t, k))
    ck = col_chunks(e, sB, VO1, VR1, sWB, sSTP, lambda t, k: ('k', t, k))
    chunks = [c for p in zip(cq, ck) for c in p]
    e(f'v_and_b32 v20, 15, v1\nv_lshrrev_b32 v21, 4, v1\nv_and_b32 v22, 1, v21\nv_lshrrev_b32 v23, 1, v21')
    e(f'v_and_b32 v4, 1, v1\nv_mul_u32_u24 v4, 0xaaaa, v4\nv_add_u32 v4, 0x4444, v4')
    e(f"""s_mul_i32 s40, {sW}, 1280
    s_add_u32 s40, s40, {L_SM}
    v_mul_u32_u24 v5, 160, v20
    v_lshl_add_u32 v5, v21, 4, v5
    v_add_u32 v5, s40, v5
    v_lshrrev_b32 v24, 3, v20
    v_mul_u32_u24 v24, {6144-1280}, v24
    v_add_u32 v5, v5, v24
    s_and_b32 s43, {sW}, 1
    s_lshl_b32 s43, s43, 2
    v_add_u32 v24, s43, v21
    v_mul_u32_u24 v0, 160, v24
    v_and_b32 v25, 9, v20
    v_lshl_add_u32 v0, v25, 4, v0
    v_bfe_u32 v25, v20, 1, 1
    v_lshl_add_u32 v0, v25, 6, v0
    v_bfe_u32 v25, v20, 2, 1
    v_lshl_add_u32 v0, v25, 5, v0
    v_mov_b32 {vZ}, 0
    s_lshl_b32 s40, {sW}, 10
    v_add_u32 v7, s40, {vL16}
    s_lshr_b32 s41, {sW}, 1
    s_lshl_b32 s40, s41, 9
    s_add_u32 s40, s40, {L_TM}
    v_lshl_add_u32 v8, v20, 4, s40
    v_lshl_add_u32 v8, v23, 8, v8
    v_lshl_add_u32 v8, v22, 3, v8
    s_lshl_b32 s40, s41, 4
    v_add_u32 v10, s40, v20
    v_lshlrev_b32 v11, 2, v21
    v_sub_u32 v10, v10, v11
    v_lshlrev_b32 v11, 4, v20
    v_lshl_add_u32 v11, v22, 3, v11
    v_lshl_add_u32 v11, v23, 2, v11""")
    e(f"""s_mul_i32 s41, s41, 40
    s_add_u32 s40, s41, {sU}
    s_lshr_b32 s42, s40, 3
    s_lshl_b32 s42, s42, 14
    s_and_b32 s40, s40, 7
    s_lshl_b32 s40, s40, 10
    s_add_u32 {sPTc}, s42, s40
    s_lshr_b32 s40, {sU}, 2
    s_add_u32 s40, s40, s41
    s_add_u32 s40, s40, 32
    s_lshr_b32 s42, s40, 3
    s_lshl_b32 s42, s42, 14
    s_and_b32 s40, s40, 7
    s_lshl_b32 s40, s40, 10
    s_add_u32 s42, s42, s40
    s_and_b32 s40, {sU}, 3
    s_lshl_b32 s40, s40, 8
    s_add_u32 s42, s42, s40
    s_sub_u32 s42, s42, {sPTc}
    v_add_u32 v11, s42, v11
    s_add_u32 {sPTc}, {sPTc}, {B_PT*BS}""")
    e(f"""v_lshlrev_b32 v25, 5, v24
    v_and_b32 v26, 1, v20
    v_lshl_add_u32 v27, v26, 4, v25
    v_and_b32 v26, 3, v20
    v_lshl_add_u32 v25, v26, 3, v25
    s_lshr_b32 s40, {sU}, 1
    s_lshl_b32 s40, s40, 8
    s_and_b32 s41, {sU}, 1
    s_lshl_b32 s41, s41, 3
    s_add_u32 s40, s40, s41
    s_add_u32 s40, s40, {B_P*BS}
    v_add_u32 v27, s40, v27
    s_lshr_b32 s41, {sU}, 3
    s_lshl_b32 s41, s41, 14
    s_and_b32 s40, {sU}, 7
    s_lshl_b32 s40, s40, 9
    s_add_u32 s40, s40, s41
    s_add_u32 s40, s40, {(B_P+1)*BS}
    v_bfe_u32 v26, v20, 2, 1
    v_lshl_add_u32 v25, v26, 8, v25
    v_add_u32 v9, s40, v25
    v_cmp_gt_u32 vcc, 8, v20
    v_cndmask_b32 v9, v27, v9, vcc""")
    e('v_lshlrev_b32 v25, 1, v21\nv_sub_u32 v25, v20, v25\nv_mov_b32 v26, 0x3f803f80')
    for r, j in ((0, 0), (1, 1), (2, 8), (3, 9)):
        e(f'v_cmp_eq_u32 vcc, {j}, v25\nv_cndmask_b32 v{SEL+r}, 0, v26, vcc')
    def mid(): e('s_waitcnt lgkmcnt(0)')
    load_weights(e, U, chunks, mid)
    e.wait_start(vt=30)
    e(f's_mov_b32 {sS}, {sSIDE}\ns_lshl_b32 {sX}, {sS}, 3\ns_add_u32 {sX}, {sX}, {sXQ}\ns_lshl_b32 {sX}, {sX}, 13\ns_add_u32 {sX}, {sX}, {XN}')
    xdma(e, 0, 20, sX)
    e(f's_mov_b64 s[66:67], 0\ns_mov_b32 {sPT}, 0\ns_waitcnt vmcnt(0) lgkmcnt(0)\ns_barrier')
    X = 16
    SA = [116, 124, 132, 28, 32]
    def ta_pre():
        L = [f'ds_write_b128 v7, {v(SA[i],4)} offset:{L_MISC + i*4096}' for i in range(3)]
        L += [f's_mov_b32 exec_lo, 0\nds_write_b128 v7, {v(SA[3+tq],4)} offset:{L_TM - 512 + tq*512} ;@sw\ns_mov_b32 exec_lo, -1' for tq in range(2)]
        L = [y for x in L for y in (x, '-')]
        L += [f's_lshr_b32 s40, {sW}, 1\ns_lshl_b32 s40, s40, 12', f'v_add_u32 v38, s40, {vL16}', 'v_add_u32 v39, s40, v38', f'v_mov_b32 v37, {f2u(-1e9 * 192**0.5)}', '-', '@wl sw\ns_barrier']
        dst = [(X, X+4, X+8), (26, 30, 34), (116, 124, 132), (26, 30, 34)]
        rd = lambda w: [f'ds_read_b128 {v(dst[w][0],4)}, v38 offset:{L_MISC + w*1024}', f'ds_read_b128 {v(dst[w][1],4)}, v39 offset:{L_MISC + w*1024}', f'ds_read_b64 {v(dst[w][2],2)}, v8 offset:{w*1024} ;@sr{w}']
        ad = lambda w: ['|'] + [(f'@wl sr{w}\n' if i == 0 else '') + f'v_add_f32 v{X+i}, v{X+i}, v{dst[w][i//4] + i % 4}' for i in range(10)]
        return L + rd(0) + rd(1) + rd(2) + ['-'] + ad(1) + rd(3) + ad(2) + ad(3)
    def ta_ops(inter=True):
        m, t = 34, 36
        L = []
        for i in range(8): L.append(f'v_cndmask_b32 v{X+i}, v37, v{X+i}, {CM[i]}')
        L += [f'v_max3_f32 v{m}, v{X}, v{X+1}, v{X+2}'] + [f'v_max3_f32 v{m}, v{m}, v{X+i}, v{X+i+1}' for i in (3, 5, 7)] + [f'v_max_f32 v{m}, v{m}, v{X+9}']
        def xs(op):
            o = []
            for st in (16, 32): o += [f'v_mov_b32 v{t}, v{m}\ns_nop 0', '|', f'v_permlane{st}_swap_b32 v{m}, v{t}', f'{op} v{m}, v{m}, v{t}']
            return o
        L += xs('v_max_f32')
        L += [f'v_mul_f32 v{m}, s54, v{m}']
        L += [f'v_fma_f32 v{X+i}, v{X+i}, s54, -v{m}' for i in range(10)]
        L += [f'v_exp_f32 v{X+i}, v{X+i}' for i in range(10)]
        L += [f'v_add_f32 v{m}, v{X}, v{X+1}'] + [f'v_add_f32 v{m}, v{m}, v{X+i}' for i in range(2, 10)]
        L += xs('v_add_f32')
        L += ['|', f'v_rcp_f32 v{m}, v{m}']
        L += [f'v_mul_f32 v{X+i}, v{X+i}, v{m}' for i in range(10)]
        L += [f'v_cvt_pk_bf16_f32 v{28+d}, v{X+4*(d&1)+2*(d>>1)}, v{X+4*(d&1)+2*(d>>1)+1}' for d in range(4)] + [f'v_cvt_pk_bf16_f32 v32, v{X+8}, v{X+9}', '|']
        L += [f's_mov_b64 exec, s[66:67]\nbuffer_store_dwordx4 v[28:31], {vL16}, {sWS}, {sPTo} offen sc1\ns_mov_b64 exec, -1', '|',
              f's_mov_b64 exec, s[66:67]\nbuffer_store_dword v32, v11, {sWS}, {sPTo} offen sc1\ns_mov_b64 exec, -1', '|']
        fp = f's_mov_b64 exec, s[92:93]\nbuffer_store_dword {vZ}, {vL16}, {sWS}, s32 offen sc1\ns_mov_b64 exec, -1'
        pos = len(L) - (e.o.get('fplead', 30) if inter else 0)
        L[pos:pos] = ['|', fp]
        return L
    for i in range(8): e(f'v_cmp_le_i32 {CM[i]}, {(i//4)*16 + i % 4}, v10')
    e(f's_mov_b64 s[92:93], 0\ns_mov_b32 s32, 0\ns_mul_i32 s68, {sLead}, 0x10001\ns_mov_b32 s69, s68\ns_mov_b32 s42, s24\ns_mov_b32 s43, s24')
    e('L_QK_loop:')
    e.ts(0)
    AC, XB, ST = 40, 88, 112
    Q = lambda tt: 16+6*tt
    Kt = lambda tt: 28+6*tt
    tiles = [(AC+8*(3*mi+t), (lambda k, m=m, t=t: (m, t, k))) for mi, m in enumerate('qk') for t in range(3)]
    T1 = Tok1(e, U, tiles, XB, ST)
    for x in T1.prologue(): e(x)
    e(f's_mov_b32 {sPTo}, {sPT}')
    def hk0():
        L = xdma_list(12, 20, sX); L[-1] += f' ;@xlate\ns_add_u32 {sX}, {sX}, 131072'; return L
    def hk(k0, k1):
        def f(): e('s_barrier'); return xdma_list(k0, k1, sX)
        return f
    def hk9(): e('@wv xlate\ns_barrier'); return []
    t = G(**e.o); t.crit_off(sCR); t.crit_off(sCR2, 2); t.bulk_off(sB0); t(f's_add_u32 {sPT}, {sB0}, {sPTc}'); mem_offs(t, sM, sCR)
    t(f's_lshl_b32 s40, {sW}, 2\ns_add_u32 s40, s40, {sXQ}\ns_lshl_b32 s40, s40, 8\ns_add_u32 {sFR}, {sCR}, s40\ns_add_u32 {sFR}, {sFR}, {B_FL*BS}\ns_mov_b32 s34, 0\ns_mov_b64 s[66:67], {mTA}')
    t(f's_mov_b64 s[30:31], s[68:69]\ns_lshl_b32 s40, {sXQ}, 10\ns_add_u32 s40, s40, {sCR}\ns_add_u32 s38, s40, {B_FL*BS + 128}\ns_add_u32 s32, s40, {B_FL*BS + 4096}')
    t(f's_mov_b64 s[92:93], s[68:69]')
    cl = salu_groups(t) + [f'v_mov_b32 v{r}, -1' for r in range(36, 40)]
    cl += [f's_mov_b64 exec, s[42:43]\nbuffer_store_dwordx2 v[36:37], v9, {sWS}, {sCR2} offen sc1\ns_mov_b64 exec, -1', '-',
           f'buffer_store_dwordx4 v[36:39], {vL16}, {sWS}, {sPT} offen sc1', '-', f'buffer_store_dword v36, v11, {sWS}, {sPT} offen sc1']
    MF, AD, RS, TQ = 40, 80, 104, 128
    def cv(i, tt):
        mi, t = divmod(i, 3); r = AC+8*i+4*tt; d = (Kt if mi else Q)(tt)+2*t
        return f'v_cvt_pk_bf16_f32 v{d}, v{r}, v{r+1}\nv_cvt_pk_bf16_f32 v{d+1}, v{r+2}, v{r+3}'
    order = [('q', 2, k) for k in range(10)] + [('k', 1, k) for k in K1ORD]
    ring = Ring(e, U, order, RS, 3)
    n0 = len(e.L); ring.prime(); pr = [x.strip() for x in e.L[n0:]]; del e.L[n0:]
    late = {(18, 1): pr[0], (18, 2): pr[1], (19, 1): pr[2], (19, 2): pr[3]}
    for i in range(5):
        for tt in range(2): late[(19, 2*i+3+tt)] = cv(i, tt)
    T1.run({-1: hk0, 5: hk(0, 6), 9: hk9, 11: hk(6, 12)}, ta_pre() + ta_ops() + cl, late)
    e.ts(7)
    e(pr[4]); e(pr[5]); e(cv(5, 0)); e(cv(5, 1))
    e.ts(5)
    e.poll(vZ, sFR, 128)
    e('s_barrier')
    q0, k0, q1, q2, k1, k2 = (AD+4*i for i in range(6))
    p1 = [(q2, lambda k: ('q', 2, k)), (q0, lambda k: ('q', 0, k)), (k0, lambda k: ('k', 0, k)), (q1, lambda k: ('q', 1, k))]
    nanchk, slow = crit_pass1(e, ring, MF, sM, p1, 'v134', range(AD, AD+24))
    e.ts(9)
    def flagQ(cond, after='-1'):
        if cond == 0: return f's_mov_b64 exec, s[30:31]\nbuffer_store_dword {vZ}, {vL16}, {sWS}, s38 offen sc1\ns_mov_b64 exec, {after}'
        return f's_andn2_b64 exec, s[68:69], s[30:31]\nbuffer_store_dword {vZ}, {vL16}, {sWS}, s38 offen sc1\ns_mov_b64 exec, {after}'
    lq = e.o['leadQ']
    cvt = lambda d, r: f'v_cvt_pk_bf16_f32 v{d}, v{r}, v{r+1}'
    main = []
    for (D, m) in ((k1, ('k', 1)), (k2, ('k', 2))):
        for p, k in enumerate(K1ORD):
            def fn(D=D, m=m, k=k, p=p):
                ring.op(D, MF+4*k, m + (k,))
                if m == ('k', 1) and p in (0, 3): e(f's_waitcnt lgkmcnt({4 if p == 0 else 0})')
            main.append((f'{m[0]}{m[1]}_{p}', fn))
    len_main = [0]
    nc = nanchk(q1)
    TK = q1; S0, S1, SM = q0, k0, q2
    Selq, Selk = v(SEL, 2), v(SEL+2, 2)
    T_a, T_b, T_c = 104, 108, 112
    slot = lambda j: RS + 8*((10+j) % 3)
    Ta, Tb, Tc = slot(0), slot(0)+4, slot(1)
    ops = [
        ('zq2a', cvt(q2, q2), 'v', [('q2', 8)]), ('zq2b', cvt(q2+1, q2+2), 'v', [('zq2a', 0)]),
        ('zq0a', cvt(q0, q0), 'v', [('q0', 8)]), ('zq0b', cvt(q0+1, q0+2), 'v', [('zq0a', 0)]),
        ('zk0a', cvt(q0+2, k0), 'v', [('k0', 8), ('zq0b', 0)]), ('zk0b', cvt(q0+3, k0+2), 'v', [('zk0a', 0)]),
        ('c1', nc[0], 'v', [('q1', 8)]), ('c2', nc[1], 'v', [('c1', 0)]), ('c3', nc[2], 's', [('c2', 4)]),
        ('zq1a', cvt(q1, q1), 'v', [('c2', 0)]), ('zq1b', cvt(q1+1, q1+2), 'v', [('zq1a', 0)]),
        ('Tq2', mf16(Ta, v(q2, 2), Selq), 'm', [('zq2b', 2), ('k1_1', 0)]),
        ('T0', mf32(Tb, v(q0, 4), v(SEL, 4)), 'm', [('zk0b', 2), ('k1_1', 0)]),
        ('Tq1', mf16(Tc, v(q1, 2), Selq), 'm', [('zq1b', 2), ('k1_4', 0)]),
        ('p2a', cvt(TQ+4, Ta), 'v', [('Tq2', 8)]), ('p2b', cvt(TQ+5, Ta+2), 'v', [('p2a', 0)]),
        ('p0a', cvt(TQ, Tb), 'v', [('T0', 8)]), ('p0b', cvt(TQ+1, Tb+2), 'v', [('p0a', 0)]),
        ('p1a', cvt(TQ+2, Tc), 'v', [('Tq1', 8)]), ('p1b', cvt(TQ+3, Tc+2), 'v', [('p1a', 0)]),
        ('zk1a', cvt(k1, k1), 'v', [('k1_9', 8)]), ('zk1b', cvt(k1+1, k1+2), 'v', [('zk1a', 0)]),
        ('S0a', mf16(S0, v(Kt(0)+4, 2), v(TQ+4, 2)), 'm', [('p2b', 2), ('T0', 0)]),
        ('S1a', mf16(S1, v(Kt(1)+4, 2), v(TQ+4, 2)), 'm', [('p2b', 2), ('T0', 0)]),
        ('S0b', mf32(S0, v(Kt(0), 4), v(TQ, 4), S0), 'm', [('p0b', 2), ('p1b', 2), ('S0a', 6)]),
        ('S1b', mf32(S1, v(Kt(1), 4), v(TQ, 4), S1), 'm', [('p0b', 2), ('p1b', 2), ('S1a', 6)]),
        ('w0', f'ds_write_b128 v5, {v(S0,4)}', 'v', [('S0b', 8)]),
        ('w1', f'ds_write_b128 v5, {v(S1,4)} offset:64', 'v', [('S1b', 8), ('w0', 2)]),
        ('zk2a', cvt(k2, k2), 'v', [('k2_9', 8)]), ('zk2b', cvt(k2+1, k2+2), 'v', [('zk2a', 0)]),
        ('Tk2', mf16(Tb, v(k2, 2), Selk), 'm', [('zk2b', 2)]),
        ('Tk1', mf16(Ta, v(k1, 2), Selk), 'm', [('zk1b', 2), ('k2_9', 0)]),
        ('SMa', mf16(SM, v(TQ, 2), v(TQ, 2)), 'm', [('p0b', 2), ('k2_9', 0)]),
        ('pk1a', cvt(TK, Ta), 'v', [('Tk1', 8)]), ('pk1b', cvt(TK+1, Ta+2), 'v', [('pk1a', 0)]),
        ('pk2a', cvt(TK+2, Tb), 'v', [('Tk2', 8)]), ('pk2b', cvt(TK+3, Tb+2), 'v', [('pk2a', 0)]),
        ('SMb', mf32(SM, v(TK, 4), v(TQ+2, 4), SM), 'm', [('pk2b', 2), ('pk1b', 2), ('SMa', 6)]),
    ]
    PB = 44
    for i in range(6): ops.append((f'pre{i}', f'v_mov_b32 v{PB-4+i if i < 4 else 60+i-4}, {f2u(-1e30)}', 'v', [('Tk2', 0)]))
    if lq < 20: ops.insert(0, ('fl', flagQ(0), 'v', [(main[lq][0], 0), ('c3', 0)]))
    if lq == 20: ops.append(('fl', flagQ(0), 'v', [('Tk2', 0)]))
    if lq == 21: ops.append(('fl', flagQ(0), 'v', [('SMb', 0)]))
    ops.append(('wm', f's_mov_b64 exec, {mMM}\nds_write_b128 v5, {v(SM,4)} offset:96', 'v', [('SMb', 7)]))
    schedule(e, main, ops, {'q2': -8, 'q0': -6, 'k0': -4, 'q1': -2})
    e.ts(10)
    tt3 = ((0, 0), (0, 1), (1, 1))
    a16 = [mf16(SA[i], v(Kt(tk)+4, 2), v(Q(tq)+4, 2)) for i, (tk, tq) in enumerate(tt3)]
    a32 = [mf32(SA[i], v(Kt(tk), 4), v(Q(tq), 4), SA[i]) for i, (tk, tq) in enumerate(tt3)]
    n1 = e.o.get('nh1', 2)
    h1 = a16 + a32[:n1]
    h2 = a32[n1:] + [mf16(SA[3+tq], v(TQ, 2), v(Q(tq), 2)) for tq in range(2)] + [mf32(SA[3+tq], v(TK, 4), v(Q(tq)+2, 4), SA[3+tq]) for tq in range(2)]
    e('s_mov_b64 exec, -1')
    for i, x in enumerate(h1):
        e(x)
        if lq == 30+i: e(flagQ(0))
    e('s_waitcnt lgkmcnt(0)\ns_barrier')
    e.ts(3)
    Tt, m, t = PB-4, 60, 62
    for w in range(4): e(f'ds_read_b128 {v(PB+4*w,4)}, v0 offset:{L_SM + w*1280}')
    nh = e.o.get('nh2', 3)
    if lq == 22: e(flagQ(0))
    for x in h2[:nh]: e(x)
    e(f's_mov_b64 exec, {mV}\ns_waitcnt lgkmcnt(2)')
    for i in (0, 2): e(f'v_pk_add_f32 {v(PB+i,2)}, {v(PB+i,2)}, {v(PB+4+i,2)}')
    for i in (0, 2): e(f'v_pk_mul_f32 {v(PB+i,2)}, {v(PB+i,2)}, {sC2}')
    e('s_waitcnt lgkmcnt(0)')
    for i in (0, 2): e(f'v_pk_add_f32 {v(PB+8+i,2)}, {v(PB+8+i,2)}, {v(PB+12+i,2)}')
    for i in (0, 2): e(f'v_pk_fma_f32 {v(Tt+i,2)}, {v(PB+8+i,2)}, {sC2}, {v(PB+i,2)}')
    e(f'v_max3_f32 v{m}, v{Tt}, v{Tt+1}, v{Tt+2}\nv_max_f32 v{m}, v{m}, v{Tt+3}\ns_mov_b64 exec, -1')
    for i, x in enumerate(dppred('v_max_f32', m)):
        e(x)
        if lq == 23 and i == 1: e(flagQ(0))
    for i in (0, 2): e(f'v_pk_add_f32 {v(Tt+i,2)}, {v(Tt+i,2)}, {v(m,2)} op_sel_hi:[1,0] neg_lo:[0,1] neg_hi:[0,1]')
    for i in range(4): e(f'v_exp_f32 v{Tt+i}, v{Tt+i}')
    e(f'v_add_f32 v{m}, v{Tt}, v{Tt+1}')
    e(f'v_add_f32 v{t}, v{Tt+2}, v{Tt+3}\nv_add_f32 v{m}, v{m}, v{t}')
    for x in dppred('v_add_f32', m): e(x)
    e(f'v_rcp_f32 v{m}, v{m}\ns_mov_b64 exec, s[42:43]')
    for i in (0, 2): e(f'v_pk_mul_f32 {v(Tt+i,2)}, {v(Tt+i,2)}, {v(m,2)} op_sel_hi:[1,0]')
    e(f'{cvt(PB, Tt)}\n{cvt(PB+1, Tt+2)}')
    if e.o.get('ackts'): e.ts(9)
    e(f'buffer_store_dwordx2 {v(PB,2)}, v9, {sWS}, {sCR} offen sc1\ns_mov_b64 exec, -1')
    if e.o.get('ackts'): e('s_waitcnt vmcnt(0)')
    e.ts(4)
    for x in h2[nh:]: e(x)
    if lq == 24: e(flagQ(0))
    if e.o.get('damp', 0): e(flagQ(1))
    e.ts(6)
    e.tsflush(11, 72)
    e(f's_barrier\ns_add_u32 {sS}, {sS}, 2\ns_cmp_lt_u32 {sS}, {e.o["nseg"]}\ns_cbranch_scc1 L_QK_loop')
    e(f's_mov_b32 {sPTo}, {sPT}')
    for x in ta_pre() + ta_ops(False):
        if x not in '|-': e(x)
    e('s_branch L_end')
    slow()

def role_r(e):
    sCR, sCN, sB0, sTB = 's35', 's36', 's37', 's38'
    sP = ['s46', 's47', 's48', 's49', 's50']; sV = ['s51', 's52']; sFQ, sLead, sTC, sPG, sXO = 's53', 's54', 's55', 's56', 's57'
    sN = ['s58', 's59', 's60', 's61']
    e(f'L_R:\ns_cmp_lg_u32 {sW}, 0\ns_cbranch_scc1 L_PF')
    e.srd(8, 0, 2621440); e.srd(12, 10, 2621440); e.srd(64, 1, 10240)
    e(f's_mul_i32 {sU}, {sXQ}, 10\ns_add_u32 {sU}, {sU}, {sJ}\ns_sub_u32 {sU}, {sU}, 16\ns_cmp_eq_u32 {sJ}, 16\ns_cselect_b32 {sLead}, 0x10001, 0\ns_lshl_b32 s32, {sXQ}, 10\ns_add_u32 s32, s32, {B_FL*BS}')
    e(f's_cmp_ge_u32 {sU}, 20\ns_cselect_b32 {sPG}, 1, 0\ns_mul_i32 s40, {sPG}, 20\ns_sub_u32 s40, {sU}, s40\ns_mul_i32 {sTC}, s40, {5*BS}\ns_lshl_b32 s40, {sPG}, 21\ns_add_u32 {sTC}, {sTC}, s40\ns_lshl_b32 {sPG}, {sPG}, 13')
    e(f'''v_lshlrev_b32 {vL16}, 4, v1
    v_and_b32 v20, 15, v1
    v_lshrrev_b32 v21, 4, v1
    v_and_b32 v4, 1, v1
    v_mul_u32_u24 v4, 0xaaaa, v4
    v_add_u32 v4, 0x4444, v4
    v_and_b32 v10, 7, v1
    v_lshlrev_b32 v10, 4, v10
    v_lshl_add_u32 v10, v21, 7, v10
    v_bfe_u32 v11, v1, 3, 1
    v_lshl_add_u32 v5, v11, 3, v10
    v_and_b32 v11, 1, v20
    v_lshl_add_u32 v10, v21, 1, v11
    v_mov_b32 v7, 0x05040100
    v_mov_b32 v22, 0x03020706
    v_cmp_eq_u32 vcc, 1, v11
    v_cndmask_b32 v7, v7, v22, vcc
    v_mul_u32_u24 v23, 1280, v10
    v_and_b32 v11, 14, v20
    v_lshl_add_u32 v23, v11, 1, v23
    s_lshl_b32 s40, {sU}, 5
    v_add_u32 v23, s40, v23
    v_bfe_u32 v11, v20, 1, 1
    v_lshl_add_u32 v10, v10, 1, v11
    v_lshlrev_b32 v10, 4, v10
    v_lshrrev_b32 v11, 2, v20
    v_lshl_add_u32 v10, v11, 2, v10
    s_lshr_b32 s42, {sU}, 3
    s_lshl_b32 s42, s42, 14
    s_and_b32 s41, {sU}, 7
    s_lshl_b32 s41, s41, 8
    s_add_u32 s41, s41, s42
    v_add_u32 v6, s41, v10
    v_mul_u32_u24 v8, 1280, v20
    v_lshl_add_u32 v8, v21, 3, v8
    v_add_u32 v8, s40, v8
    v_and_b32 v9, 31, v1
    v_lshlrev_b32 v9, 7, v9
    v_and_b32 v0, 7, v1
    v_lshlrev_b32 v0, 7, v0
    v_lshlrev_b32 v3, 8, v1
    v_mov_b32 v12, 0
    v_mov_b32 v14, -1
    v_lshlrev_b32 v13, 2, v21
    v_sub_u32 v13, v20, v13
    v_mov_b32 v24, 0x3f80
    v_mov_b32 v25, 0x3f800000
    s_waitcnt lgkmcnt(0)
    buffer_load_dword v15, v23, s[64:67], 0 offen
    v_cmp_eq_u32 vcc, 0, v13
    v_cndmask_b32 v16, 0, v24, vcc
    v_cmp_eq_u32 vcc, 1, v13
    v_cndmask_b32 v16, v16, v25, vcc
    v_cmp_eq_u32 vcc, 2, v13
    v_cndmask_b32 v18, 0, v24, vcc
    v_cmp_eq_u32 vcc, 3, v13
    v_cndmask_b32 v18, v18, v25, vcc
    v_mov_b32 v17, 0
    v_mov_b32 v19, 0
    v_mov_b32 v20, 0
    v_mov_b32 v21, v16
    v_mov_b32 v22, 0
    v_mov_b32 v23, v18''')
    def reps(base): pass
    def pub(reg): e(f'buffer_store_dword {reg}, v6, {sWS}, {sCN} offen sc1')
    for g in range(4): e(f's_add_u32 {sN[g]}, {sXQ}, {g}\ns_and_b32 {sN[g]}, {sN[g]}, 3')
    l = e.lab('nl'); l2 = e.lab('nc'); l3 = e.lab('ncl')
    for r in range(24, 28): e(f'v_mov_b32 v{r}, -1')
    e(f's_mul_i32 s42, {sSIDE}, 40\ns_add_u32 s42, s42, {sU}\ns_cmp_ge_u32 s42, 64\ns_cbranch_scc1 {l3}')
    e(f's_lshr_b32 s40, s42, 1\ns_and_b32 s41, s42, 1\ns_lshl_b32 s41, s41, 13\ns_lshl_b32 s43, s40, 20\ns_add_u32 s43, s43, s41\ns_add_u32 s43, s43, {B_FL*BS}')
    for o in range(8):
        if o == 4: e('s_add_u32 s43, s43, 4096')
        e(f'buffer_store_dwordx4 v[24:27], {vL16}, {sWS}, s43 offen offset:{(o%4)*1024} sc1')
    e(f's_lshl_b32 s43, s40, 22\ns_add_u32 s43, s43, s41\ns_add_u32 s43, s43, {BULK + B_VF*BS}')
    for o in range(4): e(f'buffer_store_dwordx4 v[24:27], {vL16}, {sWS}, s43 offen offset:{o*1024} sc1')
    e(f's_add_u32 s43, s43, 4096\nbuffer_store_dwordx4 v[24:27], {vL16}, {sWS}, s43 offen sc1')
    e(f's_cmp_ge_u32 s42, 61\ns_cbranch_scc1 {l3}\ns_lshl_b32 s43, s42, 14')
    for o in range(16):
        e(f'buffer_store_dwordx4 v[24:27], {vL16}, {sWS}, s43 offen offset:{(o % 4)*1024} sc1')
        if o % 4 == 3: e('s_add_u32 s43, s43, 4096')
    e(f'{l3}:\ns_mov_b32 s45, 1\ns_cmp_lg_u32 {sJ}, 25\ns_cbranch_scc1 {l}')
    e(f's_and_b32 s40, s2, 7\ns_lshl_b32 s40, s40, 10\ns_add_u32 s40, s40, {B_CAL*BS}\ns_add_u32 s41, s40, 8192')
    e(f'buffer_store_dwordx4 v[24:27], {vL16}, {sWS}, s40 offen sc1\nbuffer_store_dwordx4 v[24:27], {vL16}, {sWS}, s41 offen sc1')
    e('s_waitcnt vmcnt(0)\ns_mov_b32 s46, -1\ns_mov_b32 s47, -1')
    for k in range(e.o.get('ncal', 6)):
        for b in range(2):
            e(f's_memtime s[48:49]\ns_waitcnt lgkmcnt(0)\nbuffer_load_dword v31, v12, {sWS}, s{40+b} offen offset:{k*128} sc1\ns_waitcnt vmcnt(0)\ns_memtime s[50:51]\ns_waitcnt lgkmcnt(0)')
            e(f's_sub_u32 s50, s50, s48\ns_min_u32 s{46+b}, s{46+b}, s50')
    e(f's_cmp_lt_u32 s47, s46\ns_cselect_b32 s45, 1, 0\ns_xor_b32 s45, s45, {sSIDE}\ns_lshl_b32 s45, s45, 16\ns_or_b32 s45, s45, 1')
    e(f'{l}:\ns_waitcnt vmcnt(0)')
    e.ts(2)
    e.arrive(extra='s45', vt=30)
    e.wait_start(vt=30)
    def flagR(msk):
        e(f's_add_u32 s40, {sCN}, s32\ns_mov_b32 exec_lo, {msk}\ns_mov_b32 exec_hi, {msk}\nbuffer_store_dword v12, {vL16}, {sWS}, s40 offen sc1\ns_mov_b64 exec, -1')
    e(f's_cmp_eq_u32 {sSIDE}, 0\ns_cbranch_scc1 {l2}\ns_mov_b32 {sS}, 0')
    e.crit_off(sCN, 2); reps(sCN); pub('v14')
    e('s_waitcnt vmcnt(0)\nv_min_u32 v15, -2, v15')
    e.crit_off(sCN, 0); reps(sCN); pub('v15')
    e('s_waitcnt vmcnt(0)'); flagR(sLead)
    e(f'{l2}:\ns_mov_b32 {sS}, {sSIDE}')
    e('L_R_loop:')
    e.ts(0)
    e.bulk_off(sB0)
    e(f's_xor_b32 {sTB}, {sB0}, {sPG}\ns_add_u32 {sTB}, {sTB}, {sTC}\ns_barrier')
    e.ts(7)
    def ldvot(k0, k1):
        for k in range(k0, k1):
            if k % 8 == 0 and k < 32: e(f's_lshl_b32 s40, {sN[k//8]}, 14\ns_add_u32 s40, s40, {sTB}')
            elif k == 32: e(f's_add_u32 s40, {sTB}, {4*BS}')
            elif k % 4 == 0: e('s_add_u32 s40, s40, 4096')
            e(f'buffer_load_dwordx4 {a(4*k,4)}, {vL16}, {sWS}, s40 offen offset:{(k%4)*1024} sc1')
    ldvot(0, 32)
    e.crit_off(sCN, 3); pub('v14')
    e.crit_off(sCR); e.crit_off(sCN, 1)
    sPm = ['s94', 's95', 's96', 's97']; sVm = ['s98', 's99', 's100', 's101']
    e(f's_lshl_b32 s41, {sU}, 14\ns_add_u32 s41, s41, {sCR}\ns_add_u32 s41, s41, {B_VOM*BS}')
    for g in range(4):
        e(f's_lshl_b32 s40, {sN[g]}, 14\ns_add_u32 s40, s40, {sCR}\ns_add_u32 {sP[g]}, s40, {(B_P+1)*BS}')
        e(f's_lshl_b32 s40, {sN[g]}, 10\ns_add_u32 s40, s40, {sCR}\ns_add_u32 {sPm[g]}, s40, {B_P*BS}')
        e(f's_lshl_b32 s40, {sN[g]}, 11\ns_add_u32 {sVm[g]}, s40, s41')
    e(f's_lshl_b32 s40, {sXQ}, 8\ns_add_u32 {sFQ}, {sCR}, s40\ns_add_u32 {sFQ}, {sFQ}, {B_FL*BS + 128}\ns_mul_i32 {sXO}, {sS}, 40960')
    AC, AM, AT, BM = 24, 40, 56, 120
    e('s_mov_b32 s34, 0\ns_mov_b32 s29, 0')
    e.ts(5)
    e('s_barrier')
    e.poll('v12', sFQ, 252)
    e('s_barrier')
    e.ts(1)
    rt = e.lab('rt'); bad = e.lab('bad')
    e(f'{rt}:')
    nv = e.o.get('vfirst', 0)
    seq = [('v', k) for k in range(nv)] + [('t', k) for k in range(16)]
    for g in range(4): seq += [('m', g)] + [('v', k) for k in (2*g, 2*g+1) if k >= nv]
    for kind, k in seq:
        if kind == 't': e(f'buffer_load_dwordx4 {v(AT+4*k,4)}, {vL16}, {sWS}, {sP[k//4]} offen offset:{(k%4)*1024} sc1')
        elif kind == 'm': e(f'buffer_load_dwordx4 {v(AM+4*k,4)}, {vL16}, {sWS}, {sPm[k]} offen sc1')
        else: e(f'buffer_load_dwordx4 {v(BM+4*k,4)}, {vL16}, {sWS}, {sVm[k//2]} offen offset:{(k%2)*1024} sc1')
    for r in range(AC, AC+4): e(f'v_mov_b32 v{r}, 0')
    e('v_mov_b32 v13, 0')
    extra = 0; rf = e.o['rflag']
    chk = e.lab('chk'); bk = e.lab('bk')
    if e.o.get('damp', 0): e(f's_cmp_eq_u32 s34, 0\ns_cselect_b32 s30, {sLead}, 0\ns_mov_b32 s31, s30')
    else: e(f's_mov_b32 s30, {sLead}\ns_mov_b32 s31, s30')
    e(f's_add_u32 s33, {sCN}, s32')
    lastm = {g: max(seq.index(x) for x in (('m', g), ('v', 2*g), ('v', 2*g+1))) for g in range(4)}
    for i, (kind, k) in enumerate(seq):
        early = i < nv+16
        if not early and i not in lastm.values() and not rf-1 <= i <= rf: continue
        if i == 0 or kind != 't' or seq[i-1][0] != 't': e(f's_waitcnt vmcnt({27-i+extra})')
        if i == 0: e.ts(2)
        if kind == 't': e(smf(AC, AT+4*k, a(8*k, 8)))
        for g in range(4):
            if lastm[g] == i: e(smf(AC, AM+4*g, v(BM+8*g, 8)))
        if i == rf:
            e(f's_cmp_eq_u64 vcc, 0\ns_cselect_b64 exec, s[30:31], 0\nbuffer_store_dword v12, {vL16}, {sWS}, s33 offen sc1\ns_mov_b64 exec, -1'); extra = 1
        if kind == 't' and k < 15: e(f's_waitcnt vmcnt({26-i+extra})')
        if early and i <= rf-2: r = (AT if kind == 't' else BM)+4*k; e(f'v_max3_u32 v13, v13, v{r}, v{r+3}')
        if i == rf-1: e('v_cmp_eq_u32 vcc, -1, v13')
    e.ts(3)
    e(f'v_add_f32 v{AC}, v{AC}, v{AC+1}\nv_add_f32 v{AC+1}, v{AC+2}, v{AC+3}')
    e(f'v_cvt_pk_bf16_f32 v{AC+2}, v{AC}, v{AC+1}\nv_cmp_u_f32 vcc, v{AC}, v{AC+1}')
    e(f'v_mov_b32_dpp v{AC+1}, v{AC+2} quad_perm:[1,0,3,2] row_mask:0xf bank_mask:0xf\nv_perm_b32 v{AC}, v{AC+1}, v{AC+2}, v7\ns_cbranch_vccnz {chk}\n{bk}:')
    if e.o.get('ackts'): e.ts(2)
    pub(f'v{AC}')
    if e.o.get('ackts'): e('s_waitcnt vmcnt(0)')
    if rf < 28:
        if e.o.get('damp', 0): e(f's_cmp_lg_u32 s34, 0\ns_cselect_b32 s41, {sLead}, 0'); flagR('s41')
    else: flagR(sLead)
    e.ts(4)
    okO = e.lab('okO'); slowO = e.lab('slowO')
    AO = 28
    ringr = list(range(152, 252, 4)) + list(range(40, 120, 4)); NR = e.o.get('nr', 32); ringr = ringr[:NR]
    def ffn():
        for k in range(8):
            for tt in range(2): e(mf32(AO+4*tt, a(128+4*k, 4), 'v[20:23]' if tt else 'v[16:19]', None if k == 0 else AO+4*tt))
    def opass(explicit):
        e(f's_add_u32 s42, {sB0}, {B_PT*BS}')
        def ldp(n):
            j, tt = n//2, n % 2
            if tt == 0 and j < 32 and j % 8 == 0: e(f's_lshl_b32 s40, {sN[j//8]}, 14\ns_add_u32 s40, s40, s42\ns_add_u32 s41, s40, {5*BS}')
            elif tt == 0 and j < 32 and j % 4 == 0: e('s_add_u32 s40, s40, 4096\ns_add_u32 s41, s41, 4096')
            elif tt == 0 and j >= 32 and j % 2 == 0: e(f's_lshl_b32 s40, {sN[(j-32)//2]}, 11\ns_add_u32 s40, s40, s42\ns_add_u32 s40, s40, {4*BS}\ns_add_u32 s41, s40, {5*BS}')
            e(f'buffer_load_dwordx4 {v(ringr[n % NR],4)}, {vL16}, {sWS}, {"s41" if tt else "s40"} offen offset:{(j % (4 if j < 32 else 2))*1024} sc1')
        if not explicit:
            e(f's_add_u32 s43, {sB0}, {B_VF*BS + 4096}'); e.poll('v0', 's43', 252, D=1)
            ldvot(32, 40)
            e(f's_add_u32 s43, {sXO}, 20480\nbuffer_load_dwordx2 v[36:37], v8, {sA}, {sXO} offen\nbuffer_load_dwordx2 v[38:39], v8, {sA}, s43 offen')
            e('s_barrier\ns_waitcnt vmcnt(0)'); ffn()
            e(f's_add_u32 s43, {sFQ}, {4096-128}'); e.poll('v12', 's43', 252)
            e('s_barrier')
            e.ts(8)
            e(f's_sub_u32 s40, {sJ}, 16\ns_lshl_b32 s40, s40, 14\ns_add_u32 s40, s40, s42\nv_lshlrev_b32 v10, 7, v1')
            tch = e.o.get('touch', 0)
            if tch in (1, 2): e(f'buffer_load_dword v11, v10, {sWS}, s40 offen sc1')
            if tch == 2: e(f'buffer_load_dword v15, v10, {sWS}, s40 offen offset:64 sc1')
            if tch == 3:
                for q in range(8):
                    if q == 4: e('s_add_u32 s40, s40, 4096')
                    e(f'buffer_load_dwordx4 v[24:27], {vL16}, {sWS}, s40 offen offset:{(q%4)*1024} sc1')
        if explicit: ffn()
        for n in range(NR): ldp(n)
        if explicit: e('v_mov_b32 v13, 0')
        iss = NR
        for n in range(80):
            j, tt = n//2, n % 2; r = ringr[n % NR]
            e(f's_waitcnt vmcnt({iss-1-n})')
            e(mf32(AO+4*tt, a(4*j, 4) if j < 32 else v(BM+4*(j-32), 4), v(r, 4), AO+4*tt))
            if explicit: e(f'v_max3_u32 v13, v13, v{r}, v{r+1}\nv_max3_u32 v13, v13, v{r+2}, v{r+3}')
            if iss < 80: ldp(iss); iss += 1
    opass(False)
    e(f'v_cmp_u_f32 vcc, v{AO}, v{AO+4}\ns_cbranch_vccnz {slowO}\n{okO}:')
    for tt in range(2):
        for i in range(2):
            x = 36+2*tt+i; d = AO+4*tt+2*i
            e(f'v_lshlrev_b32 v40, 16, v{x}\nv_and_b32 v41, 0xffff0000, v{x}\nv_add_f32 v40, v40, v{d}\nv_add_f32 v41, v41, v{d+1}\nv_cvt_pk_bf16_f32 v{42+2*tt+i}, v40, v41')
    e(f's_add_u32 s43, {sXO}, 20480\nbuffer_store_dwordx2 v[42:43], v8, {sB}, {sXO} offen {e.o.get("outfl", "")}\nbuffer_store_dwordx2 v[44:45], v8, {sB}, s43 offen {e.o.get("outfl", "")}')
    e.ts(6)
    e.tsflush(9, 48)
    e(f's_add_u32 {sS}, {sS}, 2\ns_cmp_lt_u32 {sS}, {e.o["nseg"]}\ns_cbranch_scc1 L_R_loop\ns_branch L_end')
    e(f'{chk}:')
    if e.o['stamps']:
        e('v_mov_b32 v13, 0')
        for r in range(BM, BM+32, 2): e(f'v_max3_u32 v13, v13, v{r}, v{r+1}')
        e('v_cmp_eq_u32 vcc, -1, v13\ns_cmp_lg_u64 vcc, 0\ns_cselect_b32 s40, 0x1000000, 0x10000\ns_add_u32 s29, s29, s40') if False else e('v_cmp_eq_u32 vcc, -1, v13\ns_mov_b32 s41, 0x10000\ns_cmp_lg_u64 vcc, 0\ns_cselect_b32 s40, 0x1000000, s41\ns_add_u32 s29, s29, s40')
    e(f's_cmp_lt_u32 s34, 2\ns_cbranch_scc1 {bad}')
    for r in range(AM, BM+32, 2): e(f'v_max3_u32 v13, v13, v{r}, v{r+1}')
    e(f'v_cmp_eq_u32 vcc, -1, v13\ns_cbranch_vccz {bk}')
    e(f'{bad}:\ns_add_u32 s34, s34, 1\ns_nop 7'); e.tmo(rt)
    e(f'{slowO}:\ns_nop 7')
    if e.o['stamps']: e('s_add_u32 s34, s34, 0x10000')
    opass(True)
    e(f's_nop 7\nv_cmp_eq_u32 vcc, -1, v13\ns_cbranch_vccz {okO}'); e.tmo(slowO)

def role_pf(e):
    e('L_PF:')
    e.wait_start(vt=30)
    e(f'v_and_b32 v9, 31, v1\nv_lshlrev_b32 v9, 7, v9\nv_mov_b32 v12, 0\ns_mov_b32 {sS}, {sSIDE}\ns_lshl_b32 s32, {sW}, 2\ns_add_u32 s32, s32, {sXQ}\ns_lshl_b32 s32, s32, 8\ns_add_u32 s32, s32, {B_FL*BS + 128}')
    e('L_PF_loop:')
    l = e.lab('nv')
    e(f's_cmp_lg_u32 {sW}, 1\ns_cbranch_scc1 {l}')
    e.bulk_off('s36'); e(f's_add_u32 s36, s36, {B_VF*BS}')
    e.poll('v9', 's36', 24, D=1, sleep=e.o.get('vsleep', 4))
    e(f'{l}:')
    e.crit_off('s35')
    e('s_add_u32 s35, s35, s32\ns_barrier\ns_barrier')
    e.poll('v12', 's35', 20)
    e(f's_barrier\ns_add_u32 s35, s35, {4096-128}\ns_barrier')
    e.poll('v12', 's35', 20)
    e(f's_barrier\ns_add_u32 {sS}, {sS}, 2\ns_cmp_lt_u32 {sS}, {e.o["nseg"]}\ns_cbranch_scc1 L_PF_loop\ns_branch L_end')

HEAD = open('cdna_kernels/' + NAME[:-7] + '.s.ref').read().split('; Override launch')[0]
def gen(aslist=False, **o):
    e = G(**o)
    e.ts(0)
    if e.o.get('empty'): e('s_branch L_end')
    e(f'''s_cmp_ge_u32 s2, 256
    s_cbranch_scc1 L_end
    s_add_u32 s3, s2, {e.o.get('rot', 0)}
    s_and_b32 s3, s3, 7
    s_and_b32 s2, s2, 0xf8
    s_or_b32 s2, s2, s3
    s_load_dwordx2 s[4:5], s[0:1], 96
    s_load_dwordx2 s[16:17], s[0:1], 88
    v_and_b32 v1, 63, v0
    v_lshrrev_b32 v2, 6, v0
    s_and_b32 {sXQ}, s2, 3
    v_readfirstlane_b32 {sW}, v2
    s_bfe_u32 {sSIDE}, s2, 0x10002
    s_lshr_b32 {sJ}, s2, 3
    s_mov_b32 {sTO}, 0
    s_mov_b32 s18, 256
    s_mov_b32 s19, 0x20000
    s_mov_b32 s6, {252<<20}
    s_mov_b32 s7, 0x20000
    s_waitcnt lgkmcnt(0)
    s_add_u32 s4, s4, 0x3fffff
    s_addc_u32 s5, s5, 0
    s_and_b32 s4, s4, 0xffc00000
    s_cmp_lt_u32 {sJ}, 8
    s_cbranch_scc1 L_QK
    s_cmp_lt_u32 {sJ}, 16
    s_cbranch_scc1 L_VO
    s_cmp_lt_u32 {sJ}, 26
    s_cbranch_scc1 L_R
    s_cmp_lt_u32 {sJ}, 28
    s_cbranch_scc1 L_FFN''')
    role_ln(e); role_qk(e); role_vo(e); role_r(e); role_pf(e)
    e(f'L_abort:\nv_mov_b32 v30, 4\nv_mov_b32 v31, 1\ns_mov_b64 exec, 1\nbuffer_atomic_add v31, v30, {sDBG}, 0 offen sc1\nL_end:\ns_endpgm')
    body, nn = hazard.run(resolve(e.L))
    launch = f'; @launch kernel={NAME} grid=(256,1,1) block=(256,1,1) lds=163840' if aslist else '; @launch grid=(256,1,1) block=(256,1,1) lds=163840'
    return HEAD + launch + '\n.amdgcn_target "amdgcn-amd-amdhsa--gfx950"\n.text\n' + kernel_head(NAME) + '\n'.join(body) + '\n' + kernel_desc(NAME, 512, 102, 256)

if __name__ == '__main__':
    o = dict(kv.split('=') for kv in sys.argv[2:]); o = {k: int(x) for k, x in o.items()}
    open(sys.argv[1], 'w').write(gen(**o))
```

```python
import sys
from asmlib import *
import hazard

NAME = 'parallel_sum__memory_aug_recurrent_mem_tr__dense_activation_silu__prompt_kernel'
BS = 16384
BULK = 36 << 20
XN = 164 << 20
DBGW = 172 << 20
B_MEM, B_P, B_FL, B_VOM, B_CAL = 0, 8, 20, 21, 62
B_PT, B_VF = 100, 110
L_X, L_MISC, L_W = 0, 40960, 57344
WPW = 26624
TMO = 1 << 17
NARR = 112
LOG2E = 1.4426950408889634
import struct
def f2u(x): return struct.unpack('<I', struct.pack('<f', x))[0]
CSC = f2u(LOG2E / 192 ** 0.5)

sWS, sA, sB, sDBG = 's[4:7]', 's[8:11]', 's[12:15]', 's[16:19]'
sXQ, sJ, sSIDE, sW, sU, sS, sTO, sC0 = 's20', 's21', 's22', 's23', 's25', 's26', 's27', 's28'

class G(A):
    def __init__(self, **o):
        super().__init__(); self.o = dict(leadQ=19, rflag=13, vfirst=8, fplead=20, stamps=0, nseg=64); self.o.update(o)
    def crit_off(self, dst, add=0, t0='s40', t1='s41'):
        e = self
        e(f's_add_u32 {t0}, {sS}, {add}\ns_lshr_b32 {t1}, {t0}, 2\ns_xor_b32 {t1}, {t1}, {t0}\ns_xor_b32 {t1}, {t1}, {sC0}\ns_and_b32 {t1}, {t1}, 1\ns_lshl_b32 {t1}, {t1}, 13')
        e(f's_lshr_b32 {t0}, {t0}, 1\ns_lshl_b32 {t0}, {t0}, 20\ns_or_b32 {dst}, {t0}, {t1}')
    def bulk_off(self, dst, add=0, t0='s40', t1='s41'):
        e = self
        e(f's_add_u32 {t0}, {sS}, {add}\ns_xor_b32 {t1}, {t0}, {sC0}\ns_and_b32 {t1}, {t1}, 1\ns_lshl_b32 {t1}, {t1}, 13')
        e(f's_lshr_b32 {t0}, {t0}, 1\ns_lshl_b32 {t0}, {t0}, 22\ns_add_u32 {t0}, {t0}, {BULK}\ns_or_b32 {dst}, {t0}, {t1}')
    def tmo(self, again):
        self(f's_add_u32 {sTO}, {sTO}, 1\ns_cmp_lt_u32 {sTO}, {TMO}\ns_cbranch_scc1 {again}\ns_branch L_abort')
    def srd(self, dst, slot, nbytes):
        self(f's_load_dwordx2 s[{dst}:{dst+1}], s[0:1], {slot*8}\ns_mov_b32 s{dst+2}, {nbytes}\ns_mov_b32 s{dst+3}, 0x20000')
    def arrive(self, extra=None, vt=2):
        e = self; l = e.lab('nla')
        x = "1" if extra is None else extra
        e(f'v_mov_b32 v{vt}, 0\nv_mov_b32 v{vt+1}, {x}')
        e(f's_mov_b64 exec, 1\nbuffer_atomic_add v{vt+1}, v{vt}, {sDBG}, 0 offen sc0 sc1\ns_waitcnt vmcnt(0)\nv_add_u32 v{vt+1}, {x}, v{vt+1}')
        e(f'v_readfirstlane_b32 s40, v{vt+1}\ns_and_b32 s40, s40, 0xffff\ns_cmp_lg_u32 s40, {NARR}\ns_cbranch_scc1 {l}')
        e(f'buffer_store_dword v{vt+1}, v{vt}, {sDBG}, 0 offen offset:128 sc1\n{l}:\ns_mov_b64 exec, -1')
    def wait_start(self, vt=2):
        e = self; lp = e.lab('ws'); dn = e.lab('wsd')
        e(f'v_mov_b32 v{vt}, 0\n{lp}:\nbuffer_load_dword v{vt+1}, v{vt}, {sDBG}, 0 offen offset:128 sc1\ns_waitcnt vmcnt(0)')
        e(f'v_readfirstlane_b32 s40, v{vt+1}\ns_cmp_lg_u32 s40, 0\ns_cbranch_scc1 {dn}\ns_sleep 4')
        e.tmo(lp)
        e(f'{dn}:\ns_lshr_b32 s40, s40, 16\ns_cmp_ge_u32 s40, 5\ns_cselect_b32 {sC0}, 1, 0')
        e.ts(3)
        if e.o['stamps']:
            e(f's_xor_b32 {sS}, {sSIDE}, 1'); e.tsflush(8, vt)
    def poll(self, vaddr, soff, r0, D=None, sleep=0):
        e = self; lp = e.lab('poll'); dn = e.lab('pd')
        one = D is None and e.o.get('poll1', 0)
        if D is None: D = e.o.get('pd', 3)
        if one: e('s_mov_b64 exec, 1')
        iss = lambda i: e(f'buffer_load_dword v{r0+i}, {vaddr}, {sWS}, {soff} offen sc1')
        for i in range(D):
            iss(i)
            if i < D-1: e('s_nop 15')
        e(f'{lp}:')
        for i in range(D):
            e(f's_waitcnt vmcnt({D-1})\nv_cmp_eq_u32 vcc, -1, v{r0+i}\ns_cbranch_vccz {dn}')
            if sleep: e(f's_sleep {sleep}')
            iss(i)
        e.tmo(lp)
        e(f'{dn}:')
        if one: e('s_mov_b64 exec, -1')
    def ts(self, i):
        if self.o['stamps'] and (self.o.get('tsmask', -1) >> i) & 1: self(f'{"s_memrealtime" if self.o["stamps"] == 1 else "s_memtime"} s[{70+2*i}:{71+2*i}]')
    def tsflush(self, n, vbase):
        if not self.o['stamps']: return
        e = self
        e(f's_waitcnt lgkmcnt(0)\ns_lshl_b32 s40, s2, 2\ns_add_u32 s40, s40, {sW}\ns_lshl_b32 s40, s40, 6\ns_add_u32 s40, s40, {sS}\ns_lshl_b32 s40, s40, 6\ns_add_u32 s40, s40, {DBGW}')
        e(f'v_mov_b32 v{vbase}, 0')
        for i in range(n): e(f'v_writelane_b32 v{vbase}, s{70+2*i}, {i}')
        e(f'v_writelane_b32 v{vbase}, s34, 15\nv_writelane_b32 v{vbase}, s29, 14')
        e(f'v_lshlrev_b32 v{vbase+1}, 2, v1\ns_mov_b64 exec, 0xffff\nbuffer_store_dword v{vbase}, v{vbase+1}, {sWS}, s40 offen\ns_mov_b64 exec, -1')

def resolve(lines):
    out = []; nl = nv = 0; tag = {}
    for ln in lines:
        t = ln.strip()
        if t.startswith('@wl '): out.append(f'    s_waitcnt lgkmcnt({min(15, nl - tag[t[4:]])})'); continue
        if t.startswith('@wv '): out.append(f'    s_waitcnt vmcnt({min(63, nv - tag[t[4:]])})'); continue
        if t.startswith('ds_'): nl += 1
        if t.startswith('buffer_'): nv += 1
        if ';@' in t:
            tag[t.split(';@')[1].strip()] = nl if t.startswith('ds_') else nv
            ln = ln.split(';@')[0].rstrip()
        out.append(ln)
    return out

def xsum(e, r, t, op='v_add_f32', steps=(16, 32)):
    for st in steps:
        e(f'v_mov_b32 v{t}, v{r}\nv_permlane{st}_swap_b32 v{r}, v{t}\n{op} v{r}, v{r}, v{t}')

def role_ln(e):
    e('L_LN:')
    e.srd(8, 0, 2621440)
    e(f's_and_b32 s40, s2, 7\ns_lshl_b32 s40, s40, 2\ns_add_u32 s40, s40, {sJ}\ns_sub_u32 s40, s40, 28\ns_lshl_b32 s40, s40, 2\ns_add_u32 s42, s40, {sW}')
    e(f'v_and_b32 v2, 15, v1\nv_lshrrev_b32 v3, 4, v1\nv_mul_u32_u24 v2, 1280, v2\nv_lshl_add_u32 v2, v3, 4, v2\ns_mul_i32 s43, s42, {16*1280}\ns_waitcnt lgkmcnt(0)')
    R0, F0 = 8, 88
    for k in range(20): e(f'buffer_load_dwordx4 {v(R0+4*k,4)}, v2, {sA}, s43 offen offset:{k*64}')
    e('v_mov_b32 v4, 0\nv_mov_b32 v5, 0')
    for k in range(20):
        e(f's_waitcnt vmcnt({19-k})')
        for r in range(4):
            x = R0+4*k+r; f = F0+8*k+2*r
            e(f'v_lshlrev_b32 v{f}, 16, v{x}\nv_and_b32 v{f+1}, 0xffff0000, v{x}\nv_add_f32 v4, v4, v{f}\nv_add_f32 v5, v5, v{f+1}')
    e('v_add_f32 v4, v4, v5'); xsum(e, 4, 5)
    e(f'v_mul_f32 v4, {f2u(1/640)}, v4')
    e('v_mov_b32 v5, 0\nv_mov_b32 v6, 0')
    for i in range(0, 160, 2):
        e(f'v_sub_f32 v7, v{F0+i}, v4\nv_sub_f32 v248, v{F0+i+1}, v4\nv_fmac_f32 v5, v7, v7\nv_fmac_f32 v6, v248, v248')
    e('v_add_f32 v5, v5, v6'); xsum(e, 5, 6)
    e(f'v_mul_f32 v5, {f2u(1/640)}, v5')
    e('v_cvt_pk_bf16_f32 v6, v4, v5\nv_lshlrev_b32 v4, 16, v6\nv_and_b32 v5, 0xffff0000, v6')
    e(f'v_add_f32 v5, {f2u(1e-5)}, v5\nv_cvt_pk_bf16_f32 v5, v5, v5\nv_lshlrev_b32 v5, 16, v5\nv_sqrt_f32 v5, v5\nv_cvt_pk_bf16_f32 v5, v5, v5\nv_lshlrev_b32 v5, 16, v5\nv_rcp_f32 v5, v5')
    e(f's_lshr_b32 s40, s42, 1\ns_lshl_b32 s40, s40, 16\ns_and_b32 s41, s42, 1\ns_lshl_b32 s41, s41, 10\ns_add_u32 s40, s40, s41\ns_add_u32 s40, s40, {XN}\nv_lshlrev_b32 v2, 4, v1\nv_add_u32 v3, 40960, v2')
    for k in range(20):
        for r in range(4):
            x = R0+4*k+r; f = F0+8*k+2*r
            e(f'v_sub_f32 v{f}, v{f}, v4\nv_sub_f32 v{f+1}, v{f+1}, v4\nv_cvt_pk_bf16_f32 v6, v{f}, v{f+1}\nv_lshlrev_b32 v{f}, 16, v6\nv_and_b32 v{f+1}, 0xffff0000, v6')
            e(f'v_mul_f32 v{f}, v{f}, v5\nv_mul_f32 v{f+1}, v{f+1}, v5\nv_cvt_pk_bf16_f32 v{x}, v{f}, v{f+1}')
        e(f'buffer_store_dwordx4 {v(R0+4*k,4)}, v2, {sWS}, s40 offen offset:{(k%2)*2048} sc1')
        if k < 12: e(f'buffer_store_dwordx4 {v(R0+4*k,4)}, v3, {sWS}, s40 offen offset:{(k%2)*2048} sc1')
        if k % 2: e('s_add_u32 s40, s40, 4096')
    e(f's_waitcnt vmcnt(0)\ns_barrier\ns_cmp_lg_u32 {sW}, 0\ns_cbranch_scc1 L_end')
    e.ts(2)
    if e.o['stamps']:
        e(f's_xor_b32 {sS}, {sSIDE}, 1'); e.tsflush(8, 4)
    e.arrive()
    e('s_branch L_end')

class Units:
    def __init__(self, keys_reg, keys_lds):
        self.m = {}
        for i, k in enumerate(keys_reg):
            self.m[k] = ('a', 8*i) if i < 32 else ('v', 136 + 8*(i-32))
        assert len(keys_reg) <= 47 and len(keys_lds) <= 13
        for i, k in enumerate(keys_lds): self.m[k] = ('l', i)
    def reg(self, k, off=0, n=8):
        t, r = self.m[k]; assert t != 'l'
        return (a if t == 'a' else v)(r+off, n)
    def islds(self, k): return self.m[k][0] == 'l'
    def ldsoff(self, k, half): return self.m[k][1]*2048 + half*1024

vL16, vWL = 'v2', 'v3'

def common_wsetup(e):
    e(f'v_lshlrev_b32 {vL16}, 4, v1\ns_mul_i32 s40, {sW}, {WPW}\ns_add_u32 s40, s40, {L_W}\nv_add_u32 {vWL}, s40, {vL16}')

def load_weights(e, U, chunks, mid):
    n = len(chunks); TMP = 40
    e(f's_mul_i32 s44, {sW}, 3072')
    def issue(c):
        ch = chunks[c]
        ch['soff'](); base = (c % 4)*12288
        for ii in range(3):
            e(f's_add_u32 m0, s44, {base + 1024*ii}\nbuffer_load_dwordx4 v{ch["voff"]+ii}, {ch["srd"]}, s45 offen {e.o.get("wfl", "sc1")} lds')
    e.ts(1)
    mid()
    for c in range(3): issue(c)
    for c in range(n):
        infl = min(n-1-c, 2)
        e(f's_waitcnt vmcnt({3*infl})\ns_barrier')
        if c in (0, 10, 20, 30): e.ts(4 + c//10)
        if c+3 < n: issue(c+3)
        base = (c % 4)*12288; pend = []; t = TMP
        for (key, ro, va, imm) in chunks[c]['reads']:
            if U.islds(key):
                e(f'ds_read_b64_tr_b16 {v(t,2)}, {va} offset:{base+imm}'); pend.append((key, ro, t)); t += 2
            else:
                e(f'ds_read_b64_tr_b16 {U.reg(key, ro, 2)}, {va} offset:{base+imm}')
        e('s_waitcnt lgkmcnt(0)')
        for i in range(0, len(pend), 2):
            key, ro, t = pend[i]; assert pend[i+1][0] == key and pend[i+1][1] == ro+2 and ro % 4 == 0
            e(f'ds_write_b128 {vWL}, {v(t,4)} offset:{U.ldsoff(key, ro//4)}')
    e('s_waitcnt lgkmcnt(0)\ns_barrier')
    e.ts(2)

def setup_colchunk(e, vo, vr, sStride):
    for ii in range(3):
        e(f'v_add_u32 v10, {64*ii}, v1\nv_mul_u32_u24 v11, 2731, v10\nv_lshrrev_b32 v11, 16, v11')
        e(f'v_mul_u32_u24 v12, 24, v11\nv_sub_u32 v10, v10, v12\ns_lshl_b32 s40, {sW}, 3\nv_add_u32 v11, s40, v11\nv_mul_lo_u32 v11, v11, {sStride}\nv_lshl_add_u32 v{vo+ii}, v10, 4, v11')
    e(f'v_lshrrev_b32 v10, 4, v1\nv_lshlrev_b32 v10, 3, v10\nv_bfe_u32 v11, v1, 2, 2\nv_add_u32 v10, v10, v11\nv_mul_u32_u24 v10, 384, v10')
    e(f'v_and_b32 v11, 3, v1\nv_lshl_add_u32 v10, v11, 3, v10\ns_mul_i32 s40, {sW}, 96\nv_add_u32 v{vr}, s40, v10')

def col_chunks(e, srd, vo, vr, sBase, sStep, keyf):
    out = []
    for kp in range(20):
        def soff(kp=kp): e(f's_mul_i32 s45, {sXQ}, {0 if e.o.get("norot") else 4}\ns_add_u32 s45, s45, {kp}\ns_cmp_ge_u32 s45, 20\ns_cselect_b32 s43, 20, 0\ns_sub_u32 s45, s45, s43\ns_mul_i32 s45, {sStep}, s45\ns_add_u32 s45, s45, {sBase}')
        reads = []
        for t in range(3):
            for q in range(2): reads.append((keyf(t, kp//2), 4*(kp % 2)+2*q, f'v{vr}', 32*t + 1536*q))
        out.append(dict(srd=srd, voff=vo, soff=soff, reads=reads))
    return out

def xdma_list(k0, k1, sX, t0='s44', t1='s45'):
    per = (k1-k0)*2 // 4; L = []
    for i in range(per):
        x = f's_mul_i32 {t0}, {sW}, {per*1024}\ns_add_u32 {t0}, {t0}, {k0*2048}\ns_add_u32 {t1}, {t0}, {sX}\n' if i == 0 else f's_add_u32 {t1}, {t1}, 1024\n'
        L.append(f's_add_u32 m0, {t0}, {L_X + i*1024}\n' + x + f'buffer_load_dwordx4 {vL16}, {sWS}, {t1} offen sc1 lds' if i else x + f's_add_u32 m0, {t0}, {L_X}\ns_nop 0\nbuffer_load_dwordx4 {vL16}, {sWS}, {t1} offen sc1 lds')
    return L
def xdma(e, k0, k1, sX):
    for x in xdma_list(k0, k1, sX): e(x)

def memloads_def(e, MF, sM):
    def ld(k, fl=''):
        e(f'buffer_load_dwordx4 {v(MF+4*k,4)}, {vL16}, {sWS}, {sM[k//2]} offen offset:{(k%2)*1024} {fl}')
    return ld

def mem_offs(t, sM, sCR):
    for pr in range(5):
        t(f's_add_u32 s40, {sXQ}, {pr}\ns_cmp_ge_u32 s40, 5\ns_cselect_b32 s41, 5, 0\ns_sub_u32 s40, s40, s41\ns_lshl_b32 s40, s40, 14\ns_add_u32 {sM[pr]}, {sCR}, s40')

def smf(D, Af, B, idx='v4'): return f'v_smfmac_f32_16x16x64_bf16 {v(D,4)}, {v(Af,4)}, {B}, {idx}'
def mf32(D, Aop, Bop, C=None): return f'v_mfma_f32_16x16x32_bf16 {v(D,4)}, {Aop}, {Bop}, {"0" if C is None else v(C,4)}'
def mf16(D, Aop, Bop, C=None): return f'v_mfma_f32_16x16x16_bf16 {v(D,4)}, {Aop}, {Bop}, {"0" if C is None else v(C,4)}'

class Ring:
    def __init__(self, e, U, keys, base, ns):
        self.e, self.U, self.keys, self.base, self.ns = e, U, [k for k in keys if U.islds(k)], base, ns
        self.reset()
    def reset(self): self.q = 0; self.nq = 0; self.emitted = 0; self.pend = []
    def queue(self):
        if self.nq < len(self.keys):
            k = self.keys[self.nq]; r = self.base + 8*(self.nq % self.ns)
            self.pend += [f'ds_read_b128 {v(r+4*h,4)}, {vWL} offset:{self.U.ldsoff(k,h)}' for h in range(2)]
            self.nq += 1
    def fill(self, n=1):
        c = 0
        while self.pend and c < n: self.e(self.pend.pop(0)); self.emitted += 1; c += 1
        return c
    def prime(self):
        self.reset()
        for _ in range(self.ns): self.queue()
        self.fill(99)
    def wait(self, key, other=0):
        if self.U.islds(key):
            assert self.keys[self.q] == key
            need = 2*(self.q+1)
            if self.emitted < need: self.fill(need - self.emitted)
            self.e(f's_waitcnt lgkmcnt({self.emitted - need + other})')
    def op(self, D, Af, key):
        if not self.U.islds(key): self.e(smf(D, Af, self.U.reg(key))); return
        self.e(smf(D, Af, v(self.base + 8*(self.q % self.ns), 8)))
        self.q += 1; self.queue()
    def state(self): return (self.q, self.nq, self.emitted, tuple(self.pend))

NPRE = 7
def crit_pass1(e, ring, MF, sM, tiles, vMax, zero_regs):
    ld = memloads_def(e, MF, sM)
    slow, ok = e.lab('slow'), e.lab('ok')
    NPRE = e.o.get('npre', 7); PACE = e.o.get('pace', 14)
    def body(fl, first):
        zr = list(zero_regs); per = -(-len(zr)//(NPRE-1))
        for k in range(NPRE):
            ld(k, fl)
            if k == 0 and not first: e('s_waitcnt lgkmcnt(0)'); ring.prime()
            if k < NPRE-1:
                z = [zr.pop(0) for _ in range(min(per, len(zr)))]; left = max(0, PACE - len(z))
                for j, r in enumerate(z):
                    n = (left*(j+1))//len(z) - (left*j)//len(z)
                    e(f'v_mov_b32 v{r}, 0' + (f'\ns_nop {n-1}' if n else ''))
        issued = NPRE
        for k in range(10):
            e(f's_waitcnt vmcnt({issued-1-k})')
            if k == 0 and first: e.ts(2)
            if k == 1 and first and e.o.get('early', 0): e(f's_cbranch_vccnz {slow}')
            todo = ['ld'] if issued < 10 else []
            for i, (D, kf) in enumerate(tiles):
                ring.wait(kf(k))
                ring.op(D, MF+4*k, kf(k))
                if i == len(tiles)-1:
                    ring.fill(99)
                    if todo: ld(issued, fl); issued += 1
                    if k == 0 and first and e.o.get('early', 0): e(f'v_cmp_u_f32 vcc, v{MF}, v{MF+3}')
                elif ring.fill(1): pass
                elif todo: todo.pop(); ld(issued, fl); issued += 1
    e.ts(1)
    body('', True)
    end = ring.state()
    backs = []
    def nancheck(D, summed=False):
        c = e.lab('chk'); bk = e.lab('bk'); backs.append((c, bk))
        if summed: return [f'v_cmp_u_f32 vcc, v{D}, v{D+2}', f's_cbranch_vccnz {c}\n{bk}:']
        return [f'v_cmp_u_f32 s[62:63], v{D}, v{D+1}', f'v_cmp_u_f32 vcc, v{D+2}, v{D+3}', f's_or_b64 vcc, vcc, s[62:63]\ns_cbranch_scc1 {c}\n{bk}:']
    def slowpath():
        (c, bk), = backs
        e(f'{c}:\ns_cmp_lt_u32 s34, 2\ns_cbranch_scc1 {slow}\nv_mov_b32 {vMax}, 0')
        for k in range(10):
            r = MF+4*k; e(f'v_max3_u32 {vMax}, {vMax}, v{r}, v{r+1}\nv_max3_u32 {vMax}, {vMax}, v{r+2}, v{r+3}')
        e(f'v_cmp_eq_u32 vcc, -1, {vMax}\ns_cbranch_vccz {bk}')
        go = e.lab('go'); e.tmo(go); e(f'{go}:')
        e(f'{slow}:\ns_add_u32 s34, s34, 1\ns_nop 7')
        if e.o.get('damp', 0): e('s_mov_b64 s[30:31], 0')
        body('sc1', False)
        assert ring.state() == end
        e(f's_nop 7\ns_branch {ok}')
    e(f'{ok}:')
    return nancheck, slowpath

class Tok1:
    def __init__(self, e, U, tiles, XB, ST):
        self.e, self.U, self.tiles, self.XB, self.ST, self.id = e, U, tiles, XB, ST, e.lab('t')
    def lds_keys(self, kp): return [kf(kp//2) for (_, kf) in self.tiles if self.U.islds(kf(kp//2))]
    def reads(self, kp):
        b = kp % 3
        out = [f'ds_read_b128 {v(self.XB+8*b+4*tt,4)}, {vL16} offset:{L_X + kp*2048 + tt*1024}' for tt in range(2)]
        out += [f'ds_read_b128 {v(self.ST+8*b+4*i,4)}, {vWL} offset:{self.U.ldsoff(k, kp%2)}' for i, k in enumerate(self.lds_keys(kp))]
        out[-1] += f' ;@{self.id}_{kp}'
        return out
    def prologue(self): return self.reads(0) + self.reads(1)
    def run(self, hooks, extra, late=None):
        e, U = self.e, self.U
        extra = list(extra); hk = list(hooks[-1]()) if -1 in hooks else []; late = late or {}
        for kp in range(20):
            nxt = self.reads(kp+2) if kp+2 < 20 else []
            e(f'@wl {self.id}_{kp}')
            b = kp % 3; lk = self.lds_keys(kp); n = 0
            for (acc, kf) in self.tiles:
                k = kf(kp//2)
                Aop = v(self.ST+8*b+4*lk.index(k), 4) if U.islds(k) else U.reg(k, 4*(kp % 2), 4)
                for tt in range(2):
                    e(mf32(acc+4*tt, Aop, v(self.XB+8*b+4*tt, 4), None if kp == 0 else acc+4*tt)); n += 1
                    if (kp, n) in late: e(late[(kp, n)])
                    elif nxt: e(nxt.pop(0))
                    elif hk and n % 4 == 1: e(hk.pop(0))
                    else:
                        c = 0
                        while extra and c < 2:
                            if extra[0] == '-':
                                if c == 0: extra.pop(0)
                                break
                            x = extra.pop(0)
                            if x == '|':
                                if c: break
                                continue
                            e(x); c += 2 if x.startswith(('v_exp', 'v_rcp', 'v_perml', 'buffer_', 'ds_', 's_')) or 'barrier' in x else 1
            assert not nxt
            if kp in hooks: hk += hooks[kp]()
        assert not hk and not [x for x in extra if x not in '|-'], (hk, extra)

def salu_groups(t):
    sal = [x.strip() for x in t.L]; L = []; cur = []
    for x in sal:
        if len(cur) == 3 or (x.startswith('s_cmp') and len(cur) == 2): L.append('\n'.join(cur)); cur = []
        cur.append(x)
    L.append('\n'.join(cur))
    return L

def schedule(e, main, ops, pos0, burst=99):
    pos = dict(pos0); n0 = len(e.L); ops = list(ops); main = list(main)
    cur = lambda: sum(1 for x in e.L[n0:] if not x.strip().endswith(':'))
    def dist(d):
        L = [x.strip() for x in e.L[n0:] if not x.strip().endswith(':')]
        a = len(L) - pos[d] - 1
        ism = lambda x: x.startswith(('v_mfma', 'v_smfmac'))
        if pos[d] < 0 or ism(L[pos[d]]):
            later = [i for i in range(max(pos[d]+1, 0), len(L)) if ism(L[i])]
            if later: a = max(a, 4*len(later) + len(L) - later[-1] - 1)
        return a
    def ready(o): return all(d in pos and dist(d) >= k for d, k in o[3])
    def emit(o): pos[o[0]] = cur(); e(o[1]); ops.remove(o)
    def fillers(n):
        for o in [o for o in ops if o[2] == 's' and ready(o)]: emit(o)
        for _ in range(n):
            c = [o for o in ops if o[2] == 'v' and ready(o)]
            if c: emit(c[0])
    while main:
        c = [o for o in ops if o[2] == 'm' and ready(o)]
        if c: emit(c[0]); fillers(2); continue
        nm, fn = main.pop(0); c0 = cur(); fn(); L = [x.strip() for x in e.L[n0:] if not x.strip().endswith(':')]; pos[nm] = max(i for i in range(c0, len(L)) if L[i].startswith('v_smf')); fillers(1)
        if len([o for o in ops if o[2] == 'v' and all(d in pos for d, _ in o[3])]) >= burst: fillers(1)
    while ops:
        c = [o for o in ops if ready(o)]
        if c: emit(c[0])
        else: e('s_nop 0')

def flagclear_bulk(e, blk, vt):
    e(f'v_lshlrev_b32 v{vt}, 22, v1\ns_lshl_b32 s40, {sSIDE}, 13\ns_add_u32 s40, s40, s42\ns_add_u32 s40, s40, {BULK + blk*BS}')
    e(f'v_mov_b32 v{vt+1}, -1\ns_mov_b32 exec_hi, 0\nbuffer_store_dword v{vt+1}, v{vt}, {sWS}, s40 offen sc1\ns_mov_b32 exec_hi, -1')

def role_vo(e):
    keys_l = [('v', 2, k) for k in range(10)] + [('v', 1, k) for k in (2, 5, 8)]
    keys_r = [('o', u, k) for u in range(10) for k in range(3)] + [('v', t, k) for t in range(2) for k in range(10) if ('v', t, k) not in keys_l]
    U = Units(keys_r, keys_l)
    sFFN, sSTR, sWB, sSTP, sOB = 's29', 's30', 's31', 's32', 's33'
    sCR, sCR2, sB0, sB1, sX, sM = 's35', 's36', 's37', 's38', 's39', ('s46', 's47', 's48', 's58', 's59')
    sSL, sFR = 's49', 's50'
    L_VX, L_VM = L_MISC, L_MISC + 12288
    e('L_VO:')
    e.srd(8, 4, 7864320); e.srd(12, 5, 7864320)
    e(f's_lshl_b32 {sU}, {sXQ}, 3\ns_add_u32 {sU}, {sU}, {sJ}\ns_sub_u32 {sU}, {sU}, 8\ns_mov_b32 {sFFN}, 0\ns_mov_b32 {sSTR}, 12288\ns_mov_b32 s42, {sU}\ns_branch L_VF')
    e('L_FFN:')
    e.srd(8, 8, 1966080); e.srd(12, 9, 1966080)
    e(f's_lshl_b32 {sU}, {sXQ}, 1\ns_add_u32 {sU}, {sU}, {sJ}\ns_sub_u32 {sU}, {sU}, 26\ns_mov_b32 {sFFN}, 1\ns_mov_b32 {sSTR}, 3072\ns_add_u32 s42, {sU}, 32')
    e('L_VF:')
    e(f's_lshr_b32 s40, s42, 3\ns_lshl_b32 s40, s40, 14\ns_and_b32 s41, s42, 7\ns_lshl_b32 s41, s41, 10\ns_add_u32 {sSL}, s40, s41\ns_lshl_b32 s51, s42, 7')
    e(f's_mul_i32 {sWB}, {sU}, 384\ns_lshl_b32 {sSTP}, {sSTR}, 5\ns_mul_i32 {sOB}, {sU}, 245760')
    common_wsetup(e)
    VO1, VR1, VO2, VR2 = 16, 19, 20, 23
    setup_colchunk(e, VO1, VR1, sSTR)
    for ii in range(3):
        e(f's_mul_i32 s40, {sW}, 192\ns_add_u32 s40, s40, {64*ii}\nv_add_u32 v10, s40, v1\nv_mul_u32_u24 v11, 1639, v10\nv_lshrrev_b32 v11, 16, v11')
        e(f'v_mul_u32_u24 v12, 40, v11\nv_sub_u32 v12, v10, v12\nv_mul_u32_u24 v11, 1280, v11\nv_lshl_add_u32 v{VO2+ii}, v12, 4, v11')
        e(f'v_mov_b32 v11, 0x40000000\nv_cmp_gt_u32 vcc, 640, v10\nv_cndmask_b32 v{VO2+ii}, v11, v{VO2+ii}, vcc')
    e(f'v_lshrrev_b32 v10, 2, v1\nv_mul_u32_u24 v10, 640, v10\nv_and_b32 v11, 3, v1\nv_lshl_add_u32 v10, v11, 3, v10\ns_mul_i32 s40, {sW}, 160\nv_add_u32 v{VR2}, s40, v10')
    chunks = col_chunks(e, sA, VO1, VR1, sWB, sSTP, lambda t, k: ('v', t, k))
    for r16 in range(12):
        for hf in range(2):
            def soff(r16=r16, hf=hf): e(f's_add_u32 s45, {sOB}, {r16*16*1280 + hf*640}')
            chunks.append(dict(srd=sB, voff=VO2, soff=soff, reads=[(('o', 5*hf+uu, r16//4), 2*(r16 % 4), f'v{VR2}', 32*uu) for uu in range(5)]))
    e(f'v_and_b32 v13, 15, v1\nv_lshrrev_b32 v14, 4, v1')
    e(f'v_and_b32 v4, 1, v1\nv_mul_u32_u24 v4, 0xaaaa, v4\nv_add_u32 v4, 0x4444, v4')
    for (dst, tau) in ((5, 0), (6, 1)):
        e(f's_mul_i32 s40, {sW}, 3\ns_add_u32 s40, s40, {tau}\ns_lshr_b32 s41, s40, 1\ns_and_b32 s40, s40, 1')
        e(f's_lshl_b32 s43, s41, 10\ns_lshl_b32 s44, s40, 3\ns_add_u32 s43, s43, s44\ns_add_u32 s43, s43, {L_VX}\nv_add_u32 v{dst}, s43, {vL16}')
        e(f's_lshl_b32 s43, s41, 9\ns_lshl_b32 s44, s40, 2\ns_add_u32 s43, s43, s44\ns_add_u32 s43, s43, {L_VM}\nv_mov_b32 v{dst+2}, s43')
    e('''v_lshrrev_b32 v10, 3, v13
    v_lshlrev_b32 v10, 8, v10
    v_bfe_u32 v11, v13, 1, 1
    v_lshl_add_u32 v10, v11, 4, v10
    v_bfe_u32 v11, v13, 2, 1
    v_lshl_add_u32 v10, v11, 3, v10
    v_and_b32 v11, 1, v13
    v_lshl_add_u32 v10, v11, 1, v10
    v_lshl_add_u32 v10, v14, 6, v10
    v_add_u32 v7, v7, v10
    v_add_u32 v8, v8, v10''')
    e(f'''v_and_b32 v10, 1, v14
    v_lshrrev_b32 v11, 1, v14
    v_lshl_add_u32 v12, v10, 1, v11
    s_mul_i32 s40, {sW}, 5
    s_add_u32 s40, s40, {B_VOM}
    s_lshl_b32 s40, s40, 14
    s_lshl_b32 s41, {sU}, 8
    s_add_u32 s40, s40, s41
    v_lshl_add_u32 v15, v13, 4, s40
    v_lshl_add_u32 v9, v12, 14, v15
    v_lshlrev_b32 v10, 3, v10
    v_add_u32 v11, 23, v11
    v_lshl_add_u32 v11, v11, 14, v15
    v_add_u32 v11, v11, v10
    v_add_u32 v10, {19*BS}, v9
    v_add_u32 v15, {4*BS}, v9
    v_cmp_eq_u32 vcc, 0, v12
    v_cndmask_b32 v10, v10, v15, vcc
    v_mov_b32 v12, 0''')
    def clear_vom(so):
        for r in range(124, 128): e(f'v_mov_b32 v{r}, -1')
        e(f'buffer_store_dwordx4 v[124:127], v9, {sWS}, {so} offen sc1\nbuffer_store_dwordx4 v[124:127], v10, {sWS}, {so} offen sc1\nbuffer_store_dwordx2 v[124:125], v11, {sWS}, {so} offen sc1')
    def mid(): e('s_waitcnt lgkmcnt(0)')
    load_weights(e, U, chunks, mid)
    e.wait_start(vt=30)
    e(f's_lshl_b32 {sX}, {sSIDE}, 3\ns_add_u32 {sX}, {sX}, {sXQ}\ns_lshl_b32 {sX}, {sX}, 13\ns_add_u32 {sX}, {sX}, {XN}')
    xdma(e, 0, 20, sX)
    XB, ST, AC1, VF, AC2, PK = 40, 64, 92, 84, 16, 32
    T1 = Tok1(e, U, [(AC1+8*t, (lambda k, t=t: ('v', t, k))) for t in range(3)], XB, ST)
    e(f's_sub_u32 {sS}, {sSIDE}, 2\ns_mov_b64 s[54:55], 0\ns_mov_b64 s[56:57], 0\ns_mov_b64 s[60:61], 0\ns_mov_b32 s53, 1\ns_mov_b32 s43, 0\ns_mov_b32 s52, 0')
    e('s_waitcnt vmcnt(0)\ns_barrier')
    for x in T1.prologue(): e(x.split(';@')[0])
    e('s_waitcnt lgkmcnt(0)\ns_branch L_VF_B')
    e('L_VF_loop:')
    e.ts(0)
    for kp in range(6):
        for tt in range(2): e(f'ds_read_b128 {v(VF+8*kp+4*tt,4)}, {vL16} offset:{L_VX + (tt*6+kp)*1024} ;@vf{kp}')
    t = G(**e.o); t(f's_add_u32 {sX}, {sX}, 131072\ns_mov_b32 s53, {sFFN}\ns_mov_b64 s[60:61], -1'); t.bulk_off(sB0)
    t(f's_add_u32 {sB1}, {sB0}, {2<<20}\ns_xor_b32 {sB1}, {sB1}, 8192')
    t(f's_mul_i32 s42, {sW}, {25*BS}\ns_add_u32 s42, s42, {sSL}\ns_add_u32 s43, s42, {sB1}\ns_add_u32 s42, s42, {sB0}')
    t(f's_add_u32 s52, {sB0}, s51\ns_add_u32 s52, s52, {B_VF*BS}')
    t(f's_cmp_eq_u32 {sFFN}, 0\ns_cselect_b64 s[54:55], -1, 0\ns_cmp_eq_u32 {sW}, 0\ns_cselect_b64 s[56:57], 1, 0')
    sa = salu_groups(t)
    dm = xdma_list(0, 20, sX); dm[-1] += ' ;@xdma'
    def fin(u):
        ac = AC2+8*(u % 2); pk = PK+4*(u % 2); sr = 's42' if u < 5 else 's43'
        c = [f'v_cvt_pk_bf16_f32 v{pk+i}, v{ac+4*(i&1)+2*(i>>1)}, v{ac+4*(i&1)+2*(i>>1)+1}' for i in (0, 2, 1, 3)]
        st = f'buffer_store_dwordx4 {v(pk,4)}, {vL16}, {sWS}, {sr} offen sc1'
        return [c[0]+'\n'+c[1], c[2]+'\n'+c[3], (f's_add_u32 {sr}, {sr}, {5*BS}\n' if u % 5 else '') + st]
    pro = T1.prologue()
    for u in range(10):
        ac = AC2+8*(u % 2); pend = fin(u-1) if u else []
        n = 0
        for kp in range(6):
            if u == 0: e(f'@wl vf{kp}')
            for tt in range(2):
                e(mf32(ac+4*tt, v(VF+8*kp+4*tt, 4), U.reg(('o', u, kp//2), 4*(kp % 2), 4), None if kp == 0 else ac+4*tt)); n += 1
                if u == 0:
                    if sa: e(sa.pop(0))
                elif n in (2, 3, 4): e(pend.pop(0))
                elif n in (7, 11) and dm: e(dm.pop(0))
                elif u == 9 and n == 5: e('@wv xdma\ns_barrier')
                elif u == 9 and n >= 6 and pro: e(pro.pop(0))
        assert not sa
    assert not pro and not dm
    e('L_VF_B:')
    e.ts(6)
    t = G(**e.o); t.crit_off(sCR); t.crit_off(sCR2, 2); mem_offs(t, sM, sCR)
    t(f's_lshl_b32 s40, {sW}, 2\ns_add_u32 s40, s40, {sXQ}\ns_lshl_b32 s40, s40, 8\ns_add_u32 {sFR}, {sCR}, s40\ns_add_u32 {sFR}, {sFR}, {B_FL*BS}\ns_mov_b32 s34, 0')
    f9 = fin(9); x = f9[2].split('\n')
    ex = [f9[0], '|', f9[1], '|', f'{x[0]}\ns_mov_b64 exec, s[60:61]\n{x[1]}\ns_mov_b64 exec, -1'] + salu_groups(t)
    ex += [f'v_mov_b32 v{r}, -1' for r in range(124, 128)]
    def hkflag():
        e('s_waitcnt vmcnt(0)\ns_barrier')
        return [f's_mov_b64 exec, s[56:57]\nbuffer_store_dword v12, v12, {sWS}, s52 offen sc1\ns_mov_b64 exec, -1']
    def hkclr(): return [f's_mov_b64 exec, s[54:55]\nbuffer_store_{x}, {sWS}, {sCR2} offen sc1\ns_mov_b64 exec, -1' for x in ('dwordx4 v[124:127], v9', 'dwordx4 v[124:127], v10', 'dwordx2 v[124:125], v11')]
    T1.run({7: hkflag, 11: hkclr}, ex)
    e.ts(7)
    l = e.lab('nsilu'); e(f's_cmp_lg_u32 {sFFN}, 0\ns_cbranch_scc1 L_silu\n{l}:')
    n0 = len(e.L); e('L_silu:\ns_nop 7')
    for r in range(AC1, AC1+24, 2):
        e(f'v_cvt_pk_bf16_f32 v16, v{r}, v{r+1}\nv_lshlrev_b32 v{r}, 16, v16\nv_and_b32 v{r+1}, 0xffff0000, v16')
        e(f'v_mul_f32 v16, {f2u(-LOG2E)}, v{r}\nv_mul_f32 v17, {f2u(-LOG2E)}, v{r+1}\nv_exp_f32 v16, v16\nv_exp_f32 v17, v17\nv_add_f32 v16, 1.0, v16\nv_add_f32 v17, 1.0, v17')
        e(f'v_rcp_f32 v16, v16\nv_rcp_f32 v17, v17\nv_mul_f32 v{r}, v{r}, v16\nv_mul_f32 v{r+1}, v{r+1}, v17')
    e(f's_branch {l}'); silu_code = e.L[n0:]; del e.L[n0:]
    for t in range(3):
        for tt in range(2):
            r = AC1+8*t+4*tt; d = 16+4*t+2*tt
            e(f'v_cvt_pk_bf16_f32 v{d}, v{r}, v{r+1}\nv_cvt_pk_bf16_f32 v{d+1}, v{r+2}, v{r+3}')
            e(f'ds_write_b64 {"v6" if t == 1 else "v5"}, {v(d,2)} offset:{tt*6144 + (1024 if t == 2 else 0)}')
    e(f's_cmp_lg_u32 s53, 0\ns_cbranch_scc1 L_VF_skip')
    MF, AC, RS, AD = 16, 56, 68, 92
    order = [('v', t, k) for k in range(10) for t in (2, 1, 0)]
    ring = Ring(e, U, order, RS, 3)
    ring.prime()
    e.ts(5)
    e.poll('v12', sFR, 132)
    e('s_barrier')
    nanchk, slow = crit_pass1(e, ring, MF, sM, [(AC+4*t, (lambda k, t=t: ('v', t, k))) for t in (2, 1, 0)], 'v13', list(range(AC, AC+12)) + list(range(AD, AD+40)))
    e.ts(10)
    nc = nanchk(AC+8, True)
    for t in (2, 1, 0):
        d = AC+4*t
        e(f'v_add_f32 v{d}, v{d}, v{d+1}\nv_add_f32 v{d+2}, v{d+2}, v{d+3}\nv_cvt_pk_bf16_f32 v{d+1}, v{d}, v{d+2}')
        va = 'v8' if t == 1 else 'v7'; o = 512 if t == 2 else 0
        e(f'ds_write_b16 {va}, v{d+1} offset:{o}\nds_write_b16_d16_hi {va}, v{d+1} offset:{o+32}')
    for x in nc: e(x)
    e('s_waitcnt lgkmcnt(0)\ns_barrier')
    for k in range(3): e(f'ds_read_b128 {v(MF+4*k,4)}, {vL16} offset:{L_VM + k*1024}')
    e.ts(3)
    OT = 28
    main = []; ops = []
    for pi in range(5):
        for u in (2*pi, 2*pi+1):
            for k in range(3):
                def fn(pi=pi, k=k, u=u):
                    if u == 0: e(f's_waitcnt lgkmcnt({2-k})')
                    e(smf(AD+4*u, MF+4*k, U.reg(('o', u, k))))
                main.append((f's{u}_{k}', fn))
        for u in (2*pi, 2*pi+1):
            d = AD+4*u; o = OT+u
            ops.append((f'a{u}', f'v_add_f32 v{d}, v{d}, v{d+1}', 'v', [(f's{u}_2', 8)]))
            ops.append((f'b{u}', f'v_add_f32 v{d+2}, v{d+2}, v{d+3}', 'v', [(f'a{u}', 0)]))
            ops.append((f'c{u}', f'v_cvt_pk_bf16_f32 v{o}, v{d}, v{d+2}', 'v', [(f'b{u}', 0)]))
        o = OT+2*pi
        ops.append((f'w{pi}', f'v_permlane32_swap_b32 v{o}, v{o+1}', 'v', [(f'c{2*pi}', 2), (f'c{2*pi+1}', 2)]))
        if pi in (1, 3):
            g0 = OT+4*(pi//2)
            ops.append((f'x{pi}_0', f'v_permlane16_swap_b32 v{g0}, v{g0+2}', 'v', [(f'w{pi}', 2), (f'w{pi-1}', 2)]))
            ops.append((f'x{pi}_1', f'v_permlane16_swap_b32 v{g0+1}, v{g0+3}', 'v', [(f'w{pi}', 2), (f'w{pi-1}', 2)]))
            ops.append((f'st{pi}', f'buffer_store_dwordx4 {v(g0,4)}, v{9+pi//2}, {sWS}, {sCR} offen sc1', 'v', [(f'x{pi}_1', 0), (f'x{pi}_0', 0)]))
        if pi == 4:
            ops.append(('st4', f'buffer_store_dwordx2 {v(o,2)}, v11, {sWS}, {sCR} offen sc1', 'v', [('w4', 0)]))
    schedule(e, main, ops, {}, burst=3)
    if e.o.get('ackts'): e.ts(9); e('s_waitcnt vmcnt(0)')
    e.ts(4)
    e.tsflush(11, 60)
    e('L_VF_next:')
    e(f's_add_u32 {sS}, {sS}, 2\ns_cmp_lt_u32 {sS}, {e.o["nseg"]}\ns_cbranch_scc1 L_VF_loop\ns_branch L_end')
    e('L_VF_skip:\ns_waitcnt lgkmcnt(0)\ns_barrier\ns_branch L_VF_next')
    slow()
    e.L += silu_code

def dppred(op, m):
    return [f'{op}_dpp v{m}, v{m}, v{m} {c} row_mask:0xf bank_mask:0xf' for c in ('quad_perm:[1,0,3,2]', 'quad_perm:[2,3,0,1]', 'row_half_mirror', 'row_ror:8')]

def role_qk(e):
    keys_l = [('q', 2, k) for k in range(10)] + [('k', 1, k) for k in (5, 7, 9)]
    K1ORD = [0, 5, 1, 2, 7, 3, 4, 9, 6, 8]
    keys_r = [(m, t, k) for m in 'qk' for t in range(3) for k in range(10) if (m, t, k) not in keys_l]
    U = Units(keys_r, keys_l)
    sSTR, sWB, sSTP = 's30', 's31', 's32'
    sCR, sCR2, sB0, sX, sM = 's35', 's36', 's37', 's39', ('s46', 's47', 's48', 's56', 's57')
    sFR, sPT, sPTc, sLead, sRP, sPTo = 's50', 's51', 's52', 's53', 's49', 's33'
    sC2 = 's[54:55]'
    mN8, mMM, mV, mTA = 's[56:57]', 's[58:59]', 's[60:61]', 's[64:65]'
    L_SM, L_TM = L_MISC, L_MISC + 12288
    vZ = 'v6'; SEL = 12
    CM = [f's[{r}:{r+1}]' for r in (8, 10, 12, 14, 94, 96, 98, 100)]
    e('L_QK:')
    e.srd(8, 2, 7864320); e.srd(12, 3, 7864320)
    e(f's_lshl_b32 {sU}, {sXQ}, 3\ns_add_u32 {sU}, {sU}, {sJ}\ns_mov_b32 {sSTR}, 12288\ns_mul_i32 {sWB}, {sU}, 384\ns_lshl_b32 {sSTP}, {sSTR}, 5')
    e(f's_mov_b32 s56, 0x00ff00ff\ns_mov_b32 s57, 0x00ff00ff\ns_mov_b32 s58, 0\ns_mov_b32 s59, 0x00ff00ff\ns_mov_b32 s60, 0x03ff03ff\ns_mov_b32 s61, 0x03ff03ff\ns_mov_b32 s54, {CSC}\ns_mov_b32 s55, {CSC}')
    e(f's_lshl_b32 s40, {sJ}, 2\ns_add_u32 s40, s40, {sW}\ns_cmp_eq_u32 s40, 3\ns_cselect_b32 {sLead}, 1, 0')
    e(f's_cmp_lt_u32 {sW}, 2\ns_cselect_b64 s[42:43], {mV}, 0\ns_mov_b32 s24, s42\ns_add_u32 s40, {sW}, 1\ns_bitcmp1_b32 s40, 1\ns_cselect_b64 {mTA}, -1, 0')
    common_wsetup(e)
    VO1, VR1 = 16, 19
    setup_colchunk(e, VO1, VR1, sSTR)
    cq = col_chunks(e, sA, VO1, VR1, sWB, sSTP, lambda t, k: ('q', t, k))
    ck = col_chunks(e, sB, VO1, VR1, sWB, sSTP, lambda t, k: ('k', t, k))
    chunks = [c for p in zip(cq, ck) for c in p]
    e(f'v_and_b32 v20, 15, v1\nv_lshrrev_b32 v21, 4, v1\nv_and_b32 v22, 1, v21\nv_lshrrev_b32 v23, 1, v21')
    e(f'v_and_b32 v4, 1, v1\nv_mul_u32_u24 v4, 0xaaaa, v4\nv_add_u32 v4, 0x4444, v4')
    e(f"""s_mul_i32 s40, {sW}, 1280
    s_add_u32 s40, s40, {L_SM}
    v_mul_u32_u24 v5, 160, v20
    v_lshl_add_u32 v5, v21, 4, v5
    v_add_u32 v5, s40, v5
    v_lshrrev_b32 v24, 3, v20
    v_mul_u32_u24 v24, {6144-1280}, v24
    v_add_u32 v5, v5, v24
    s_and_b32 s43, {sW}, 1
    s_lshl_b32 s43, s43, 2
    v_add_u32 v24, s43, v21
    v_mul_u32_u24 v0, 160, v24
    v_and_b32 v25, 9, v20
    v_lshl_add_u32 v0, v25, 4, v0
    v_bfe_u32 v25, v20, 1, 1
    v_lshl_add_u32 v0, v25, 6, v0
    v_bfe_u32 v25, v20, 2, 1
    v_lshl_add_u32 v0, v25, 5, v0
    v_mov_b32 {vZ}, 0
    s_lshl_b32 s40, {sW}, 10
    v_add_u32 v7, s40, {vL16}
    s_lshr_b32 s41, {sW}, 1
    s_lshl_b32 s40, s41, 9
    s_add_u32 s40, s40, {L_TM}
    v_lshl_add_u32 v8, v20, 4, s40
    v_lshl_add_u32 v8, v23, 8, v8
    v_lshl_add_u32 v8, v22, 3, v8
    s_lshl_b32 s40, s41, 4
    v_add_u32 v10, s40, v20
    v_lshlrev_b32 v11, 2, v21
    v_sub_u32 v10, v10, v11
    v_lshlrev_b32 v11, 4, v20
    v_lshl_add_u32 v11, v22, 3, v11
    v_lshl_add_u32 v11, v23, 2, v11""")
    e(f"""s_mul_i32 s41, s41, 40
    s_add_u32 s40, s41, {sU}
    s_lshr_b32 s42, s40, 3
    s_lshl_b32 s42, s42, 14
    s_and_b32 s40, s40, 7
    s_lshl_b32 s40, s40, 10
    s_add_u32 {sPTc}, s42, s40
    s_lshr_b32 s40, {sU}, 2
    s_add_u32 s40, s40, s41
    s_add_u32 s40, s40, 32
    s_lshr_b32 s42, s40, 3
    s_lshl_b32 s42, s42, 14
    s_and_b32 s40, s40, 7
    s_lshl_b32 s40, s40, 10
    s_add_u32 s42, s42, s40
    s_and_b32 s40, {sU}, 3
    s_lshl_b32 s40, s40, 8
    s_add_u32 s42, s42, s40
    s_sub_u32 s42, s42, {sPTc}
    v_add_u32 v11, s42, v11
    s_add_u32 {sPTc}, {sPTc}, {B_PT*BS}""")
    e(f"""v_lshlrev_b32 v25, 5, v24
    v_and_b32 v26, 1, v20
    v_lshl_add_u32 v27, v26, 4, v25
    v_and_b32 v26, 3, v20
    v_lshl_add_u32 v25, v26, 3, v25
    s_lshr_b32 s40, {sU}, 1
    s_lshl_b32 s40, s40, 8
    s_and_b32 s41, {sU}, 1
    s_lshl_b32 s41, s41, 3
    s_add_u32 s40, s40, s41
    s_add_u32 s40, s40, {B_P*BS}
    v_add_u32 v27, s40, v27
    s_lshr_b32 s41, {sU}, 3
    s_lshl_b32 s41, s41, 14
    s_and_b32 s40, {sU}, 7
    s_lshl_b32 s40, s40, 9
    s_add_u32 s40, s40, s41
    s_add_u32 s40, s40, {(B_P+1)*BS}
    v_bfe_u32 v26, v20, 2, 1
    v_lshl_add_u32 v25, v26, 8, v25
    v_add_u32 v9, s40, v25
    v_cmp_gt_u32 vcc, 8, v20
    v_cndmask_b32 v9, v27, v9, vcc""")
    e('v_lshlrev_b32 v25, 1, v21\nv_sub_u32 v25, v20, v25\nv_mov_b32 v26, 0x3f803f80')
    for r, j in ((0, 0), (1, 1), (2, 8), (3, 9)):
        e(f'v_cmp_eq_u32 vcc, {j}, v25\nv_cndmask_b32 v{SEL+r}, 0, v26, vcc')
    def mid(): e('s_waitcnt lgkmcnt(0)')
    load_weights(e, U, chunks, mid)
    e.wait_start(vt=30)
    e(f's_mov_b32 {sS}, {sSIDE}\ns_lshl_b32 {sX}, {sS}, 3\ns_add_u32 {sX}, {sX}, {sXQ}\ns_lshl_b32 {sX}, {sX}, 13\ns_add_u32 {sX}, {sX}, {XN}')
    xdma(e, 0, 20, sX)
    e(f's_mov_b64 s[66:67], 0\ns_mov_b32 {sPT}, 0\ns_waitcnt vmcnt(0) lgkmcnt(0)\ns_barrier')
    X = 16
    SA = [116, 124, 132, 28, 32]
    def ta_pre():
        L = [f'ds_write_b128 v7, {v(SA[i],4)} offset:{L_MISC + i*4096}' for i in range(3)]
        L += [f's_mov_b32 exec_lo, 0\nds_write_b128 v7, {v(SA[3+tq],4)} offset:{L_TM - 512 + tq*512} ;@sw\ns_mov_b32 exec_lo, -1' for tq in range(2)]
        L = [y for x in L for y in (x, '-')]
        L += [f's_lshr_b32 s40, {sW}, 1\ns_lshl_b32 s40, s40, 12', f'v_add_u32 v38, s40, {vL16}', 'v_add_u32 v39, s40, v38', f'v_mov_b32 v37, {f2u(-1e9 * 192**0.5)}', '-', '@wl sw\ns_barrier']
        dst = [(X, X+4, X+8), (26, 30, 34), (116, 124, 132), (26, 30, 34)]
        rd = lambda w: [f'ds_read_b128 {v(dst[w][0],4)}, v38 offset:{L_MISC + w*1024}', f'ds_read_b128 {v(dst[w][1],4)}, v39 offset:{L_MISC + w*1024}', f'ds_read_b64 {v(dst[w][2],2)}, v8 offset:{w*1024} ;@sr{w}']
        ad = lambda w: ['|'] + [(f'@wl sr{w}\n' if i == 0 else '') + f'v_add_f32 v{X+i}, v{X+i}, v{dst[w][i//4] + i % 4}' for i in range(10)]
        return L + rd(0) + rd(1) + rd(2) + ['-'] + ad(1) + rd(3) + ad(2) + ad(3)
    def ta_ops(inter=True):
        m, t = 34, 36
        L = []
        for i in range(8): L.append(f'v_cndmask_b32 v{X+i}, v37, v{X+i}, {CM[i]}')
        L += [f'v_max3_f32 v{m}, v{X}, v{X+1}, v{X+2}'] + [f'v_max3_f32 v{m}, v{m}, v{X+i}, v{X+i+1}' for i in (3, 5, 7)] + [f'v_max_f32 v{m}, v{m}, v{X+9}']
        def xs(op):
            o = []
            for st in (16, 32): o += [f'v_mov_b32 v{t}, v{m}\ns_nop 0', '|', f'v_permlane{st}_swap_b32 v{m}, v{t}', f'{op} v{m}, v{m}, v{t}']
            return o
        L += xs('v_max_f32')
        L += [f'v_mul_f32 v{m}, s54, v{m}']
        L += [f'v_fma_f32 v{X+i}, v{X+i}, s54, -v{m}' for i in range(10)]
        L += [f'v_exp_f32 v{X+i}, v{X+i}' for i in range(10)]
        L += [f'v_add_f32 v{m}, v{X}, v{X+1}'] + [f'v_add_f32 v{m}, v{m}, v{X+i}' for i in range(2, 10)]
        L += xs('v_add_f32')
        L += ['|', f'v_rcp_f32 v{m}, v{m}']
        L += [f'v_mul_f32 v{X+i}, v{X+i}, v{m}' for i in range(10)]
        L += [f'v_cvt_pk_bf16_f32 v{28+d}, v{X+4*(d&1)+2*(d>>1)}, v{X+4*(d&1)+2*(d>>1)+1}' for d in range(4)] + [f'v_cvt_pk_bf16_f32 v32, v{X+8}, v{X+9}', '|']
        L += [f's_mov_b64 exec, s[66:67]\nbuffer_store_dwordx4 v[28:31], {vL16}, {sWS}, {sPTo} offen sc1\ns_mov_b64 exec, -1', '|',
              f's_mov_b64 exec, s[66:67]\nbuffer_store_dword v32, v11, {sWS}, {sPTo} offen sc1\ns_mov_b64 exec, -1', '|']
        fp = f's_mov_b64 exec, s[92:93]\nbuffer_store_dword {vZ}, {vL16}, {sWS}, s32 offen sc1\ns_mov_b64 exec, -1'
        pos = len(L) - (e.o.get('fplead', 30) if inter else 0)
        L[pos:pos] = ['|', fp]
        return L
    for i in range(8): e(f'v_cmp_le_i32 {CM[i]}, {(i//4)*16 + i % 4}, v10')
    e(f's_mov_b64 s[92:93], 0\ns_mov_b32 s32, 0\ns_mul_i32 s68, {sLead}, 0x10001\ns_mov_b32 s69, s68\ns_mov_b32 s42, s24\ns_mov_b32 s43, s24')
    e('L_QK_loop:')
    e.ts(0)
    AC, XB, ST = 40, 88, 112
    Q = lambda tt: 16+6*tt
    Kt = lambda tt: 28+6*tt
    tiles = [(AC+8*(3*mi+t), (lambda k, m=m, t=t: (m, t, k))) for mi, m in enumerate('qk') for t in range(3)]
    T1 = Tok1(e, U, tiles, XB, ST)
    for x in T1.prologue(): e(x)
    e(f's_mov_b32 {sPTo}, {sPT}')
    def hk0():
        L = xdma_list(12, 20, sX); L[-1] += f' ;@xlate\ns_add_u32 {sX}, {sX}, 131072'; return L
    def hk(k0, k1):
        def f(): e('s_barrier'); return xdma_list(k0, k1, sX)
        return f
    def hk9(): e('@wv xlate\ns_barrier'); return []
    t = G(**e.o); t.crit_off(sCR); t.crit_off(sCR2, 2); t.bulk_off(sB0); t(f's_add_u32 {sPT}, {sB0}, {sPTc}'); mem_offs(t, sM, sCR)
    t(f's_lshl_b32 s40, {sW}, 2\ns_add_u32 s40, s40, {sXQ}\ns_lshl_b32 s40, s40, 8\ns_add_u32 {sFR}, {sCR}, s40\ns_add_u32 {sFR}, {sFR}, {B_FL*BS}\ns_mov_b32 s34, 0\ns_mov_b64 s[66:67], {mTA}')
    t(f's_mov_b64 s[30:31], s[68:69]\ns_lshl_b32 s40, {sXQ}, 10\ns_add_u32 s40, s40, {sCR}\ns_add_u32 s38, s40, {B_FL*BS + 128}\ns_add_u32 s32, s40, {B_FL*BS + 4096}')
    t(f's_mov_b64 s[92:93], s[68:69]')
    cl = salu_groups(t) + [f'v_mov_b32 v{r}, -1' for r in range(36, 40)]
    cl += [f's_mov_b64 exec, s[42:43]\nbuffer_store_dwordx2 v[36:37], v9, {sWS}, {sCR2} offen sc1\ns_mov_b64 exec, -1', '-',
           f'buffer_store_dwordx4 v[36:39], {vL16}, {sWS}, {sPT} offen sc1', '-', f'buffer_store_dword v36, v11, {sWS}, {sPT} offen sc1']
    MF, AD, RS, TQ = 40, 80, 104, 128
    def cv(i, tt):
        mi, t = divmod(i, 3); r = AC+8*i+4*tt; d = (Kt if mi else Q)(tt)+2*t
        return f'v_cvt_pk_bf16_f32 v{d}, v{r}, v{r+1}\nv_cvt_pk_bf16_f32 v{d+1}, v{r+2}, v{r+3}'
    order = [('q', 2, k) for k in range(10)] + [('k', 1, k) for k in K1ORD]
    ring = Ring(e, U, order, RS, 3)
    n0 = len(e.L); ring.prime(); pr = [x.strip() for x in e.L[n0:]]; del e.L[n0:]
    late = {(18, 1): pr[0], (18, 2): pr[1], (19, 1): pr[2], (19, 2): pr[3]}
    for i in range(5):
        for tt in range(2): late[(19, 2*i+3+tt)] = cv(i, tt)
    T1.run({-1: hk0, 5: hk(0, 6), 9: hk9, 11: hk(6, 12)}, ta_pre() + ta_ops() + cl, late)
    e.ts(7)
    e(pr[4]); e(pr[5]); e(cv(5, 0)); e(cv(5, 1))
    e.ts(5)
    e.poll(vZ, sFR, 128)
    e('s_barrier')
    q0, k0, q1, q2, k1, k2 = (AD+4*i for i in range(6))
    p1 = [(q2, lambda k: ('q', 2, k)), (q0, lambda k: ('q', 0, k)), (k0, lambda k: ('k', 0, k)), (q1, lambda k: ('q', 1, k))]
    nanchk, slow = crit_pass1(e, ring, MF, sM, p1, 'v134', range(AD, AD+24))
    e.ts(9)
    def flagQ(cond, after='-1'):
        if cond == 0: return f's_mov_b64 exec, s[30:31]\nbuffer_store_dword {vZ}, {vL16}, {sWS}, s38 offen sc1\ns_mov_b64 exec, {after}'
        return f's_andn2_b64 exec, s[68:69], s[30:31]\nbuffer_store_dword {vZ}, {vL16}, {sWS}, s38 offen sc1\ns_mov_b64 exec, {after}'
    lq = e.o['leadQ']
    cvt = lambda d, r: f'v_cvt_pk_bf16_f32 v{d}, v{r}, v{r+1}'
    main = []
    for (D, m) in ((k1, ('k', 1)), (k2, ('k', 2))):
        for p, k in enumerate(K1ORD):
            def fn(D=D, m=m, k=k, p=p):
                ring.op(D, MF+4*k, m + (k,))
                if m == ('k', 1) and p in (0, 3): e(f's_waitcnt lgkmcnt({4 if p == 0 else 0})')
            main.append((f'{m[0]}{m[1]}_{p}', fn))
    len_main = [0]
    nc = nanchk(q1)
    TK = q1; S0, S1, SM = q0, k0, q2
    Selq, Selk = v(SEL, 2), v(SEL+2, 2)
    T_a, T_b, T_c = 104, 108, 112
    slot = lambda j: RS + 8*((10+j) % 3)
    Ta, Tb, Tc = slot(0), slot(0)+4, slot(1)
    ops = [
        ('zq2a', cvt(q2, q2), 'v', [('q2', 8)]), ('zq2b', cvt(q2+1, q2+2), 'v', [('zq2a', 0)]),
        ('zq0a', cvt(q0, q0), 'v', [('q0', 8)]), ('zq0b', cvt(q0+1, q0+2), 'v', [('zq0a', 0)]),
        ('zk0a', cvt(q0+2, k0), 'v', [('k0', 8), ('zq0b', 0)]), ('zk0b', cvt(q0+3, k0+2), 'v', [('zk0a', 0)]),
        ('c1', nc[0], 'v', [('q1', 8)]), ('c2', nc[1], 'v', [('c1', 0)]), ('c3', nc[2], 's', [('c2', 4)]),
        ('zq1a', cvt(q1, q1), 'v', [('c2', 0)]), ('zq1b', cvt(q1+1, q1+2), 'v', [('zq1a', 0)]),
        ('Tq2', mf16(Ta, v(q2, 2), Selq), 'm', [('zq2b', 2), ('k1_1', 0)]),
        ('T0', mf32(Tb, v(q0, 4), v(SEL, 4)), 'm', [('zk0b', 2), ('k1_1', 0)]),
        ('Tq1', mf16(Tc, v(q1, 2), Selq), 'm', [('zq1b', 2), ('k1_4', 0)]),
        ('p2a', cvt(TQ+4, Ta), 'v', [('Tq2', 8)]), ('p2b', cvt(TQ+5, Ta+2), 'v', [('p2a', 0)]),
        ('p0a', cvt(TQ, Tb), 'v', [('T0', 8)]), ('p0b', cvt(TQ+1, Tb+2), 'v', [('p0a', 0)]),
        ('p1a', cvt(TQ+2, Tc), 'v', [('Tq1', 8)]), ('p1b', cvt(TQ+3, Tc+2), 'v', [('p1a', 0)]),
        ('zk1a', cvt(k1, k1), 'v', [('k1_9', 8)]), ('zk1b', cvt(k1+1, k1+2), 'v', [('zk1a', 0)]),
        ('S0a', mf16(S0, v(Kt(0)+4, 2), v(TQ+4, 2)), 'm', [('p2b', 2), ('T0', 0)]),
        ('S1a', mf16(S1, v(Kt(1)+4, 2), v(TQ+4, 2)), 'm', [('p2b', 2), ('T0', 0)]),
        ('S0b', mf32(S0, v(Kt(0), 4), v(TQ, 4), S0), 'm', [('p0b', 2), ('p1b', 2), ('S0a', 6)]),
        ('S1b', mf32(S1, v(Kt(1), 4), v(TQ, 4), S1), 'm', [('p0b', 2), ('p1b', 2), ('S1a', 6)]),
        ('w0', f'ds_write_b128 v5, {v(S0,4)}', 'v', [('S0b', 8)]),
        ('w1', f'ds_write_b128 v5, {v(S1,4)} offset:64', 'v', [('S1b', 8), ('w0', 2)]),
        ('zk2a', cvt(k2, k2), 'v', [('k2_9', 8)]), ('zk2b', cvt(k2+1, k2+2), 'v', [('zk2a', 0)]),
        ('Tk2', mf16(Tb, v(k2, 2), Selk), 'm', [('zk2b', 2)]),
        ('Tk1', mf16(Ta, v(k1, 2), Selk), 'm', [('zk1b', 2), ('k2_9', 0)]),
        ('SMa', mf16(SM, v(TQ, 2), v(TQ, 2)), 'm', [('p0b', 2), ('k2_9', 0)]),
        ('pk1a', cvt(TK, Ta), 'v', [('Tk1', 8)]), ('pk1b', cvt(TK+1, Ta+2), 'v', [('pk1a', 0)]),
        ('pk2a', cvt(TK+2, Tb), 'v', [('Tk2', 8)]), ('pk2b', cvt(TK+3, Tb+2), 'v', [('pk2a', 0)]),
        ('SMb', mf32(SM, v(TK, 4), v(TQ+2, 4), SM), 'm', [('pk2b', 2), ('pk1b', 2), ('SMa', 6)]),
    ]
    PB = 44
    for i in range(6): ops.append((f'pre{i}', f'v_mov_b32 v{PB-4+i if i < 4 else 60+i-4}, {f2u(-1e30)}', 'v', [('Tk2', 0)]))
    if lq < 20: ops.insert(0, ('fl', flagQ(0), 'v', [(main[lq][0], 0), ('c3', 0)]))
    if lq == 20: ops.append(('fl', flagQ(0), 'v', [('Tk2', 0)]))
    if lq == 21: ops.append(('fl', flagQ(0), 'v', [('SMb', 0)]))
    ops.append(('wm', f's_mov_b64 exec, {mMM}\nds_write_b128 v5, {v(SM,4)} offset:96', 'v', [('SMb', 7)]))
    schedule(e, main, ops, {'q2': -8, 'q0': -6, 'k0': -4, 'q1': -2})
    e.ts(10)
    tt3 = ((0, 0), (0, 1), (1, 1))
    a16 = [mf16(SA[i], v(Kt(tk)+4, 2), v(Q(tq)+4, 2)) for i, (tk, tq) in enumerate(tt3)]
    a32 = [mf32(SA[i], v(Kt(tk), 4), v(Q(tq), 4), SA[i]) for i, (tk, tq) in enumerate(tt3)]
    n1 = e.o.get('nh1', 2)
    h1 = a16 + a32[:n1]
    h2 = a32[n1:] + [mf16(SA[3+tq], v(TQ, 2), v(Q(tq), 2)) for tq in range(2)] + [mf32(SA[3+tq], v(TK, 4), v(Q(tq)+2, 4), SA[3+tq]) for tq in range(2)]
    e('s_mov_b64 exec, -1')
    for i, x in enumerate(h1):
        e(x)
        if lq == 30+i: e(flagQ(0))
    e('s_waitcnt lgkmcnt(0)\ns_barrier')
    e.ts(3)
    Tt, m, t = PB-4, 60, 62
    for w in range(4): e(f'ds_read_b128 {v(PB+4*w,4)}, v0 offset:{L_SM + w*1280}')
    nh = e.o.get('nh2', 3)
    if lq == 22: e(flagQ(0))
    for x in h2[:nh]: e(x)
    e(f's_mov_b64 exec, {mV}\ns_waitcnt lgkmcnt(2)')
    for i in (0, 2): e(f'v_pk_add_f32 {v(PB+i,2)}, {v(PB+i,2)}, {v(PB+4+i,2)}')
    for i in (0, 2): e(f'v_pk_mul_f32 {v(PB+i,2)}, {v(PB+i,2)}, {sC2}')
    e('s_waitcnt lgkmcnt(0)')
    for i in (0, 2): e(f'v_pk_add_f32 {v(PB+8+i,2)}, {v(PB+8+i,2)}, {v(PB+12+i,2)}')
    for i in (0, 2): e(f'v_pk_fma_f32 {v(Tt+i,2)}, {v(PB+8+i,2)}, {sC2}, {v(PB+i,2)}')
    e(f'v_max3_f32 v{m}, v{Tt}, v{Tt+1}, v{Tt+2}\nv_max_f32 v{m}, v{m}, v{Tt+3}\ns_mov_b64 exec, -1')
    for i, x in enumerate(dppred('v_max_f32', m)):
        e(x)
        if lq == 23 and i == 1: e(flagQ(0))
    for i in (0, 2): e(f'v_pk_add_f32 {v(Tt+i,2)}, {v(Tt+i,2)}, {v(m,2)} op_sel_hi:[1,0] neg_lo:[0,1] neg_hi:[0,1]')
    for i in range(4): e(f'v_exp_f32 v{Tt+i}, v{Tt+i}')
    e(f'v_add_f32 v{m}, v{Tt}, v{Tt+1}')
    e(f'v_add_f32 v{t}, v{Tt+2}, v{Tt+3}\nv_add_f32 v{m}, v{m}, v{t}')
    for x in dppred('v_add_f32', m): e(x)
    e(f'v_rcp_f32 v{m}, v{m}\ns_mov_b64 exec, s[42:43]')
    for i in (0, 2): e(f'v_pk_mul_f32 {v(Tt+i,2)}, {v(Tt+i,2)}, {v(m,2)} op_sel_hi:[1,0]')
    e(f'{cvt(PB, Tt)}\n{cvt(PB+1, Tt+2)}')
    if e.o.get('ackts'): e.ts(9)
    e(f'buffer_store_dwordx2 {v(PB,2)}, v9, {sWS}, {sCR} offen sc1\ns_mov_b64 exec, -1')
    if e.o.get('ackts'): e('s_waitcnt vmcnt(0)')
    e.ts(4)
    for x in h2[nh:]: e(x)
    if lq == 24: e(flagQ(0))
    if e.o.get('damp', 0): e(flagQ(1))
    e.ts(6)
    e.tsflush(11, 72)
    e(f's_barrier\ns_add_u32 {sS}, {sS}, 2\ns_cmp_lt_u32 {sS}, {e.o["nseg"]}\ns_cbranch_scc1 L_QK_loop')
    e(f's_mov_b32 {sPTo}, {sPT}')
    for x in ta_pre() + ta_ops(False):
        if x not in '|-': e(x)
    e('s_branch L_end')
    slow()

def role_r(e):
    sCR, sCN, sB0, sTB = 's35', 's36', 's37', 's38'
    sP = ['s46', 's47', 's48', 's49', 's50']; sV = ['s51', 's52']; sFQ, sLead, sTC, sPG, sXO = 's53', 's54', 's55', 's56', 's57'
    sN = ['s58', 's59', 's60', 's61']
    e(f'L_R:\ns_cmp_lg_u32 {sW}, 0\ns_cbranch_scc1 L_PF')
    e.srd(8, 0, 2621440); e.srd(12, 10, 2621440); e.srd(64, 1, 10240)
    e(f's_mul_i32 {sU}, {sXQ}, 10\ns_add_u32 {sU}, {sU}, {sJ}\ns_sub_u32 {sU}, {sU}, 16\ns_cmp_eq_u32 {sJ}, 16\ns_cselect_b32 {sLead}, 0x10001, 0\ns_lshl_b32 s32, {sXQ}, 10\ns_add_u32 s32, s32, {B_FL*BS}')
    e(f's_cmp_ge_u32 {sU}, 20\ns_cselect_b32 {sPG}, 1, 0\ns_mul_i32 s40, {sPG}, 20\ns_sub_u32 s40, {sU}, s40\ns_mul_i32 {sTC}, s40, {5*BS}\ns_lshl_b32 s40, {sPG}, 21\ns_add_u32 {sTC}, {sTC}, s40\ns_lshl_b32 {sPG}, {sPG}, 13')
    e(f'''v_lshlrev_b32 {vL16}, 4, v1
    v_and_b32 v20, 15, v1
    v_lshrrev_b32 v21, 4, v1
    v_and_b32 v4, 1, v1
    v_mul_u32_u24 v4, 0xaaaa, v4
    v_add_u32 v4, 0x4444, v4
    v_and_b32 v10, 7, v1
    v_lshlrev_b32 v10, 4, v10
    v_lshl_add_u32 v10, v21, 7, v10
    v_bfe_u32 v11, v1, 3, 1
    v_lshl_add_u32 v5, v11, 3, v10
    v_and_b32 v11, 1, v20
    v_lshl_add_u32 v10, v21, 1, v11
    v_mov_b32 v7, 0x05040100
    v_mov_b32 v22, 0x03020706
    v_cmp_eq_u32 vcc, 1, v11
    v_cndmask_b32 v7, v7, v22, vcc
    v_mul_u32_u24 v23, 1280, v10
    v_and_b32 v11, 14, v20
    v_lshl_add_u32 v23, v11, 1, v23
    s_lshl_b32 s40, {sU}, 5
    v_add_u32 v23, s40, v23
    v_bfe_u32 v11, v20, 1, 1
    v_lshl_add_u32 v10, v10, 1, v11
    v_lshlrev_b32 v10, 4, v10
    v_lshrrev_b32 v11, 2, v20
    v_lshl_add_u32 v10, v11, 2, v10
    s_lshr_b32 s42, {sU}, 3
    s_lshl_b32 s42, s42, 14
    s_and_b32 s41, {sU}, 7
    s_lshl_b32 s41, s41, 8
    s_add_u32 s41, s41, s42
    v_add_u32 v6, s41, v10
    v_mul_u32_u24 v8, 1280, v20
    v_lshl_add_u32 v8, v21, 3, v8
    v_add_u32 v8, s40, v8
    v_and_b32 v9, 31, v1
    v_lshlrev_b32 v9, 7, v9
    v_and_b32 v0, 7, v1
    v_lshlrev_b32 v0, 7, v0
    v_lshlrev_b32 v3, 8, v1
    v_mov_b32 v12, 0
    v_mov_b32 v14, -1
    v_lshlrev_b32 v13, 2, v21
    v_sub_u32 v13, v20, v13
    v_mov_b32 v24, 0x3f80
    v_mov_b32 v25, 0x3f800000
    s_waitcnt lgkmcnt(0)
    buffer_load_dword v15, v23, s[64:67], 0 offen
    v_cmp_eq_u32 vcc, 0, v13
    v_cndmask_b32 v16, 0, v24, vcc
    v_cmp_eq_u32 vcc, 1, v13
    v_cndmask_b32 v16, v16, v25, vcc
    v_cmp_eq_u32 vcc, 2, v13
    v_cndmask_b32 v18, 0, v24, vcc
    v_cmp_eq_u32 vcc, 3, v13
    v_cndmask_b32 v18, v18, v25, vcc
    v_mov_b32 v17, 0
    v_mov_b32 v19, 0
    v_mov_b32 v20, 0
    v_mov_b32 v21, v16
    v_mov_b32 v22, 0
    v_mov_b32 v23, v18''')
    def reps(base): pass
    def pub(reg): e(f'buffer_store_dword {reg}, v6, {sWS}, {sCN} offen sc1')
    for g in range(4): e(f's_add_u32 {sN[g]}, {sXQ}, {g}\ns_and_b32 {sN[g]}, {sN[g]}, 3')
    l = e.lab('nl'); l2 = e.lab('nc'); l3 = e.lab('ncl')
    for r in range(24, 28): e(f'v_mov_b32 v{r}, -1')
    e(f's_mul_i32 s42, {sSIDE}, 40\ns_add_u32 s42, s42, {sU}\ns_cmp_ge_u32 s42, 64\ns_cbranch_scc1 {l3}')
    e(f's_lshr_b32 s40, s42, 1\ns_and_b32 s41, s42, 1\ns_lshl_b32 s41, s41, 13\ns_lshl_b32 s43, s40, 20\ns_add_u32 s43, s43, s41\ns_add_u32 s43, s43, {B_FL*BS}')
    for o in range(8):
        if o == 4: e('s_add_u32 s43, s43, 4096')
        e(f'buffer_store_dwordx4 v[24:27], {vL16}, {sWS}, s43 offen offset:{(o%4)*1024} sc1')
    e(f's_lshl_b32 s43, s40, 22\ns_add_u32 s43, s43, s41\ns_add_u32 s43, s43, {BULK + B_VF*BS}')
    for o in range(4): e(f'buffer_store_dwordx4 v[24:27], {vL16}, {sWS}, s43 offen offset:{o*1024} sc1')
    e(f's_add_u32 s43, s43, 4096\nbuffer_store_dwordx4 v[24:27], {vL16}, {sWS}, s43 offen sc1')
    e(f's_cmp_ge_u32 s42, 61\ns_cbranch_scc1 {l3}\ns_lshl_b32 s43, s42, 14')
    for o in range(16):
        e(f'buffer_store_dwordx4 v[24:27], {vL16}, {sWS}, s43 offen offset:{(o % 4)*1024} sc1')
        if o % 4 == 3: e('s_add_u32 s43, s43, 4096')
    e(f'{l3}:\ns_mov_b32 s45, 1\ns_cmp_lg_u32 {sJ}, 25\ns_cbranch_scc1 {l}')
    e(f's_and_b32 s40, s2, 7\ns_lshl_b32 s40, s40, 10\ns_add_u32 s40, s40, {B_CAL*BS}\ns_add_u32 s41, s40, 8192')
    e(f'buffer_store_dwordx4 v[24:27], {vL16}, {sWS}, s40 offen sc1\nbuffer_store_dwordx4 v[24:27], {vL16}, {sWS}, s41 offen sc1')
    e('s_waitcnt vmcnt(0)\ns_mov_b32 s46, -1\ns_mov_b32 s47, -1')
    for k in range(e.o.get('ncal', 6)):
        for b in range(2):
            e(f's_memtime s[48:49]\ns_waitcnt lgkmcnt(0)\nbuffer_load_dword v31, v12, {sWS}, s{40+b} offen offset:{k*128} sc1\ns_waitcnt vmcnt(0)\ns_memtime s[50:51]\ns_waitcnt lgkmcnt(0)')
            e(f's_sub_u32 s50, s50, s48\ns_min_u32 s{46+b}, s{46+b}, s50')
    e(f's_cmp_lt_u32 s47, s46\ns_cselect_b32 s45, 1, 0\ns_xor_b32 s45, s45, {sSIDE}\ns_lshl_b32 s45, s45, 16\ns_or_b32 s45, s45, 1')
    e(f'{l}:\ns_waitcnt vmcnt(0)')
    e.ts(2)
    e.arrive(extra='s45', vt=30)
    e.wait_start(vt=30)
    def flagR(msk):
        e(f's_add_u32 s40, {sCN}, s32\ns_mov_b32 exec_lo, {msk}\ns_mov_b32 exec_hi, {msk}\nbuffer_store_dword v12, {vL16}, {sWS}, s40 offen sc1\ns_mov_b64 exec, -1')
    e(f's_cmp_eq_u32 {sSIDE}, 0\ns_cbranch_scc1 {l2}\ns_mov_b32 {sS}, 0')
    e.crit_off(sCN, 2); reps(sCN); pub('v14')
    e('s_waitcnt vmcnt(0)\nv_min_u32 v15, -2, v15')
    e.crit_off(sCN, 0); reps(sCN); pub('v15')
    e('s_waitcnt vmcnt(0)'); flagR(sLead)
    e(f'{l2}:\ns_mov_b32 {sS}, {sSIDE}')
    e('L_R_loop:')
    e.ts(0)
    e.bulk_off(sB0)
    e(f's_xor_b32 {sTB}, {sB0}, {sPG}\ns_add_u32 {sTB}, {sTB}, {sTC}\ns_barrier')
    e.ts(7)
    def ldvot(k0, k1):
        for k in range(k0, k1):
            if k % 8 == 0 and k < 32: e(f's_lshl_b32 s40, {sN[k//8]}, 14\ns_add_u32 s40, s40, {sTB}')
            elif k == 32: e(f's_add_u32 s40, {sTB}, {4*BS}')
            elif k % 4 == 0: e('s_add_u32 s40, s40, 4096')
            e(f'buffer_load_dwordx4 {a(4*k,4)}, {vL16}, {sWS}, s40 offen offset:{(k%4)*1024} sc1')
    ldvot(0, 32)
    e.crit_off(sCN, 3); pub('v14')
    e.crit_off(sCR); e.crit_off(sCN, 1)
    sPm = ['s94', 's95', 's96', 's97']; sVm = ['s98', 's99', 's100', 's101']
    e(f's_lshl_b32 s41, {sU}, 14\ns_add_u32 s41, s41, {sCR}\ns_add_u32 s41, s41, {B_VOM*BS}')
    for g in range(4):
        e(f's_lshl_b32 s40, {sN[g]}, 14\ns_add_u32 s40, s40, {sCR}\ns_add_u32 {sP[g]}, s40, {(B_P+1)*BS}')
        e(f's_lshl_b32 s40, {sN[g]}, 10\ns_add_u32 s40, s40, {sCR}\ns_add_u32 {sPm[g]}, s40, {B_P*BS}')
        e(f's_lshl_b32 s40, {sN[g]}, 11\ns_add_u32 {sVm[g]}, s40, s41')
    e(f's_lshl_b32 s40, {sXQ}, 8\ns_add_u32 {sFQ}, {sCR}, s40\ns_add_u32 {sFQ}, {sFQ}, {B_FL*BS + 128}\ns_mul_i32 {sXO}, {sS}, 40960')
    AC, AM, AT, BM = 24, 40, 56, 120
    e('s_mov_b32 s34, 0\ns_mov_b32 s29, 0')
    e.ts(5)
    e('s_barrier')
    e.poll('v12', sFQ, 252)
    e('s_barrier')
    e.ts(1)
    rt = e.lab('rt'); bad = e.lab('bad')
    e(f'{rt}:')
    nv = e.o.get('vfirst', 0)
    seq = [('v', k) for k in range(nv)] + [('t', k) for k in range(16)]
    for g in range(4): seq += [('m', g)] + [('v', k) for k in (2*g, 2*g+1) if k >= nv]
    for kind, k in seq:
        if kind == 't': e(f'buffer_load_dwordx4 {v(AT+4*k,4)}, {vL16}, {sWS}, {sP[k//4]} offen offset:{(k%4)*1024} sc1')
        elif kind == 'm': e(f'buffer_load_dwordx4 {v(AM+4*k,4)}, {vL16}, {sWS}, {sPm[k]} offen sc1')
        else: e(f'buffer_load_dwordx4 {v(BM+4*k,4)}, {vL16}, {sWS}, {sVm[k//2]} offen offset:{(k%2)*1024} sc1')
    for r in range(AC, AC+4): e(f'v_mov_b32 v{r}, 0')
    e('v_mov_b32 v13, 0')
    extra = 0; rf = e.o['rflag']
    chk = e.lab('chk'); bk = e.lab('bk')
    if e.o.get('damp', 0): e(f's_cmp_eq_u32 s34, 0\ns_cselect_b32 s30, {sLead}, 0\ns_mov_b32 s31, s30')
    else: e(f's_mov_b32 s30, {sLead}\ns_mov_b32 s31, s30')
    e(f's_add_u32 s33, {sCN}, s32')
    lastm = {g: max(seq.index(x) for x in (('m', g), ('v', 2*g), ('v', 2*g+1))) for g in range(4)}
    for i, (kind, k) in enumerate(seq):
        early = i < nv+16
        if not early and i not in lastm.values() and not rf-1 <= i <= rf: continue
        if i == 0 or kind != 't' or seq[i-1][0] != 't': e(f's_waitcnt vmcnt({27-i+extra})')
        if i == 0: e.ts(2)
        if kind == 't': e(smf(AC, AT+4*k, a(8*k, 8)))
        for g in range(4):
            if lastm[g] == i: e(smf(AC, AM+4*g, v(BM+8*g, 8)))
        if i == rf:
            e(f's_cmp_eq_u64 vcc, 0\ns_cselect_b64 exec, s[30:31], 0\nbuffer_store_dword v12, {vL16}, {sWS}, s33 offen sc1\ns_mov_b64 exec, -1'); extra = 1
        if kind == 't' and k < 15: e(f's_waitcnt vmcnt({26-i+extra})')
        if early and i <= rf-2: r = (AT if kind == 't' else BM)+4*k; e(f'v_max3_u32 v13, v13, v{r}, v{r+3}')
        if i == rf-1: e('v_cmp_eq_u32 vcc, -1, v13')
    e.ts(3)
    e(f'v_add_f32 v{AC}, v{AC}, v{AC+1}\nv_add_f32 v{AC+1}, v{AC+2}, v{AC+3}')
    e(f'v_cvt_pk_bf16_f32 v{AC+2}, v{AC}, v{AC+1}\nv_cmp_u_f32 vcc, v{AC}, v{AC+1}')
    e(f'v_mov_b32_dpp v{AC+1}, v{AC+2} quad_perm:[1,0,3,2] row_mask:0xf bank_mask:0xf\nv_perm_b32 v{AC}, v{AC+1}, v{AC+2}, v7\ns_cbranch_vccnz {chk}\n{bk}:')
    if e.o.get('ackts'): e.ts(2)
    pub(f'v{AC}')
    if e.o.get('ackts'): e('s_waitcnt vmcnt(0)')
    if rf < 28:
        if e.o.get('damp', 0): e(f's_cmp_lg_u32 s34, 0\ns_cselect_b32 s41, {sLead}, 0'); flagR('s41')
    else: flagR(sLead)
    e.ts(4)
    okO = e.lab('okO'); slowO = e.lab('slowO')
    AO = 28
    ringr = list(range(152, 252, 4)) + list(range(40, 120, 4)); NR = e.o.get('nr', 32); ringr = ringr[:NR]
    def ffn():
        for k in range(8):
            for tt in range(2): e(mf32(AO+4*tt, a(128+4*k, 4), 'v[20:23]' if tt else 'v[16:19]', None if k == 0 else AO+4*tt))
    def opass(explicit):
        e(f's_add_u32 s42, {sB0}, {B_PT*BS}')
        def ldp(n):
            j, tt = n//2, n % 2
            if tt == 0 and j < 32 and j % 8 == 0: e(f's_lshl_b32 s40, {sN[j//8]}, 14\ns_add_u32 s40, s40, s42\ns_add_u32 s41, s40, {5*BS}')
            elif tt == 0 and j < 32 and j % 4 == 0: e('s_add_u32 s40, s40, 4096\ns_add_u32 s41, s41, 4096')
            elif tt == 0 and j >= 32 and j % 2 == 0: e(f's_lshl_b32 s40, {sN[(j-32)//2]}, 11\ns_add_u32 s40, s40, s42\ns_add_u32 s40, s40, {4*BS}\ns_add_u32 s41, s40, {5*BS}')
            e(f'buffer_load_dwordx4 {v(ringr[n % NR],4)}, {vL16}, {sWS}, {"s41" if tt else "s40"} offen offset:{(j % (4 if j < 32 else 2))*1024} sc1')
        if not explicit:
            e(f's_add_u32 s43, {sB0}, {B_VF*BS + 4096}'); e.poll('v0', 's43', 252, D=1)
            ldvot(32, 40)
            e(f's_add_u32 s43, {sXO}, 20480\nbuffer_load_dwordx2 v[36:37], v8, {sA}, {sXO} offen\nbuffer_load_dwordx2 v[38:39], v8, {sA}, s43 offen')
            e('s_barrier\ns_waitcnt vmcnt(0)'); ffn()
            e(f's_add_u32 s43, {sFQ}, {4096-128}'); e.poll('v12', 's43', 252)
            e('s_barrier')
            e.ts(8)
            e(f's_sub_u32 s40, {sJ}, 16\ns_lshl_b32 s40, s40, 14\ns_add_u32 s40, s40, s42\nv_lshlrev_b32 v10, 7, v1')
            tch = e.o.get('touch', 0)
            if tch in (1, 2): e(f'buffer_load_dword v11, v10, {sWS}, s40 offen sc1')
            if tch == 2: e(f'buffer_load_dword v15, v10, {sWS}, s40 offen offset:64 sc1')
            if tch == 3:
                for q in range(8):
                    if q == 4: e('s_add_u32 s40, s40, 4096')
                    e(f'buffer_load_dwordx4 v[24:27], {vL16}, {sWS}, s40 offen offset:{(q%4)*1024} sc1')
        if explicit: ffn()
        for n in range(NR): ldp(n)
        if explicit: e('v_mov_b32 v13, 0')
        iss = NR
        for n in range(80):
            j, tt = n//2, n % 2; r = ringr[n % NR]
            e(f's_waitcnt vmcnt({iss-1-n})')
            e(mf32(AO+4*tt, a(4*j, 4) if j < 32 else v(BM+4*(j-32), 4), v(r, 4), AO+4*tt))
            if explicit: e(f'v_max3_u32 v13, v13, v{r}, v{r+1}\nv_max3_u32 v13, v13, v{r+2}, v{r+3}')
            if iss < 80: ldp(iss); iss += 1
    opass(False)
    e(f'v_cmp_u_f32 vcc, v{AO}, v{AO+4}\ns_cbranch_vccnz {slowO}\n{okO}:')
    for tt in range(2):
        for i in range(2):
            x = 36+2*tt+i; d = AO+4*tt+2*i
            e(f'v_lshlrev_b32 v40, 16, v{x}\nv_and_b32 v41, 0xffff0000, v{x}\nv_add_f32 v40, v40, v{d}\nv_add_f32 v41, v41, v{d+1}\nv_cvt_pk_bf16_f32 v{42+2*tt+i}, v40, v41')
    e(f's_add_u32 s43, {sXO}, 20480\nbuffer_store_dwordx2 v[42:43], v8, {sB}, {sXO} offen {e.o.get("outfl", "")}\nbuffer_store_dwordx2 v[44:45], v8, {sB}, s43 offen {e.o.get("outfl", "")}')
    e.ts(6)
    e.tsflush(9, 48)
    e(f's_add_u32 {sS}, {sS}, 2\ns_cmp_lt_u32 {sS}, {e.o["nseg"]}\ns_cbranch_scc1 L_R_loop\ns_branch L_end')
    e(f'{chk}:')
    if e.o['stamps']:
        e('v_mov_b32 v13, 0')
        for r in range(BM, BM+32, 2): e(f'v_max3_u32 v13, v13, v{r}, v{r+1}')
        e('v_cmp_eq_u32 vcc, -1, v13\ns_cmp_lg_u64 vcc, 0\ns_cselect_b32 s40, 0x1000000, 0x10000\ns_add_u32 s29, s29, s40') if False else e('v_cmp_eq_u32 vcc, -1, v13\ns_mov_b32 s41, 0x10000\ns_cmp_lg_u64 vcc, 0\ns_cselect_b32 s40, 0x1000000, s41\ns_add_u32 s29, s29, s40')
    e(f's_cmp_lt_u32 s34, 2\ns_cbranch_scc1 {bad}')
    for r in range(AM, BM+32, 2): e(f'v_max3_u32 v13, v13, v{r}, v{r+1}')
    e(f'v_cmp_eq_u32 vcc, -1, v13\ns_cbranch_vccz {bk}')
    e(f'{bad}:\ns_add_u32 s34, s34, 1\ns_nop 7'); e.tmo(rt)
    e(f'{slowO}:\ns_nop 7')
    if e.o['stamps']: e('s_add_u32 s34, s34, 0x10000')
    opass(True)
    e(f's_nop 7\nv_cmp_eq_u32 vcc, -1, v13\ns_cbranch_vccz {okO}'); e.tmo(slowO)

def role_pf(e):
    e('L_PF:')
    if e.o.get('cpf', 0):
        e(f's_getpc_b64 s[8:9]\nL_pc:\ns_sub_u32 s8, s8, L_pc-{NAME}\ns_subb_u32 s9, s9, 0\ns_mov_b32 s10, L_end-{NAME}\ns_mov_b32 s11, 0x20000')
        e(f's_sub_u32 s40, {sJ}, 16\ns_mul_i32 s40, s40, 3\ns_add_u32 s40, s40, {sW}\ns_sub_u32 s40, s40, 1\ns_lshl_b32 s40, s40, 12\nv_lshlrev_b32 v2, 6, v1')
        e(f'buffer_load_dword v3, v2, s[8:11], s40 offen')
    e.wait_start(vt=30)
    e(f'v_and_b32 v9, 31, v1\nv_lshlrev_b32 v9, 7, v9\nv_mov_b32 v12, 0\ns_mov_b32 {sS}, {sSIDE}\ns_lshl_b32 s32, {sW}, 2\ns_add_u32 s32, s32, {sXQ}\ns_lshl_b32 s32, s32, 8\ns_add_u32 s32, s32, {B_FL*BS + 128}')
    e('L_PF_loop:')
    l = e.lab('nv')
    e(f's_cmp_lg_u32 {sW}, 1\ns_cbranch_scc1 {l}')
    e.bulk_off('s36'); e(f's_add_u32 s36, s36, {B_VF*BS}')
    e.poll('v9', 's36', 24, D=1, sleep=e.o.get('vsleep', 4))
    e(f'{l}:')
    e.crit_off('s35')
    e('s_add_u32 s35, s35, s32\ns_barrier\ns_barrier')
    e.poll('v12', 's35', 20)
    e(f's_barrier\ns_add_u32 s35, s35, {4096-128}\ns_barrier')
    e.poll('v12', 's35', 20)
    e(f's_barrier\ns_add_u32 {sS}, {sS}, 2\ns_cmp_lt_u32 {sS}, {e.o["nseg"]}\ns_cbranch_scc1 L_PF_loop\ns_branch L_end')

HEAD = open('cdna_kernels/' + NAME[:-7] + '.s.ref').read().split('; Override launch')[0]
def gen(aslist=False, **o):
    e = G(**o)
    e.ts(0)
    if e.o.get('empty'): e('s_branch L_end')
    e(f'''s_cmp_ge_u32 s2, 256
    s_cbranch_scc1 L_end
    s_add_u32 s3, s2, {e.o.get('rot', 0)}
    s_and_b32 s3, s3, 7
    s_and_b32 s2, s2, 0xf8
    s_or_b32 s2, s2, s3
    s_load_dwordx2 s[4:5], s[0:1], 96
    s_load_dwordx2 s[16:17], s[0:1], 88
    v_and_b32 v1, 63, v0
    v_lshrrev_b32 v2, 6, v0
    s_and_b32 {sXQ}, s2, 3
    v_readfirstlane_b32 {sW}, v2
    s_bfe_u32 {sSIDE}, s2, 0x10002
    s_lshr_b32 {sJ}, s2, 3
    s_mov_b32 {sTO}, 0
    s_mov_b32 s18, 256
    s_mov_b32 s19, 0x20000
    s_mov_b32 s6, {252<<20}
    s_mov_b32 s7, 0x20000
    s_waitcnt lgkmcnt(0)
    s_add_u32 s4, s4, 0x3fffff
    s_addc_u32 s5, s5, 0
    s_and_b32 s4, s4, 0xffc00000
    s_cmp_lt_u32 {sJ}, 8
    s_cbranch_scc1 L_QK
    s_cmp_lt_u32 {sJ}, 16
    s_cbranch_scc1 L_VO
    s_cmp_lt_u32 {sJ}, 26
    s_cbranch_scc1 L_R
    s_cmp_lt_u32 {sJ}, 28
    s_cbranch_scc1 L_FFN''')
    role_ln(e); role_qk(e); role_vo(e); role_r(e); role_pf(e)
    e(f'L_abort:\nv_mov_b32 v30, 4\nv_mov_b32 v31, 1\ns_mov_b64 exec, 1\nbuffer_atomic_add v31, v30, {sDBG}, 0 offen sc1\nL_end:\ns_endpgm')
    body, nn = hazard.run(resolve(e.L))
    launch = f'; @launch kernel={NAME} grid=(256,1,1) block=(256,1,1) lds=163840' if aslist else '; @launch grid=(256,1,1) block=(256,1,1) lds=163840'
    return HEAD + launch + '\n.amdgcn_target "amdgcn-amd-amdhsa--gfx950"\n.text\n' + kernel_head(NAME) + '\n'.join(body) + '\n' + kernel_desc(NAME, 512, 102, 256)

if __name__ == '__main__':
    o = dict(kv.split('=') for kv in sys.argv[2:]); o = {k: int(x) for k, x in o.items()}
    open(sys.argv[1], 'w').write(gen(**o))
```

```python
import sys
from asmlib import *
import hazard

NAME = 'parallel_sum__memory_aug_recurrent_mem_tr__dense_activation_silu__prompt_kernel'
BS = 16384
BULK = 36 << 20
XN = 172 << 20
DBGW = 180 << 20
B_MEM, B_P, B_FL, B_VOM, B_CAL = 0, 8, 18, 21, 16
F_R, F_Q, F_P = 0, 1024, 2048
B_PT, B_VF = 100, 110
L_X, L_MISC, L_W = 0, 40960, 57344
WPW = 26624
TMO = 1 << 17
NARR = 112
LOG2E = 1.4426950408889634
import struct
def f2u(x): return struct.unpack('<I', struct.pack('<f', x))[0]
CSC = f2u(LOG2E / 192 ** 0.5)

sWS, sA, sB, sDBG = 's[4:7]', 's[8:11]', 's[12:15]', 's[16:19]'
sXQ, sJ, sSIDE, sW, sU, sS, sTO, sC0 = 's20', 's21', 's22', 's23', 's25', 's26', 's27', 's28'

class G(A):
    def __init__(self, **o):
        super().__init__(); self.o = dict(leadQ=15, rflag=7, rseq='vvvvtttttttmvvtttmvvtttmtttm', fplead=34, stamps=0, nseg=64); self.o.update(o)
    def crit_off(self, dst, add=0, t0='s40', t1='s41'):
        e = self
        e(f's_add_u32 {t0}, {sS}, {add}\ns_lshr_b32 {t1}, {t0}, 2\ns_xor_b32 {t1}, {t1}, {t0}\ns_xor_b32 {t1}, {t1}, {sC0}\ns_and_b32 {t1}, {t1}, 1\ns_lshl_b32 {t1}, {t1}, 13')
        e(f's_lshr_b32 {t0}, {t0}, 1\ns_lshl_b32 {t0}, {t0}, 20\ns_or_b32 {dst}, {t0}, {t1}')
    def bulk_off(self, dst, add=0, t0='s40', t1='s41'):
        e = self
        e(f's_add_u32 {t0}, {sS}, {add}\ns_xor_b32 {t1}, {t0}, {sC0}\ns_and_b32 {t1}, {t1}, 1\ns_lshl_b32 {t1}, {t1}, 13')
        e(f's_lshr_b32 {t0}, {t0}, 1\ns_lshl_b32 {t0}, {t0}, 22\ns_add_u32 {t0}, {t0}, {BULK}\ns_or_b32 {dst}, {t0}, {t1}')
    def tmo(self, again):
        self(f's_add_u32 {sTO}, {sTO}, 1\ns_cmp_lt_u32 {sTO}, {TMO}\ns_cbranch_scc1 {again}\ns_branch L_abort')
    def srd(self, dst, slot, nbytes):
        self(f's_load_dwordx2 s[{dst}:{dst+1}], s[0:1], {slot*8}\ns_mov_b32 s{dst+2}, {nbytes}\ns_mov_b32 s{dst+3}, 0x20000')
    def rotword(self, dst):
        e = self
        e(f's_sub_u32 s40, s2, {sS}\ns_and_b32 {dst}, s40, 1\ns_bfe_u32 s41, s40, 0x10001\ns_lshl_b32 s41, s41, 9\ns_or_b32 {dst}, {dst}, s41')
        e(f's_bfe_u32 s41, s40, 0x10002\ns_lshl_b32 s41, s41, 18\ns_or_b32 {dst}, {dst}, s41')
    def arrive(self, extra=None, vt=2):
        e = self; l = e.lab('nla'); lp = e.lab('all'); dn = e.lab('alld')
        e.rotword('s42')
        e(f's_add_u32 s43, {"1" if extra is None else extra}, 128\nv_mov_b32 v{vt+2}, 0\nv_mov_b32 v{vt}, s43\nv_mov_b32 v{vt+1}, s42')
        e(f's_mov_b64 exec, 1\nbuffer_atomic_add_x2 {v(vt,2)}, v{vt+2}, {sDBG}, {sC0} offen sc0 sc1\ns_waitcnt vmcnt(0)')
        e(f'v_readfirstlane_b32 s40, v{vt}\ns_and_b32 s40, s40, 127\ns_cmp_lg_u32 s40, {NARR-1}\ns_cbranch_scc1 {l}')
        e(f'{lp}:\nbuffer_load_dwordx2 {v(vt,2)}, v{vt+2}, {sDBG}, {sC0} offen sc1\ns_waitcnt vmcnt(0)\nv_readfirstlane_b32 s40, v{vt}\nv_readfirstlane_b32 s41, v{vt+1}')
        e(f's_bfe_u32 s42, s40, 0x90007\ns_cmp_eq_u32 s42, 256\ns_cbranch_scc1 {dn}\ns_sleep 8'); e.tmo(lp)
        e(f'{dn}:\ns_and_b32 s41, s41, {255 | 255 << 9 | 255 << 18}\ns_cselect_b32 s41, 0x80000000, 0\ns_or_b32 s40, s40, s41\nv_mov_b32 v{vt}, s40')
        e(f'buffer_store_dword v{vt}, v{vt+2}, {sDBG}, {sC0} offen offset:128 sc1\n{l}:\ns_mov_b64 exec, -1')
    def start_prime(self, vt): self(f'v_mov_b32 v{vt}, 0\nbuffer_load_dword v{vt+1}, v{vt}, {sDBG}, {sC0} offen offset:128 sc1')
    def wait_start(self, vt=2, vF=None, primed=False):
        e = self; lp = e.lab('ws'); dn = e.lab('wsd'); ck = e.lab('wsc')
        if primed: e(f's_branch {ck}')
        e(f'{lp}:'); e.start_prime(vt); e.L[-1] += ' ;!'; e(f's_waitcnt vmcnt(0)\n{ck}:')
        e(f'v_readfirstlane_b32 s40, v{vt+1}\ns_cmp_lt_i32 s40, 0\ns_cbranch_scc1 L_restart\ns_cmp_lg_u32 s40, 0\ns_cbranch_scc1 {dn}\ns_sleep 4')
        e.tmo(lp)
        e(f'{dn}:\ns_bfe_u32 s41, s40, 0x40010\ns_cmp_ge_u32 s41, 5\ns_cselect_b32 {sC0}, 1, 0')
        c1x = e.o.get('c1x', 0)
        e(f's_bfe_u32 s41, s40, 0x40018\ns_cmp_ge_u32 s41, 5\ns_cselect_b32 s41, {1 ^ c1x}, {c1x}')
        e(f's_xor_b32 s3, {sXQ}, s41\ns_and_b32 s3, s3, {0 if e.o.get("nofine") else 1}\ns_lshl_b32 s3, s3, 14\ns_lshl_b32 s40, {sW}, 8\ns_add_u32 s3, s3, s40')
        if e.o.get('nofine'): e(f's_and_b32 s40, {sXQ}, 1\ns_lshl_b32 s40, s40, 12\ns_add_u32 s3, s3, s40')
        e(f's_lshr_b32 s40, {sXQ}, 1\ns_lshl_b32 s40, s40, 7\ns_add_u32 s3, s3, s40\ns_add_u32 s3, s3, {B_FL*BS}')
        if vF:
            if e.o.get('nofine'): e(f'v_bfe_u32 {vF}, v1, 4, 1\nv_lshlrev_b32 {vF}, 12, {vF}')
            else: e(f'v_bfe_u32 {vF}, v1, 4, 1\nv_xor_b32 {vF}, s41, {vF}\nv_lshlrev_b32 {vF}, 14, {vF}')
            e(f'v_lshrrev_b32 v{vt}, 5, v1\nv_lshl_add_u32 {vF}, v{vt}, 7, {vF}')
        e.ts(3)
    def startflush(self, vt):
        if self.o['stamps']:
            self(f's_xor_b32 {sS}, {sSIDE}, 1'); self.tsflush(8, vt)
    def poll_prime(self, vaddr, soff, r0):
        return [f'buffer_load_dword v{r0+i}, {vaddr}, {sWS}, {soff} offen sc1' for i in range(self.o.get('pd', 3))]
    def poll(self, vaddr, soff, r0, D=None, sleep=0, primed=False):
        e = self; lp = e.lab('poll'); dn = e.lab('pd')
        one = D is None and e.o.get('poll1', 0)
        if D is None: D = e.o.get('pd', 3)
        if one: e('s_mov_b64 exec, 1')
        iss = lambda i: e(f'buffer_load_dword v{r0+i}, {vaddr}, {sWS}, {soff} offen sc1')
        for i in range(0 if primed else D):
            iss(i)
            if i < D-1: e('s_nop 15')
        e(f'{lp}:')
        for i in range(D):
            e(f's_waitcnt vmcnt({D-1})\nv_cmp_eq_u32 vcc, -1, v{r0+i}\ns_cbranch_vccz {dn}')
            if sleep: e(f's_sleep {sleep}')
            iss(i)
        e.tmo(lp)
        e(f'{dn}:')
        if one: e('s_mov_b64 exec, -1')
    def ts(self, i):
        if self.o['stamps'] and (self.o.get('tsmask', -1) >> i) & 1: self(f'{"s_memrealtime" if self.o["stamps"] == 1 else "s_memtime"} s[{70+2*i}:{71+2*i}]')
    def tsflush(self, n, vbase):
        if not self.o['stamps']: return
        e = self
        e(f's_waitcnt lgkmcnt(0)\ns_lshl_b32 s40, s2, 2\ns_add_u32 s40, s40, {sW}\ns_lshl_b32 s40, s40, 6\ns_add_u32 s40, s40, {sS}\ns_lshl_b32 s40, s40, 6\ns_add_u32 s40, s40, {DBGW}')
        e(f'v_mov_b32 v{vbase}, 0')
        for i in range(n): e(f'v_writelane_b32 v{vbase}, s{70+2*i}, {i}')
        e(f'v_writelane_b32 v{vbase}, s34, 15\nv_writelane_b32 v{vbase}, s29, 14')
        e(f'v_lshlrev_b32 v{vbase+1}, 2, v1\ns_mov_b64 exec, 0xffff\nbuffer_store_dword v{vbase}, v{vbase+1}, {sWS}, s40 offen\ns_mov_b64 exec, -1')

def resolve(lines):
    out = []; nl = nv = 0; tag = {}; masked = False
    for ln in lines:
        t = ln.strip()
        w = t.replace(',', ' ').split()
        if len(w) > 2 and w[0].startswith('s_') and w[1] == 'exec': masked = w[2:] != ['-1']
        if t.startswith('@wl '): out.append(f'    s_waitcnt lgkmcnt({min(15, nl - tag[t[4:]])})'); continue
        if t.startswith('@wv '): out.append(f'    s_waitcnt vmcnt({min(63, nv - tag[t[4:]])})'); continue
        if t.startswith('ds_') and not masked: nl += 1
        if t.startswith('buffer_') and not masked and ';!' not in t: nv += 1
        ln = ln.split(';!')[0].rstrip()
        assert not (masked and ';@' in t)
        if ';@' in t:
            tag[t.split(';@')[1].strip()] = nl if t.startswith('ds_') else nv
            ln = ln.split(';@')[0].rstrip()
        out.append(ln)
    return out

def xsum(e, r, t, op='v_add_f32', steps=(16, 32)):
    for st in steps:
        e(f'v_mov_b32 v{t}, v{r}\nv_permlane{st}_swap_b32 v{r}, v{t}\n{op} v{r}, v{r}, v{t}')

def role_ln(e):
    e('L_LN:')
    e.srd(8, 0, 2621440)
    e(f's_and_b32 s40, s2, 7\ns_lshl_b32 s40, s40, 2\ns_add_u32 s40, s40, {sJ}\ns_sub_u32 s40, s40, 28\ns_lshl_b32 s40, s40, 2\ns_add_u32 s42, s40, {sW}')
    e(f'v_and_b32 v2, 15, v1\nv_lshrrev_b32 v3, 4, v1\nv_mul_u32_u24 v2, 1280, v2\nv_lshl_add_u32 v2, v3, 4, v2\ns_mul_i32 s43, s42, {16*1280}\ns_waitcnt lgkmcnt(0)')
    R0, F0 = 8, 88
    for k in range(20): e(f'buffer_load_dwordx4 {v(R0+4*k,4)}, v2, {sA}, s43 offen offset:{k*64}')
    e('v_mov_b32 v4, 0\nv_mov_b32 v5, 0')
    for k in range(20):
        e(f's_waitcnt vmcnt({19-k})')
        for r in range(4):
            x = R0+4*k+r; f = F0+8*k+2*r
            e(f'v_lshlrev_b32 v{f}, 16, v{x}\nv_and_b32 v{f+1}, 0xffff0000, v{x}\nv_add_f32 v4, v4, v{f}\nv_add_f32 v5, v5, v{f+1}')
    e('v_add_f32 v4, v4, v5'); xsum(e, 4, 5)
    e(f'v_mul_f32 v4, {f2u(1/640)}, v4')
    e('v_mov_b32 v5, 0\nv_mov_b32 v6, 0')
    for i in range(0, 160, 2):
        e(f'v_sub_f32 v7, v{F0+i}, v4\nv_sub_f32 v248, v{F0+i+1}, v4\nv_fmac_f32 v5, v7, v7\nv_fmac_f32 v6, v248, v248')
    e('v_add_f32 v5, v5, v6'); xsum(e, 5, 6)
    e(f'v_mul_f32 v5, {f2u(1/640)}, v5')
    e('v_cvt_pk_bf16_f32 v6, v4, v5\nv_lshlrev_b32 v4, 16, v6\nv_and_b32 v5, 0xffff0000, v6')
    e(f'v_add_f32 v5, {f2u(1e-5)}, v5\nv_cvt_pk_bf16_f32 v5, v5, v5\nv_lshlrev_b32 v5, 16, v5\nv_sqrt_f32 v5, v5\nv_cvt_pk_bf16_f32 v5, v5, v5\nv_lshlrev_b32 v5, 16, v5\nv_rcp_f32 v5, v5')
    e(f's_lshr_b32 s40, s42, 1\ns_lshl_b32 s40, s40, 16\ns_and_b32 s41, s42, 1\ns_lshl_b32 s41, s41, 10\ns_add_u32 s40, s40, s41\ns_add_u32 s40, s40, {XN}\nv_lshlrev_b32 v2, 4, v1\nv_add_u32 v3, 40960, v2')
    for k in range(20):
        for r in range(4):
            x = R0+4*k+r; f = F0+8*k+2*r
            e(f'v_sub_f32 v{f}, v{f}, v4\nv_sub_f32 v{f+1}, v{f+1}, v4\nv_cvt_pk_bf16_f32 v6, v{f}, v{f+1}\nv_lshlrev_b32 v{f}, 16, v6\nv_and_b32 v{f+1}, 0xffff0000, v6')
            e(f'v_mul_f32 v{f}, v{f}, v5\nv_mul_f32 v{f+1}, v{f+1}, v5\nv_cvt_pk_bf16_f32 v{x}, v{f}, v{f+1}')
        e(f'buffer_store_dwordx4 {v(R0+4*k,4)}, v2, {sWS}, s40 offen offset:{(k%2)*2048} sc1')
        if k < 12: e(f'buffer_store_dwordx4 {v(R0+4*k,4)}, v3, {sWS}, s40 offen offset:{(k%2)*2048} sc1')
        if k % 2: e('s_add_u32 s40, s40, 4096')
    e(f's_waitcnt vmcnt(0)\ns_barrier\ns_cmp_lg_u32 {sW}, 0\ns_cbranch_scc1 L_LN2')
    e.ts(2)
    e.arrive()
    e('L_LN2:'); e.wait_start(vt=30); e.startflush(30)
    e(f's_cmp_ge_u32 {sJ}, 29\ns_cbranch_scc1 {"L_PP" if e.o.get("ptpf", 0) else "L_end"}')
    e(f'v_mov_b32 v12, 0\ns_mov_b32 {sS}, {sSIDE}\nL_RF_loop:')
    e.crit_off('s35'); e('s_add_u32 s35, s35, s3')
    e.poll('v12', 's35', 20, D=4)
    e(f's_add_u32 {sS}, {sS}, 2\ns_cmp_lt_u32 {sS}, {e.o["nseg"]}\ns_cbranch_scc1 L_RF_loop\ns_branch L_end')
    n0, per = e.o.get('ppn0', 20), 5
    e(f'L_PP:\nv_mov_b32 v12, 0\nv_lshlrev_b32 v2, 4, v1\ns_mov_b32 {sS}, {sSIDE}\ns_sub_u32 s42, {sJ}, 29\ns_lshl_b32 s43, {sW}, 1\ns_add_u32 s43, s43, {sW}\ns_add_u32 s42, s42, s43\ns_add_u32 s42, s42, {n0}')
    for q in range(per):
        d = f's{50+q}'
        e(f's_min_u32 s44, s42, 79\ns_lshr_b32 s40, s44, 4\ns_add_u32 s40, s40, {sXQ}\ns_and_b32 s40, s40, 3\ns_lshl_b32 s40, s40, 14\ns_bfe_u32 s41, s44, 0x30001\ns_lshl_b32 s41, s41, 10\ns_add_u32 s45, s40, s41')
        e(f's_bfe_u32 s40, s44, 0x20002\ns_add_u32 s40, s40, {sXQ}\ns_and_b32 s40, s40, 3\ns_lshl_b32 s40, s40, 11\ns_bfe_u32 s41, s44, 0x10001\ns_lshl_b32 s41, s41, 10\ns_add_u32 s40, s40, s41\ns_add_u32 s40, s40, {4*BS}')
        e(f's_cmp_ge_u32 s44, 64\ns_cselect_b32 {d}, s40, s45\ns_and_b32 s40, s44, 1\ns_mul_i32 s40, s40, {5*BS}\ns_add_u32 {d}, {d}, s40\ns_add_u32 {d}, {d}, {B_PT*BS}\ns_add_u32 s42, s42, 12')
    e('L_PP_loop:')
    e.crit_off('s35'); e(f's_add_u32 s35, s35, s3\ns_add_u32 s35, s35, {F_P}'); e.bulk_off('s36')
    e('v_add_u32 v3, s36, v2')
    e.poll('v12', 's35', 20, D=2, sleep=1)
    e('s_barrier')
    for q in range(per): e(f'buffer_load_dwordx4 {v(24+4*q,4)}, v3, {sWS}, s{50+q} offen sc1')
    e(f's_add_u32 {sS}, {sS}, 2\ns_cmp_lt_u32 {sS}, {e.o["nseg"]}\ns_cbranch_scc1 L_PP_loop\ns_branch L_end')

class Units:
    def __init__(self, keys_reg, keys_lds):
        self.m = {}
        for i, k in enumerate(keys_reg):
            self.m[k] = ('a', 8*i) if i < 32 else ('v', 136 + 8*(i-32))
        assert len(keys_reg) <= 47 and len(keys_lds) <= 13
        for i, k in enumerate(keys_lds): self.m[k] = ('l', i)
    def reg(self, k, off=0, n=8):
        t, r = self.m[k]; assert t != 'l'
        return (a if t == 'a' else v)(r+off, n)
    def islds(self, k): return self.m[k][0] == 'l'
    def ldsoff(self, k, half): return self.m[k][1]*2048 + half*1024

vL16, vWL = 'v2', 'v3'

def common_wsetup(e):
    e(f'v_lshlrev_b32 {vL16}, 4, v1\ns_mul_i32 s40, {sW}, {WPW}\ns_add_u32 s40, s40, {L_W}\nv_add_u32 {vWL}, s40, {vL16}')

def load_weights(e, U, chunks, started, sX, full):
    n = len(chunks); TMP = 40; idn = e.lab('w'); assert n % 4 == 0
    e(f's_mul_i32 s44, {sW}, 3072')
    e.rotword('s42')
    e(f'v_mov_b32 v32, 128\nv_mov_b32 v33, s42\nv_mov_b32 v34, 0\ns_and_b32 s46, {sJ}, 7\ns_lshl_b32 s47, {sW}, 3\ns_or_b32 s46, s46, s47')
    def issue(c):
        ch = chunks[c]
        ch['soff'](); base = (c % 4)*12288
        for ii in range(3):
            e(f's_add_u32 m0, s44, {base + 1024*ii}\nbuffer_load_dwordx4 v{ch["voff"]+ii}, {ch["srd"]}, s45 offen {e.o.get("wfl", "sc1")} lds ;@{idn}_{c}')
    e.ts(1)
    e('s_waitcnt lgkmcnt(0)')
    for c in range(3): issue(c)
    for c in range(n):
        e(f'@wv {idn}_{c}\ns_barrier')
        if c in (0, 10, 20, 30): e.ts(4 + c//10)
        if 1 <= c <= 8:
            e(f's_cmp_eq_u32 s46, {c-1}\ns_cselect_b64 exec, 1, 0\nbuffer_atomic_add_x2 v[32:33], v34, {sDBG}, {sC0} offen sc1\ns_mov_b64 exec, -1')
        if c == n-7: e.start_prime(30)
        if c+3 < n: issue(c+3)
        if c == n-3:
            started()
            e(f's_lshl_b32 {sX}, {sSIDE}, 3\ns_add_u32 {sX}, {sX}, {sXQ}\ns_lshl_b32 {sX}, {sX}, 13\ns_add_u32 {sX}, {sX}, {XN}')
        if c >= n-3:
            k0 = 6*(c-n+3); L = xdma_list(k0, k0+6, sX); L[-1] += f' ;@{idn}_x{k0}'
            for x in L: e(x)
        base = (c % 4)*12288; pend = []; t = TMP
        for (key, ro, va, imm) in chunks[c]['reads']:
            if U.islds(key):
                e(f'ds_read_b64_tr_b16 {v(t,2)}, {va} offset:{base+imm}'); pend.append((key, ro, t)); t += 2
            else:
                e(f'ds_read_b64_tr_b16 {U.reg(key, ro, 2)}, {va} offset:{base+imm}')
        e('s_waitcnt lgkmcnt(0)')
        for i in range(0, len(pend), 2):
            key, ro, t = pend[i]; assert pend[i+1][0] == key and pend[i+1][1] == ro+2 and ro % 4 == 0
            e(f'ds_write_b128 {vWL}, {v(t,4)} offset:{U.ldsoff(key, ro//4)}')
    e(f'@wv {idn}_x{6 if full else 12}\ns_waitcnt lgkmcnt(0)\ns_barrier')
    if full: xdma(e, 18, 20, sX)
    e.ts(2); e.startflush(30)

def setup_colchunk(e, vo, vr, sStride):
    for ii in range(3):
        e(f'v_add_u32 v10, {64*ii}, v1\nv_mul_u32_u24 v11, 2731, v10\nv_lshrrev_b32 v11, 16, v11')
        e(f'v_mul_u32_u24 v12, 24, v11\nv_sub_u32 v10, v10, v12\ns_lshl_b32 s40, {sW}, 3\nv_add_u32 v11, s40, v11\nv_mul_lo_u32 v11, v11, {sStride}\nv_lshl_add_u32 v{vo+ii}, v10, 4, v11')
    e(f'v_lshrrev_b32 v10, 4, v1\nv_lshlrev_b32 v10, 3, v10\nv_bfe_u32 v11, v1, 2, 2\nv_add_u32 v10, v10, v11\nv_mul_u32_u24 v10, 384, v10')
    e(f'v_and_b32 v11, 3, v1\nv_lshl_add_u32 v10, v11, 3, v10\ns_mul_i32 s40, {sW}, 96\nv_add_u32 v{vr}, s40, v10')

def col_chunks(e, srd, vo, vr, sBase, sStep, keyf):
    out = []
    for kp in range(20):
        def soff(kp=kp): e(f's_mul_i32 s45, {sXQ}, {0 if e.o.get("norot") else 4}\ns_add_u32 s45, s45, {kp}\ns_cmp_ge_u32 s45, 20\ns_cselect_b32 s43, 20, 0\ns_sub_u32 s45, s45, s43\ns_mul_i32 s45, {sStep}, s45\ns_add_u32 s45, s45, {sBase}')
        reads = []
        for t in range(3):
            for q in range(2): reads.append((keyf(t, kp//2), 4*(kp % 2)+2*q, f'v{vr}', 32*t + 1536*q))
        out.append(dict(srd=srd, voff=vo, soff=soff, reads=reads))
    return out

def xdma_list(k0, k1, sX, t0='s44', t1='s45'):
    per = (k1-k0)*2 // 4; L = []
    for i in range(per):
        if i == 0: L.append(f's_mul_i32 {t0}, {sW}, {per*1024}\ns_add_u32 m0, {t0}, {L_X + k0*2048}\ns_add_u32 {t1}, m0, {sX}')
        elif i % 4 == 0: L.append(f's_add_u32 m0, m0, 4096\ns_add_u32 {t1}, {t1}, 4096')
        L.append(f'buffer_load_dwordx4 {vL16}, {sWS}, {t1} offen offset:{(i % 4)*1024} sc1 lds')
    return L
def xdma(e, k0, k1, sX):
    for x in xdma_list(k0, k1, sX): e(x)

def memloads_def(e, MF, sM):
    def ld(k, fl=''):
        e(f'buffer_load_dwordx4 {v(MF+4*k,4)}, {vL16}, {sWS}, {sM[k//2]} offen offset:{(k%2)*1024} {fl}')
    return ld

def mem_offs(t, sM, sCR):
    for pr in range(5):
        t(f's_add_u32 s40, {sXQ}, {pr}\ns_cmp_ge_u32 s40, 5\ns_cselect_b32 s41, 5, 0\ns_sub_u32 s40, s40, s41\ns_lshl_b32 s40, s40, 14\ns_add_u32 {sM[pr]}, {sCR}, s40')

def smf(D, Af, B, idx='v4'): return f'v_smfmac_f32_16x16x64_bf16 {v(D,4)}, {v(Af,4)}, {B}, {idx}'
def mf32(D, Aop, Bop, C=None): return f'v_mfma_f32_16x16x32_bf16 {v(D,4)}, {Aop}, {Bop}, {"0" if C is None else v(C,4)}'
def mf16(D, Aop, Bop, C=None): return f'v_mfma_f32_16x16x16_bf16 {v(D,4)}, {Aop}, {Bop}, {"0" if C is None else v(C,4)}'

class Ring:
    def __init__(self, e, U, keys, base, ns):
        self.e, self.U, self.keys, self.base, self.ns = e, U, [k for k in keys if U.islds(k)], base, ns
        self.reset()
    def reset(self): self.q = 0; self.nq = 0; self.emitted = 0; self.pend = []
    def queue(self):
        if self.nq < len(self.keys):
            k = self.keys[self.nq]; r = self.base + 8*(self.nq % self.ns)
            self.pend += [f'ds_read_b128 {v(r+4*h,4)}, {vWL} offset:{self.U.ldsoff(k,h)}' for h in range(2)]
            self.nq += 1
    def fill(self, n=1):
        c = 0
        while self.pend and c < n: self.e(self.pend.pop(0)); self.emitted += 1; c += 1
        return c
    def prime(self):
        self.reset()
        for _ in range(self.ns): self.queue()
        self.fill(99)
    def wait(self, key, other=0):
        if self.U.islds(key):
            assert self.keys[self.q] == key
            need = 2*(self.q+1)
            if self.emitted < need: self.fill(need - self.emitted)
            self.e(f's_waitcnt lgkmcnt({self.emitted - need + other})')
    def op(self, D, Af, key):
        if not self.U.islds(key): self.e(smf(D, Af, self.U.reg(key))); return
        self.e(smf(D, Af, v(self.base + 8*(self.q % self.ns), 8)))
        self.q += 1; self.queue()
    def state(self): return (self.q, self.nq, self.emitted, tuple(self.pend))

NPRE = 7
def crit_pass1(e, ring, MF, sM, tiles, vMax, zero_regs, KO=tuple(range(10))):
    ld0 = memloads_def(e, MF, sM)
    ld = lambda k, fl: ld0(KO[k], fl)
    slow, ok = e.lab('slow'), e.lab('ok')
    NPRE = e.o.get('npre', 7); PACE = e.o.get('pace', 14)
    def body(fl, first):
        zr = list(zero_regs)[::2]; per = -(-len(zr)//(NPRE-1))
        for k in range(NPRE):
            ld(k, fl)
            if k == 0 and not first: e('s_waitcnt lgkmcnt(0)'); ring.prime()
            if k < NPRE-1:
                z = [zr.pop(0) for _ in range(min(per, len(zr)))]; left = max(0, PACE - len(z))
                for j, r in enumerate(z):
                    n = (left*(j+1))//len(z) - (left*j)//len(z)
                    e(f'v_mov_b64 {v(r,2)}, 0' + (f'\ns_nop {n-1}' if n else ''))
        issued = NPRE
        for k in range(10):
            e(f's_waitcnt vmcnt({issued-1-k})')
            if k == 0 and first: e.ts(2)
            if k == 1 and first and e.o.get('early', 0): e(f's_cbranch_vccnz {slow}')
            todo = ['ld'] if issued < 10 else []
            for i, (D, kf) in enumerate(tiles):
                ring.wait(kf(KO[k]))
                ring.op(D, MF+4*KO[k], kf(KO[k]))
                if i == len(tiles)-1:
                    ring.fill(99)
                    if todo: ld(issued, fl); issued += 1
                    if k == 0 and first and e.o.get('early', 0): e(f'v_cmp_u_f32 vcc, v{MF}, v{MF+3}')
                elif ring.fill(1): pass
                elif todo: todo.pop(); ld(issued, fl); issued += 1
    e.ts(1)
    body('', True)
    end = ring.state()
    backs = []
    def nancheck(D, summed=False):
        c = e.lab('chk'); bk = e.lab('bk'); backs.append((c, bk))
        if summed: return [f'v_cmp_u_f32 vcc, v{D}, v{D+2}', f's_cbranch_vccnz {c}\n{bk}:']
        return [f'v_cmp_u_f32 s[62:63], v{D}, v{D+1}', f'v_cmp_u_f32 vcc, v{D+2}, v{D+3}', f's_or_b64 vcc, vcc, s[62:63]\ns_cbranch_scc1 {c}\n{bk}:']
    def slowpath():
        (c, bk), = backs
        e(f'{c}:\ns_cmp_lt_u32 s34, 2\ns_cbranch_scc1 {slow}\nv_mov_b32 {vMax}, 0')
        for k in range(10):
            r = MF+4*k; e(f'v_max3_u32 {vMax}, {vMax}, v{r}, v{r+1}\nv_max3_u32 {vMax}, {vMax}, v{r+2}, v{r+3}')
        e(f'v_cmp_eq_u32 vcc, -1, {vMax}\ns_cbranch_vccz {bk}')
        go = e.lab('go'); e.tmo(go); e(f'{go}:')
        e(f'{slow}:\ns_add_u32 s34, s34, 1\ns_nop 7')
        if e.o.get('damp', 0): e('s_mov_b64 s[30:31], 0')
        body('sc1', False)
        assert ring.state() == end
        e(f's_nop 7\ns_branch {ok}')
    e(f'{ok}:')
    return nancheck, slowpath

class Tok1:
    def __init__(self, e, U, tiles, XB, ST):
        self.e, self.U, self.tiles, self.XB, self.ST, self.id = e, U, tiles, XB, ST, e.lab('t')
    def lds_keys(self, kp): return [kf(kp//2) for (_, kf) in self.tiles if self.U.islds(kf(kp//2))]
    def reads(self, kp):
        b = kp % 3
        out = [f'ds_read_b128 {v(self.XB+8*b+4*tt,4)}, {vL16} offset:{L_X + kp*2048 + tt*1024}' for tt in range(2)]
        out += [f'ds_read_b128 {v(self.ST+8*b+4*i,4)}, {vWL} offset:{self.U.ldsoff(k, kp%2)}' for i, k in enumerate(self.lds_keys(kp))]
        out[-1] += f' ;@{self.id}_{kp}'
        return out
    def prologue(self): return self.reads(0) + self.reads(1)
    def run(self, hooks, extra, late=None):
        e, U = self.e, self.U
        extra = list(extra); hk = list(hooks[-1]()) if -1 in hooks else []; late = late or {}
        cost = lambda x: 2 if x.startswith(('v_exp', 'v_rcp', 'v_perml', 'buffer_', 'ds_', 's_')) or 'barrier' in x else 1
        def fill(room):
            c = 0
            while extra and c < room:
                x = extra[0]
                if x == '-':
                    if c == 0: extra.pop(0)
                    break
                if x == '|':
                    extra.pop(0)
                    if c: break
                    continue
                if c + cost(x) > room or (room < 2 and x.startswith('@')): break
                e(extra.pop(0)); c += cost(x)
        e(f'@wl {self.id}_0'); NT = 2*len(self.tiles); since = 9
        for kp in range(20):
            nxt = self.reads(kp+2) if kp+2 < 20 else []
            b = kp % 3; lk = self.lds_keys(kp); n = 0
            for (acc, kf) in self.tiles:
                k = kf(kp//2)
                Aop = v(self.ST+8*b+4*lk.index(k), 4) if U.islds(k) else U.reg(k, 4*(kp % 2), 4)
                for tt in range(2):
                    e(mf32(acc+4*tt, Aop, v(self.XB+8*b+4*tt, 4), None if kp == 0 else acc+4*tt)); n += 1; since += 1
                    last = n == NT and kp < 19
                    if last: e(f'@wl {self.id}_{kp+1}')
                    n1 = len(e.L)
                    if n == NT and kp in hooks: hk += hooks[kp]()
                    if len(e.L) > n1: pass
                    elif (kp, n) in late: e(late[(kp, n)])
                    elif nxt: e(nxt.pop(0)); fill(1)
                    elif hk and not last and (since >= 4 or not 'buffer_' in hk[0]):
                        if 'buffer_' in hk[0]: since = 0
                        e(hk.pop(0))
                    elif last and extra and extra[0].startswith(('s_', '@')): pass
                    else: fill(2)
            assert not nxt
        assert not hk and not [x for x in extra if x not in '|-'], (hk, extra)

def salu_groups(t):
    sal = [x.strip() for x in t.L]; L = []; cur = []
    for x in sal:
        if len(cur) == 3 or (x.startswith('s_cmp') and len(cur) == 2): L.append('\n'.join(cur)); cur = []
        cur.append(x)
    L.append('\n'.join(cur))
    return L

def schedule(e, main, ops, pos0, burst=99):
    pos = dict(pos0); n0 = len(e.L); ops = list(ops); main = list(main)
    cur = lambda: sum(1 for x in e.L[n0:] if not x.strip().endswith(':'))
    def dist(d):
        L = [x.strip() for x in e.L[n0:] if not x.strip().endswith(':')]
        a = len(L) - pos[d] - 1
        ism = lambda x: x.startswith(('v_mfma', 'v_smfmac'))
        if pos[d] < 0 or ism(L[pos[d]]):
            later = [i for i in range(max(pos[d]+1, 0), len(L)) if ism(L[i])]
            if later: a = max(a, 4*len(later) + len(L) - later[-1] - 1)
        return a
    def ready(o): return all(d in pos and dist(d) >= k for d, k in o[3])
    def emit(o): pos[o[0]] = cur(); e(o[1]); ops.remove(o)
    def fillers(n):
        for o in [o for o in ops if o[2] == 's' and ready(o)]: emit(o)
        for _ in range(n):
            c = [o for o in ops if o[2] == 'v' and ready(o)]
            if c: emit(c[0])
    while main:
        c = [o for o in ops if o[2] == 'm' and ready(o)]
        if c: emit(c[0]); fillers(2); continue
        nm, fn = main.pop(0); c0 = cur(); fn(); L = [x.strip() for x in e.L[n0:] if not x.strip().endswith(':')]; pos[nm] = max(i for i in range(c0, len(L)) if L[i].startswith('v_smf')); fillers(1)
        if len([o for o in ops if o[2] == 'v' and all(d in pos for d, _ in o[3])]) >= burst: fillers(1)
    while ops:
        c = [o for o in ops if ready(o)]
        if c: emit(c[0])
        else: e('s_nop 0')

def flagclear_bulk(e, blk, vt):
    e(f'v_lshlrev_b32 v{vt}, 22, v1\ns_lshl_b32 s40, {sSIDE}, 13\ns_add_u32 s40, s40, s42\ns_add_u32 s40, s40, {BULK + blk*BS}')
    e(f'v_mov_b32 v{vt+1}, -1\ns_mov_b32 exec_hi, 0\nbuffer_store_dword v{vt+1}, v{vt}, {sWS}, s40 offen sc1\ns_mov_b32 exec_hi, -1')

def role_vo(e):
    keys_l = [('v', 2, k) for k in range(10)] + [('v', 1, k) for k in (2, 5, 8)]
    keys_r = [('o', u, k) for u in range(10) for k in range(3)] + [('v', t, k) for t in range(2) for k in range(10) if ('v', t, k) not in keys_l]
    U = Units(keys_r, keys_l)
    sFFN, sSTR, sWB, sSTP, sOB = 's29', 's30', 's31', 's32', 's33'
    sCR, sCR2, sB0, sB1, sX, sM = 's35', 's36', 's37', 's38', 's39', ('s46', 's47', 's48', 's58', 's59')
    sSL, sFR = 's49', 's50'
    L_VX, L_VM = L_MISC, L_MISC + 12288
    e('L_VO:')
    e.srd(8, 4, 7864320); e.srd(12, 5, 7864320)
    e(f's_lshl_b32 {sU}, {sXQ}, 3\ns_add_u32 {sU}, {sU}, {sJ}\ns_sub_u32 {sU}, {sU}, 8\ns_mov_b32 {sFFN}, 0\ns_mov_b32 {sSTR}, 12288\ns_mov_b32 s42, {sU}\ns_branch L_VF')
    e('L_FFN:')
    e.srd(8, 8, 1966080); e.srd(12, 9, 1966080)
    e(f's_lshl_b32 {sU}, {sXQ}, 1\ns_add_u32 {sU}, {sU}, {sJ}\ns_sub_u32 {sU}, {sU}, 26\ns_mov_b32 {sFFN}, 1\ns_mov_b32 {sSTR}, 3072\ns_add_u32 s42, {sU}, 32')
    e('L_VF:')
    e(f's_lshr_b32 s40, s42, 3\ns_lshl_b32 s40, s40, 14\ns_and_b32 s41, s42, 7\ns_lshl_b32 s41, s41, 10\ns_add_u32 {sSL}, s40, s41\ns_lshl_b32 s51, s42, 7')
    e(f's_mul_i32 {sWB}, {sU}, 384\ns_lshl_b32 {sSTP}, {sSTR}, 5\ns_mul_i32 {sOB}, {sU}, 245760')
    common_wsetup(e)
    VO1, VR1, VO2, VR2 = 16, 19, 20, 23
    setup_colchunk(e, VO1, VR1, sSTR)
    for ii in range(3):
        e(f's_mul_i32 s40, {sW}, 192\ns_add_u32 s40, s40, {64*ii}\ns_min_u32 s40, s40, 576\nv_add_u32 v10, s40, v1\nv_mul_u32_u24 v11, 1639, v10\nv_lshrrev_b32 v11, 16, v11')
        e(f'v_mul_u32_u24 v12, 40, v11\nv_sub_u32 v12, v10, v12\nv_mul_u32_u24 v11, 1280, v11\nv_lshl_add_u32 v{VO2+ii}, v12, 4, v11')
    e(f'v_lshrrev_b32 v10, 2, v1\nv_mul_u32_u24 v10, 640, v10\nv_and_b32 v11, 3, v1\nv_lshl_add_u32 v10, v11, 3, v10\ns_mul_i32 s40, {sW}, 160\nv_add_u32 v{VR2}, s40, v10')
    chunks = col_chunks(e, sA, VO1, VR1, sWB, sSTP, lambda t, k: ('v', t, k))
    for r16 in range(12):
        for hf in range(2):
            def soff(r16=r16, hf=hf): e(f's_add_u32 s45, {sOB}, {r16*16*1280 + hf*640}')
            chunks.append(dict(srd=sB, voff=VO2, soff=soff, reads=[(('o', 5*hf+uu, r16//4), 2*(r16 % 4), f'v{VR2}', 32*uu) for uu in range(5)]))
    e(f'v_and_b32 v13, 15, v1\nv_lshrrev_b32 v14, 4, v1')
    e(f'v_and_b32 v4, 1, v1\nv_mul_u32_u24 v4, 0xaaaa, v4\nv_add_u32 v4, 0x4444, v4')
    for (dst, tau) in ((5, 0), (6, 1)):
        e(f's_mul_i32 s40, {sW}, 3\ns_add_u32 s40, s40, {tau}\ns_lshr_b32 s41, s40, 1\ns_and_b32 s40, s40, 1')
        e(f's_lshl_b32 s43, s41, 10\ns_lshl_b32 s44, s40, 3\ns_add_u32 s43, s43, s44\ns_add_u32 s43, s43, {L_VX}\nv_add_u32 v{dst}, s43, {vL16}')
        e(f's_lshl_b32 s43, s41, 9\ns_lshl_b32 s44, s40, 2\ns_add_u32 s43, s43, s44\ns_add_u32 s43, s43, {L_VM}\nv_mov_b32 v{dst+2}, s43')
    e('''v_lshrrev_b32 v10, 3, v13
    v_lshlrev_b32 v10, 8, v10
    v_bfe_u32 v11, v13, 1, 1
    v_lshl_add_u32 v10, v11, 4, v10
    v_bfe_u32 v11, v13, 2, 1
    v_lshl_add_u32 v10, v11, 3, v10
    v_and_b32 v11, 1, v13
    v_lshl_add_u32 v10, v11, 5, v10
    v_lshl_add_u32 v10, v14, 6, v10
    v_add_u32 v7, v7, v10
    v_add_u32 v8, v8, v10''')
    e(f'''v_and_b32 v10, 1, v14
    v_lshrrev_b32 v11, 1, v14
    v_lshl_add_u32 v12, v10, 1, v11
    s_mul_i32 s40, {sW}, 5
    s_add_u32 s40, s40, {B_VOM}
    s_lshl_b32 s40, s40, 14
    s_lshl_b32 s41, {sU}, 8
    s_add_u32 s40, s40, s41
    v_lshl_add_u32 v15, v13, 4, s40
    v_lshl_add_u32 v9, v12, 14, v15
    v_lshlrev_b32 v10, 3, v10
    v_add_u32 v11, 23, v11
    v_lshl_add_u32 v11, v11, 14, v15
    v_add_u32 v11, v11, v10
    v_add_u32 v10, {19*BS}, v9
    v_add_u32 v15, {4*BS}, v9
    v_cmp_eq_u32 vcc, 0, v12
    v_cndmask_b32 v10, v10, v15, vcc
    v_and_b32 v12, 1, v1
    v_cmp_eq_u32 vcc, 1, v12
    v_mov_b32 v14, 0x05040100
    v_mov_b32 v12, 0x03020706
    v_cndmask_b32 v14, v14, v12, vcc
    v_mov_b32 v12, 0''')
    def clear_vom(so):
        for r in range(124, 128): e(f'v_mov_b32 v{r}, -1')
        e(f'buffer_store_dwordx4 v[124:127], v9, {sWS}, {so} offen sc1\nbuffer_store_dwordx4 v[124:127], v10, {sWS}, {so} offen sc1\nbuffer_store_dwordx2 v[124:125], v11, {sWS}, {so} offen sc1')
    load_weights(e, U, chunks, lambda: e.wait_start(vt=30, primed=True), sX, True)
    XB, ST, AC1, VF, AC2, PK = 40, 64, 92, 84, 16, 32
    T1 = Tok1(e, U, [(AC1+8*t, (lambda k, t=t: ('v', t, k))) for t in range(3)], XB, ST)
    e(f's_sub_u32 {sS}, {sSIDE}, 2\ns_mov_b32 s43, 0\ns_mov_b32 s52, 0\ns_or_b32 s64, {sFFN}, {sSIDE}\ns_xor_b32 s64, s64, 1')
    e('L_VF_E:\ns_mov_b64 s[54:55], 0\ns_mov_b64 s[56:57], 0\ns_mov_b64 s[60:61], 0\ns_mov_b32 s53, 1')
    for x in T1.prologue(): e(x.split(';@')[0])
    e('s_waitcnt lgkmcnt(0)\ns_branch L_VF_B')
    e('L_VF_loop:')
    e.ts(0)
    for kp in range(6):
        for tt in range(2): e(f'ds_read_b128 {v(VF+8*kp+4*tt,4)}, {vL16} offset:{L_VX + (tt*6+kp)*1024} ;@vf{kp}')
    t = G(**e.o); t(f's_add_u32 {sX}, {sX}, 131072\ns_mov_b32 s53, {sFFN}\ns_mov_b64 s[60:61], -1'); t.bulk_off(sB0)
    t(f's_add_u32 {sB1}, {sB0}, {2<<20}\ns_xor_b32 {sB1}, {sB1}, 8192')
    t(f's_mul_i32 s42, {sW}, {25*BS}\ns_add_u32 s42, s42, {sSL}\ns_add_u32 s43, s42, {sB1}\ns_add_u32 s42, s42, {sB0}')
    t(f's_add_u32 s52, {sB0}, s51\ns_add_u32 s52, s52, {B_VF*BS}')
    t(f's_cmp_eq_u32 {sFFN}, 0\ns_cselect_b64 s[54:55], -1, 0\ns_cmp_eq_u32 {sW}, 0\ns_cselect_b64 s[56:57], 1, 0')
    sa = salu_groups(t)
    dm = xdma_list(0, 20, sX); dm[-1] += ' ;@xdma'
    def fin(u):
        ac = AC2+8*(u % 2); pk = PK+4*(u % 2); sr = 's42' if u < 5 else 's43'
        c = [f'v_cvt_pk_bf16_f32 v{pk+i}, v{ac+4*(i&1)+2*(i>>1)}, v{ac+4*(i&1)+2*(i>>1)+1}' for i in (0, 2, 1, 3)]
        st = f'buffer_store_dwordx4 {v(pk,4)}, {vL16}, {sWS}, {sr} offen sc1'
        return [c[0]+'\n'+c[1], c[2]+'\n'+c[3], (f's_add_u32 {sr}, {sr}, {5*BS}\n' if u % 5 else '') + st]
    pro = T1.prologue()
    for u in range(10):
        ac = AC2+8*(u % 2); pend = fin(u-1) if u else []
        n = 0
        for kp in range(6):
            if u == 0: e(f'@wl vf{kp}')
            for tt in range(2):
                e(mf32(ac+4*tt, v(VF+8*kp+4*tt, 4), U.reg(('o', u, kp//2), 4*(kp % 2), 4), None if kp == 0 else ac+4*tt)); n += 1
                if u == 0:
                    if sa: e(sa.pop(0))
                elif n in (2, 3, 4): e(pend.pop(0))
                elif dm and (n in (7, 11) or (n in (6, 10) and dm[0].startswith('s_'))): e(dm.pop(0))
                elif u == 9 and n == 5: e('@wv xdma\ns_barrier')
                elif u == 9 and n >= 6 and pro: e(pro.pop(0))
        assert not sa
    assert not pro and not dm
    e('s_cmp_lg_u32 s64, 0\ns_cbranch_scc1 L_VF_lite')
    e('L_VF_B:')
    e.ts(6)
    t = G(**e.o); t.crit_off(sCR); mem_offs(t, sM, sCR)
    t(f's_add_u32 {sFR}, {sCR}, s3\ns_mov_b32 s34, 0')
    f9 = fin(9); x = f9[2].split('\n')
    ex = ['-'] + f9[0].split('\n') + f9[1].split('\n') + [x[0], f's_mov_b64 exec, s[60:61]\n{x[1]}\ns_mov_b64 exec, -1'] + salu_groups(t)
    def hkflag():
        e('s_waitcnt vmcnt(0)\ns_barrier')
        return [f's_mov_b64 exec, s[56:57]\nbuffer_store_dword v12, v12, {sWS}, s52 offen sc1\ns_mov_b64 exec, -1']
    def hkclr(): return [f's_mov_b64 exec, s[54:55]\nbuffer_store_{x}, {sWS}, {sCR2} offen sc1\ns_mov_b64 exec, -1' for x in ('dwordx4 v[124:127], v9', 'dwordx4 v[124:127], v10', 'dwordx2 v[124:125], v11')]
    pp = e.poll_prime('v12', sFR, 132)
    n0 = len(e.L); e('L_VF_lite:\ns_nop 7')
    for x in ex:
        if x not in '|-': e(x)
    for x in hkflag() + pp: e(x)
    e('s_waitcnt lgkmcnt(0)\ns_branch L_VF_C'); lite = e.L[n0:]; del e.L[n0:]
    T1.run({7: hkflag}, ex, {(19, 2): pp[0]})
    e.ts(7)
    l = e.lab('nsilu'); e(f's_cmp_lg_u32 {sFFN}, 0\ns_cbranch_scc1 L_silu\n{l}:')
    n0 = len(e.L); e('L_silu:\ns_nop 7')
    for r in range(AC1, AC1+24, 2):
        e(f'v_cvt_pk_bf16_f32 v16, v{r}, v{r+1}\nv_lshlrev_b32 v{r}, 16, v16\nv_and_b32 v{r+1}, 0xffff0000, v16')
        e(f'v_mul_f32 v16, {f2u(-LOG2E)}, v{r}\nv_mul_f32 v17, {f2u(-LOG2E)}, v{r+1}\nv_exp_f32 v16, v16\nv_exp_f32 v17, v17\nv_add_f32 v16, 1.0, v16\nv_add_f32 v17, 1.0, v17')
        e(f'v_rcp_f32 v16, v16\nv_rcp_f32 v17, v17\nv_mul_f32 v{r}, v{r}, v16\nv_mul_f32 v{r+1}, v{r+1}, v17')
    e(f's_branch {l}'); silu_code = e.L[n0:]; del e.L[n0:]
    for t in range(3):
        for tt in range(2):
            r = AC1+8*t+4*tt; d = 16+4*t+2*tt
            e(f'v_cvt_pk_bf16_f32 v{d}, v{r}, v{r+1}\nv_cvt_pk_bf16_f32 v{d+1}, v{r+2}, v{r+3}')
            e(f'ds_write_b64 {"v6" if t == 1 else "v5"}, {v(d,2)} offset:{tt*6144 + (1024 if t == 2 else 0)}')
        if t < 2: e(pp[1+t])
    e(f's_cmp_lg_u32 s53, 0\ns_cbranch_scc1 L_VF_skip\nL_VF_C:')
    MF, AC, RS, AD = 16, 56, 68, 92
    KO = [k ^ e.o.get('vswap', 0) for k in range(10)]
    order = [('v', t, k) for k in KO for t in (2, 1, 0)]
    ring = Ring(e, U, order, RS, 3)
    ring.prime()
    e.ts(5)
    e.poll('v12', sFR, 132, primed=True)
    e('s_barrier')
    nanchk, slow = crit_pass1(e, ring, MF, sM, [(AC+4*t, (lambda k, t=t: ('v', t, k))) for t in (2, 1, 0)], 'v13', list(range(AC, AC+12)) + list(range(AD, AD+32)), KO)
    e.ts(10)
    nc = nanchk(AC+8, True)
    z = [f'v_mov_b64 {v(r,2)}, 0' for r in range(AD+32, AD+40, 2)]
    vb = e.o.get('vb', 4)
    def s1(t): d = AC+4*t; return f'v_add_f32 v{d}, v{d}, v{d+1}\nv_add_f32 v{d+2}, v{d+2}, v{d+3}\nv_cvt_pk_bf16_f32 v{d+1}, v{d}, v{d+2}'
    def s2(t):
        d = AC+4*t
        return f'v_mov_b32_dpp v{d+3}, v{d+1} quad_perm:[1,0,3,2] row_mask:0xf bank_mask:0xf\nv_perm_b32 v{d+1}, v{d+3}, v{d+1}, v14\nds_write_b32 {"v8" if t == 1 else "v7"}, v{d+1} offset:{512 if t == 2 else 0}'
    for x in (s1(2), s1(1), s2(2), s1(0), s2(1), s2(0), nc[0], z[0], 's_nop 2', nc[1]): e(x)
    e(f's_waitcnt lgkmcnt(0)\n{z[1]}\ns_barrier')
    for k in range(3): e(f'ds_read_b128 {v(MF+4*k,4)}, {vL16} offset:{L_VM + k*1024}')
    e(f'{z[2]}\ns_nop {vb}\n{z[3]}')
    e.ts(3)
    OT = 28
    main = []; ops = []
    for pi in range(5):
        for u in (2*pi, 2*pi+1):
            for k in range(3):
                def fn(pi=pi, k=k, u=u):
                    if u == 0: e(f's_waitcnt lgkmcnt({2-k})')
                    e(smf(AD+4*u, MF+4*k, U.reg(('o', u, k))))
                main.append((f's{u}_{k}', fn))
        for u in (2*pi, 2*pi+1):
            d = AD+4*u; o = OT+u
            ops.append((f'a{u}', f'v_add_f32 v{d}, v{d}, v{d+1}', 'v', [(f's{u}_2', 8)]))
            ops.append((f'b{u}', f'v_add_f32 v{d+2}, v{d+2}, v{d+3}', 'v', [(f'a{u}', 0)]))
            ops.append((f'c{u}', f'v_cvt_pk_bf16_f32 v{o}, v{d}, v{d+2}', 'v', [(f'b{u}', 0)]))
        o = OT+2*pi
        ops.append((f'w{pi}', f'v_permlane32_swap_b32 v{o}, v{o+1}', 'v', [(f'c{2*pi}', 2), (f'c{2*pi+1}', 2)]))
        if pi in (1, 3):
            g0 = OT+4*(pi//2)
            ops.append((f'x{pi}_0', f'v_permlane16_swap_b32 v{g0}, v{g0+2}', 'v', [(f'w{pi}', 2), (f'w{pi-1}', 2)]))
            ops.append((f'x{pi}_1', f'v_permlane16_swap_b32 v{g0+1}, v{g0+3}', 'v', [(f'w{pi}', 2), (f'w{pi-1}', 2)]))
            ops.append((f'st{pi}', f'buffer_store_dwordx4 {v(g0,4)}, v{9+pi//2}, {sWS}, {sCR} offen sc1', 'v', [(f'x{pi}_1', 0), (f'x{pi}_0', 0)]))
        if pi == 4:
            ops.append(('st4', f'buffer_store_dwordx2 {v(o,2)}, v11, {sWS}, {sCR} offen sc1', 'v', [('w4', 0)]))
    schedule(e, main, ops, {}, burst=e.o.get('burst', 9))
    if e.o.get('ackts'): e.ts(9); e('s_waitcnt vmcnt(0)')
    e.ts(4)
    e.tsflush(11, 60)
    e('s_cmp_lg_u32 s64, 0\ns_mov_b32 s64, 0\ns_cbranch_scc1 L_VF_E')
    e('L_VF_next:')
    e(f's_add_u32 {sS}, {sS}, 2\ns_cmp_lt_u32 {sS}, {e.o["nseg"]}\ns_cbranch_scc1 L_VF_loop\ns_branch L_end')
    e('L_VF_skip:\ns_waitcnt lgkmcnt(0)\ns_barrier\ns_branch L_VF_next')
    slow()
    e.L += silu_code + lite

def dppred(op, m):
    return [f'{op}_dpp v{m}, v{m}, v{m} {c} row_mask:0xf bank_mask:0xf' for c in ('quad_perm:[1,0,3,2]', 'quad_perm:[2,3,0,1]', 'row_half_mirror', 'row_ror:8')]

def role_qk(e):
    keys_l = [('q', 2, k) for k in range(10)] + [('k', 1, k) for k in (5, 7, 9)]
    K1ORD = [0, 5, 1, 2, 7, 3, 4, 9, 6, 8]
    keys_r = [(m, t, k) for m in 'qk' for t in range(3) for k in range(10) if (m, t, k) not in keys_l]
    U = Units(keys_r, keys_l)
    sSTR, sWB, sSTP = 's30', 's31', 's32'
    sCR, sCR2, sB0, sX, sM = 's35', 's36', 's37', 's39', ('s46', 's47', 's48', 's56', 's57')
    sFR, sPT, sPTc, sLead, sRP, sPTo = 's50', 's51', 's52', 's53', 's49', 's33'
    sC2 = 's[54:55]'
    mN8, mMM, mV, mTA = 's[56:57]', 's[58:59]', 's[60:61]', 's[64:65]'
    L_SM, L_TM = L_MISC, L_MISC + 12288
    vZ = 'v6'; SEL = 12
    CM = [f's[{r}:{r+1}]' for r in (8, 10, 12, 14, 94, 96, 98, 100)]
    e('L_QK:')
    e.srd(8, 2, 7864320); e.srd(12, 3, 7864320)
    e(f's_lshl_b32 {sU}, {sXQ}, 3\ns_add_u32 {sU}, {sU}, {sJ}\ns_mov_b32 {sSTR}, 12288\ns_mul_i32 {sWB}, {sU}, 384\ns_lshl_b32 {sSTP}, {sSTR}, 5')
    e(f's_mov_b32 s56, 0x00ff00ff\ns_mov_b32 s57, 0x00ff00ff\ns_mov_b32 s58, 0\ns_mov_b32 s59, 0x00ff00ff\ns_mov_b32 s60, 0x03ff03ff\ns_mov_b32 s61, 0x03ff03ff\ns_mov_b32 s54, {CSC}\ns_mov_b32 s55, {CSC}')
    e(f's_lshl_b32 s40, {sJ}, 2\ns_add_u32 s40, s40, {sW}\ns_cmp_eq_u32 s40, 3\ns_cselect_b32 {sLead}, 1, 0')
    e(f's_cmp_lt_u32 {sW}, 2\ns_cselect_b64 s[42:43], {mV}, 0\ns_mov_b32 s24, s42\ns_add_u32 s40, {sW}, 1\ns_bitcmp1_b32 s40, 1\ns_cselect_b64 {mTA}, -1, 0')
    common_wsetup(e)
    VO1, VR1 = 16, 19
    setup_colchunk(e, VO1, VR1, sSTR)
    cq = col_chunks(e, sA, VO1, VR1, sWB, sSTP, lambda t, k: ('q', t, k))
    ck = col_chunks(e, sB, VO1, VR1, sWB, sSTP, lambda t, k: ('k', t, k))
    chunks = [c for p in zip(cq, ck) for c in p]
    e(f'v_and_b32 v20, 15, v1\nv_lshrrev_b32 v21, 4, v1\nv_and_b32 v22, 1, v21\nv_lshrrev_b32 v23, 1, v21')
    e(f'v_and_b32 v4, 1, v1\nv_mul_u32_u24 v4, 0xaaaa, v4\nv_add_u32 v4, 0x4444, v4')
    e(f"""s_mul_i32 s40, {sW}, 1536
    s_add_u32 s40, s40, {L_SM}
    v_bfe_u32 v24, v20, 1, 2
    v_mul_u32_u24 v5, 176, v24
    v_and_b32 v24, 1, v20
    v_mul_u32_u24 v24, 768, v24
    v_add3_u32 v5, v5, v24, s40
    v_lshl_add_u32 v5, v23, 6, v5
    v_lshl_add_u32 v5, v22, 4, v5
    v_lshrrev_b32 v24, 3, v20
    v_mul_u32_u24 v24, 6144, v24
    v_add_u32 v5, v5, v24
    s_and_b32 s43, {sW}, 1
    s_lshl_b32 s43, s43, 2
    v_add_u32 v24, s43, v21
    v_lshrrev_b32 v0, 1, v24
    v_mul_u32_u24 v0, 176, v0
    v_mul_u32_u24 v25, 768, v22
    v_add_u32 v0, v0, v25
    v_lshl_add_u32 v0, v20, 4, v0
    v_mov_b32 {vZ}, 0
    s_lshl_b32 s40, {sW}, 10
    v_add_u32 v7, s40, {vL16}
    s_lshr_b32 s41, {sW}, 1
    s_lshl_b32 s40, s41, 9
    s_add_u32 s40, s40, {L_TM}
    v_lshl_add_u32 v8, v20, 4, s40
    v_lshl_add_u32 v8, v23, 8, v8
    v_lshl_add_u32 v8, v22, 3, v8
    s_lshl_b32 s40, s41, 4
    v_add_u32 v10, s40, v20
    v_lshlrev_b32 v11, 2, v21
    v_sub_u32 v10, v10, v11
    v_lshlrev_b32 v11, 4, v20
    v_lshl_add_u32 v11, v22, 3, v11
    v_lshl_add_u32 v11, v23, 2, v11""")
    e(f"""s_mul_i32 s41, s41, 40
    s_add_u32 s40, s41, {sU}
    s_lshr_b32 s42, s40, 3
    s_lshl_b32 s42, s42, 14
    s_and_b32 s40, s40, 7
    s_lshl_b32 s40, s40, 10
    s_add_u32 {sPTc}, s42, s40
    s_lshr_b32 s40, {sU}, 2
    s_add_u32 s40, s40, s41
    s_add_u32 s40, s40, 32
    s_lshr_b32 s42, s40, 3
    s_lshl_b32 s42, s42, 14
    s_and_b32 s40, s40, 7
    s_lshl_b32 s40, s40, 10
    s_add_u32 s42, s42, s40
    s_and_b32 s40, {sU}, 3
    s_lshl_b32 s40, s40, 8
    s_add_u32 s42, s42, s40
    s_sub_u32 s42, s42, {sPTc}
    v_add_u32 v11, s42, v11
    s_add_u32 {sPTc}, {sPTc}, {B_PT*BS}""")
    e(f"""v_lshlrev_b32 v25, 5, v24
    v_and_b32 v26, 1, v20
    v_lshl_add_u32 v27, v26, 4, v25
    v_and_b32 v26, 3, v20
    v_lshl_add_u32 v25, v26, 3, v25
    s_lshr_b32 s40, {sU}, 1
    s_lshl_b32 s40, s40, 8
    s_and_b32 s41, {sU}, 1
    s_lshl_b32 s41, s41, 3
    s_add_u32 s40, s40, s41
    s_add_u32 s40, s40, {B_P*BS}
    v_add_u32 v27, s40, v27
    s_lshr_b32 s41, {sU}, 3
    s_lshl_b32 s41, s41, 14
    s_and_b32 s40, {sU}, 7
    s_lshl_b32 s40, s40, 9
    s_add_u32 s40, s40, s41
    s_add_u32 s40, s40, {(B_P+1)*BS}
    v_bfe_u32 v26, v20, 2, 1
    v_lshl_add_u32 v25, v26, 8, v25
    v_add_u32 v9, s40, v25
    v_cmp_gt_u32 vcc, 8, v20
    v_cndmask_b32 v9, v27, v9, vcc""")
    e('v_lshlrev_b32 v25, 1, v21\nv_sub_u32 v25, v20, v25\nv_mov_b32 v26, 0x3f803f80')
    for r, j in ((0, 0), (1, 1), (2, 8), (3, 9)):
        e(f'v_cmp_eq_u32 vcc, {j}, v25\nv_cndmask_b32 v{SEL+r}, 0, v26, vcc')
    def started():
        for i in range(8): e(f'v_cmp_le_i32 {CM[i]}, {(i//4)*16 + i % 4}, v10')
        e.wait_start(vt=30, vF='v10', primed=True)
    load_weights(e, U, chunks, started, sX, False)
    e(f's_mov_b32 {sS}, {sSIDE}\ns_mov_b64 s[66:67], 0\ns_mov_b32 {sPT}, 0')
    X = 16
    SA = [116, 124, 132, 28, 32]
    def ta_pre():
        L = [f'ds_write_b128 v7, {v(SA[i],4)} offset:{L_MISC + i*4096}' for i in range(3)]
        L += [f's_mov_b32 exec_lo, 0\nds_write_b128 v7, {v(SA[3+tq],4)} offset:{L_TM - 512 + tq*512} ;@sw\ns_mov_b32 exec_lo, -1' for tq in range(2)]
        L = [L[3], f's_lshr_b32 s40, {sW}, 1\ns_lshl_b32 s40, s40, 12', L[4].replace(' ;@sw', ''), f'v_add_u32 v38, s40, {vL16}', 'v_add_u32 v39, s40, v38', L[0], f'v_mov_b32 v37, {f2u(-1e9 * 192**0.5)}', '|',
             L[1], '-', L[2] + ' ;@sw', '-', '-', '-', '-', '@wl sw\ns_barrier']
        dst = [(X, X+4, X+8), (26, 30, 34), (116, 124, 132), (26, 30, 34)]
        rd = lambda w: [f'ds_read_b128 {v(dst[w][0],4)}, v38 offset:{L_MISC + w*1024}', f'ds_read_b128 {v(dst[w][1],4)}, v39 offset:{L_MISC + w*1024}', f'ds_read_b64 {v(dst[w][2],2)}, v8 offset:{w*1024} ;@sr{w}']
        ad = lambda w: ['|'] + [(f'@wl sr{w}\n' if i == 0 else '') + f'v_add_f32 v{X+i}, v{X+i}, v{dst[w][i//4] + i % 4}' for i in range(10)]
        return L + rd(0) + rd(1) + rd(2) + ['-'] + ad(1) + rd(3) + ad(2) + ad(3)
    def ta_ops(inter=True):
        m, t = 34, 36
        L = []
        for i in range(8): L.append(f'v_cndmask_b32 v{X+i}, v37, v{X+i}, {CM[i]}')
        L += [f'v_max3_f32 v{m}, v{X}, v{X+1}, v{X+2}'] + [f'v_max3_f32 v{m}, v{m}, v{X+i}, v{X+i+1}' for i in (3, 5, 7)] + [f'v_max_f32 v{m}, v{m}, v{X+9}']
        def xs(op):
            o = []
            for st in (16, 32): o += [f'v_mov_b32 v{t}, v{m}', f'v_permlane{st}_swap_b32 v{m}, v{t}', f'{op} v{m}, v{m}, v{t}']
            return o
        L += xs('v_max_f32')
        L += [f'v_mul_f32 v{m}, s54, v{m}']
        L += [f'v_fma_f32 v{X+i}, v{X+i}, s54, -v{m}' for i in range(10)]
        L += [f'v_exp_f32 v{X+i}, v{X+i}' for i in range(10)]
        L += [f'v_add_f32 v{m}, v{X}, v{X+1}'] + [f'v_add_f32 v{m}, v{m}, v{X+i}' for i in range(2, 10)]
        L += xs('v_add_f32')
        L += ['|', f'v_rcp_f32 v{m}, v{m}']
        L += [f'v_mul_f32 v{X+i}, v{X+i}, v{m}' for i in range(10)]
        L += [f'v_cvt_pk_bf16_f32 v{28+d}, v{X+4*(d&1)+2*(d>>1)}, v{X+4*(d&1)+2*(d>>1)+1}' for d in range(4)] + [f'v_cvt_pk_bf16_f32 v32, v{X+8}, v{X+9}', '|']
        L += [f's_mov_b64 exec, s[66:67]\nbuffer_store_dwordx4 v[28:31], {vL16}, {sWS}, {sPTo} offen sc1\ns_mov_b64 exec, -1', '|',
              f's_mov_b64 exec, s[66:67]\nbuffer_store_dword v32, v11, {sWS}, {sPTo} offen sc1\ns_mov_b64 exec, -1', '|']
        fp = f's_mov_b64 exec, s[92:93]\nbuffer_store_dword {vZ}, v10, {sWS}, s32 offen sc1\ns_mov_b64 exec, -1'
        pos = len(L) - (e.o.get('fplead', 30) if inter else e.o.get('fplast', 60))
        L[pos:pos] = ['|', fp]
        return L
    e(f's_mov_b64 s[92:93], 0\ns_mov_b32 s32, 0\ns_mul_i32 s68, {sLead}, 0x10001\ns_mov_b32 s69, s68\ns_mov_b32 s42, s24\ns_mov_b32 s43, s24')
    e('L_QK_loop:')
    e.ts(0)
    AC, XB, ST = 40, 88, 112
    Q = lambda tt: 16+6*tt
    Kt = lambda tt: 28+6*tt
    tiles = [(AC+8*(3*mi+t), (lambda k, m=m, t=t: (m, t, k))) for mi, m in enumerate('qk') for t in range(3)]
    T1 = Tok1(e, U, tiles, XB, ST)
    for x in T1.prologue(): e(x)
    e(f's_mov_b32 {sPTo}, {sPT}')
    def hk0():
        L = xdma_list(14, 20, sX); L[-1] += ' ;@xlate'; return L + [f's_add_u32 {sX}, {sX}, 131072']
    def hk(k0, k1):
        def f(): e('s_barrier'); return xdma_list(k0, k1, sX)
        return f
    def hk9(): e('@wv xlate\ns_barrier'); return []
    t = G(**e.o); t.crit_off(sCR); t.bulk_off(sB0); t(f's_add_u32 {sPT}, {sB0}, {sPTc}'); mem_offs(t, sM, sCR)
    t(f's_add_u32 {sFR}, {sCR}, s3\ns_mov_b32 s34, 0\ns_mov_b64 s[66:67], {mTA}')
    t(f's_mov_b64 s[30:31], s[68:69]\ns_lshl_b32 s40, {sXQ}, 8\ns_add_u32 s40, s40, {sCR}\ns_add_u32 s38, s40, {B_FL*BS + F_Q}\ns_add_u32 s32, s40, {B_FL*BS + F_P}')
    t(f's_mov_b64 s[92:93], s[68:69]')
    cl = salu_groups(t)
    MF, AD, RS, TQ = 40, 80, 104, 128
    def cv(i, tt):
        mi, t = divmod(i, 3); r = AC+8*i+4*tt; d = (Kt if mi else Q)(tt)+2*t
        return f'v_cvt_pk_bf16_f32 v{d}, v{r}, v{r+1}\nv_cvt_pk_bf16_f32 v{d+1}, v{r+2}, v{r+3}'
    order = [('q', 2, k) for k in range(10)] + [('k', 1, k) for k in K1ORD]
    ring = Ring(e, U, order, RS, 3)
    n0 = len(e.L); ring.prime(); pr = [x.strip() for x in e.L[n0:]]; del e.L[n0:]
    late = {(18, 1): pr[0], (18, 2): pr[1], (19, 1): pr[2], (19, 2): pr[3]}
    for i in range(5):
        for tt in range(2): late[(19, 2*i+3+tt)] = cv(i, tt)
    pp = e.poll_prime(vZ, sFR, 128); assert len(pp) == 3
    late[(18, 7)] = pp[0]; late[(18, 12)] = pp[1]
    T1.run({e.o.get('xl', 6): hk0, 11: hk9, 13: hk(0, 14)}, ta_pre() + ta_ops() + cl, late)
    e.ts(7)
    e(pp[2]); e(pr[4]); e(pr[5]); e(cv(5, 0)); e(cv(5, 1))
    e.ts(5)
    e.poll(vZ, sFR, 128, primed=True)
    e('s_barrier')
    q0, k0, q1, q2, k1, k2 = (AD+4*i for i in range(6))
    p1 = [(q2, lambda k: ('q', 2, k)), (q0, lambda k: ('q', 0, k)), (k0, lambda k: ('k', 0, k)), (q1, lambda k: ('q', 1, k))]
    nanchk, slow = crit_pass1(e, ring, MF, sM, p1, 'v134', range(AD, AD+24))
    e.ts(9)
    def flagQ(cond, after='-1'):
        if cond == 0: return f's_mov_b64 exec, s[30:31]\nbuffer_store_dword {vZ}, v10, {sWS}, s38 offen sc1\ns_mov_b64 exec, {after}'
        return f's_andn2_b64 exec, s[68:69], s[30:31]\nbuffer_store_dword {vZ}, v10, {sWS}, s38 offen sc1\ns_mov_b64 exec, {after}'
    lq = e.o['leadQ']
    cvt = lambda d, r: f'v_cvt_pk_bf16_f32 v{d}, v{r}, v{r+1}'
    main = []
    for (D, m) in ((k1, ('k', 1)), (k2, ('k', 2))):
        for p, k in enumerate(K1ORD):
            def fn(D=D, m=m, k=k, p=p):
                ring.op(D, MF+4*k, m + (k,))
                if m == ('k', 1) and p in (0, 3): e(f's_waitcnt lgkmcnt({4 if p == 0 else 0})')
            main.append((f'{m[0]}{m[1]}_{p}', fn))
    len_main = [0]
    nc = nanchk(q1)
    TK = q1; S0, S1, SM = q0, k0, q2
    Selq, Selk = v(SEL, 2), v(SEL+2, 2)
    T_a, T_b, T_c = 104, 108, 112
    slot = lambda j: RS + 8*((10+j) % 3)
    Ta, Tb, Tc = slot(0), slot(0)+4, slot(1)
    ops = [
        ('zq2a', cvt(q2, q2), 'v', [('q2', 8)]), ('zq2b', cvt(q2+1, q2+2), 'v', [('zq2a', 0)]),
        ('zq0a', cvt(q0, q0), 'v', [('q0', 8)]), ('zq0b', cvt(q0+1, q0+2), 'v', [('zq0a', 0)]),
        ('zk0a', cvt(q0+2, k0), 'v', [('k0', 8), ('zq0b', 0)]), ('zk0b', cvt(q0+3, k0+2), 'v', [('zk0a', 0)]),
        ('c1', nc[0], 'v', [('q1', 8)]), ('c2', nc[1], 'v', [('c1', 0)]), ('c3', nc[2], 's', [('c2', 4)]),
        ('zq1a', cvt(q1, q1), 'v', [('c2', 0)]), ('zq1b', cvt(q1+1, q1+2), 'v', [('zq1a', 0)]),
        ('Tq2', mf16(Ta, v(q2, 2), Selq), 'm', [('zq2b', 2), ('k1_1', 0)]),
        ('T0', mf32(Tb, v(q0, 4), v(SEL, 4)), 'm', [('zk0b', 2), ('k1_1', 0)]),
        ('Tq1', mf16(Tc, v(q1, 2), Selq), 'm', [('zq1b', 2), ('k1_4', 0)]),
        ('p2a', cvt(TQ+4, Ta), 'v', [('Tq2', 8)]), ('p2b', cvt(TQ+5, Ta+2), 'v', [('p2a', 0)]),
        ('p0a', cvt(TQ, Tb), 'v', [('T0', 8)]), ('p0b', cvt(TQ+1, Tb+2), 'v', [('p0a', 0)]),
        ('p1a', cvt(TQ+2, Tc), 'v', [('Tq1', 8)]), ('p1b', cvt(TQ+3, Tc+2), 'v', [('p1a', 0)]),
        ('zk1a', cvt(k1, k1), 'v', [('k1_9', 8)]), ('zk1b', cvt(k1+1, k1+2), 'v', [('zk1a', 0)]),
        ('S0a', mf16(S0, v(Kt(0)+4, 2), v(TQ+4, 2)), 'm', [('p2b', 2), ('T0', 0)]),
        ('S1a', mf16(S1, v(Kt(1)+4, 2), v(TQ+4, 2)), 'm', [('p2b', 2), ('T0', 0)]),
        ('S0b', mf32(S0, v(Kt(0), 4), v(TQ, 4), S0), 'm', [('p0b', 2), ('p1b', 2), ('S0a', 6)]),
        ('S1b', mf32(S1, v(Kt(1), 4), v(TQ, 4), S1), 'm', [('p0b', 2), ('p1b', 2), ('S1a', 6)]),
        ('w0', f'ds_write_b128 v5, {v(S0,4)}', 'v', [('S0b', 8)]),
        ('w1', f'ds_write_b128 v5, {v(S1,4)} offset:32', 'v', [('S1b', 8), ('w0', 2)]),
        ('zk2a', cvt(k2, k2), 'v', [('k2_9', 8)]), ('zk2b', cvt(k2+1, k2+2), 'v', [('zk2a', 0)]),
        ('Tk2', mf16(Tb, v(k2, 2), Selk), 'm', [('zk2b', 2)]),
        ('Tk1', mf16(Ta, v(k1, 2), Selk), 'm', [('zk1b', 2), ('k2_9', 0)]),
        ('SMa', mf16(SM, v(TQ, 2), v(TQ, 2)), 'm', [('p0b', 2), ('k2_9', 0)]),
        ('pk1a', cvt(TK, Ta), 'v', [('Tk1', 8)]), ('pk1b', cvt(TK+1, Ta+2), 'v', [('pk1a', 0)]),
        ('pk2a', cvt(TK+2, Tb), 'v', [('Tk2', 8)]), ('pk2b', cvt(TK+3, Tb+2), 'v', [('pk2a', 0)]),
        ('SMb', mf32(SM, v(TK, 4), v(TQ+2, 4), SM), 'm', [('pk2b', 2), ('pk1b', 2), ('SMa', 6)]),
    ]
    PB = 44
    ops.append(('pre', 'v_mov_b32 v60, 0', 'v', [('SMb', 3)]))
    if lq < 20: ops.insert(0, ('fl', flagQ(0), 'v', [(main[lq][0], 0), ('c3', 0)]))
    if lq == 20: ops.append(('fl', flagQ(0), 'v', [('Tk2', 0)]))
    if lq == 21: ops.append(('fl', flagQ(0), 'v', [('SMb', 0)]))
    ops.append(('wm', f's_cmp_ge_u32 {sW}, 2\ns_mov_b64 exec, {mMM}\nds_write_b128 v5, {v(SM,4)} offset:64', 'v', [('SMb', 6)]))
    schedule(e, main, ops, {'q2': -8, 'q0': -6, 'k0': -4, 'q1': -2})
    e.ts(10)
    tt3 = ((0, 0), (0, 1), (1, 1))
    a16 = [mf16(SA[i], v(Kt(tk)+4, 2), v(Q(tq)+4, 2)) for i, (tk, tq) in enumerate(tt3)]
    a32 = [mf32(SA[i], v(Kt(tk), 4), v(Q(tq), 4), SA[i]) for i, (tk, tq) in enumerate(tt3)]
    n1 = e.o.get('nh1', 0)
    h1 = (a16 + a32)[:3+n1]
    h2 = (a16 + a32)[3+n1:] + [mf16(SA[3+tq], v(TQ, 2), v(Q(tq), 2)) for tq in range(2)] + [mf32(SA[3+tq], v(TK, 4), v(Q(tq)+2, 4), SA[3+tq]) for tq in range(2)]
    e('s_mov_b64 exec, -1\ns_cbranch_scc1 L_QK_w23')
    for x in h1: e(x)
    e('s_mov_b64 exec, s[42:43]\ns_waitcnt lgkmcnt(0)\nv_mov_b32 v61, 0\ns_barrier')
    e.ts(3)
    Tt, m, t = PB-4, 60, 62
    for w in range(4): e(f'ds_read_b128 {v(PB+4*w,4)}, v0 offset:{L_SM + w*1536}')
    nh = 0
    e('s_waitcnt lgkmcnt(2)')
    for i in (0, 2): e(f'v_pk_add_f32 {v(PB+i,2)}, {v(PB+i,2)}, {v(PB+4+i,2)}')
    for i in (0, 2): e(f'v_pk_mul_f32 {v(PB+i,2)}, {v(PB+i,2)}, {sC2}')
    e('s_waitcnt lgkmcnt(0)')
    for i in (0, 2): e(f'v_pk_add_f32 {v(PB+8+i,2)}, {v(PB+8+i,2)}, {v(PB+12+i,2)}')
    for i in (0, 2): e(f'v_pk_fma_f32 {v(Tt+i,2)}, {v(PB+8+i,2)}, {sC2}, {v(PB+i,2)}')
    EX = PB+4; u = PB+8
    for i in range(4): e(f'v_exp_f32 v{EX+i}, v{Tt+i}')
    dp = dppred('v_add_f32', m)
    e(f'v_max3_f32 v{u}, abs(v{Tt}), abs(v{Tt+1}), abs(v{Tt+2})\nv_pk_add_f32 {v(t,2)}, {v(EX,2)}, {v(EX+2,2)}\nv_add_f32 v{m}, v{t}, v{t+1}')
    e(f's_mov_b64 exec, -1\nv_max_f32 v{u}, abs(v{Tt+3}), v{u}\n{dp[0]}')
    e(f'v_cmp_lt_f32 vcc, {f2u(e.o.get("thr", 64.0))}, v{u}\n{dp[1]}\n{dp[2]}\ns_and_b64 vcc, vcc, {mV}\ns_cbranch_scc1 L_QK_max\n{dp[3]}\nL_QK_maxd:')
    n0 = len(e.L); e(f'L_QK_max:\nv_mov_b32 v{u}, {f2u(-1e30)}')
    for i in range(4): e(f'v_cndmask_b32 v{Tt+i}, v{u}, v{Tt+i}, {mV}')
    e(f'v_max3_f32 v{m}, v{Tt}, v{Tt+1}, v{Tt+2}\nv_max_f32 v{m}, v{m}, v{Tt+3}')
    for x in dppred('v_max_f32', m): e(x)
    for i in range(4): e(f'v_sub_f32 v{Tt+i}, v{Tt+i}, v{m}')
    for i in range(4): e(f'v_exp_f32 v{EX+i}, v{Tt+i}')
    e(f'v_pk_add_f32 {v(t,2)}, {v(EX,2)}, {v(EX+2,2)}\nv_add_f32 v{m}, v{t}, v{t+1}\nv_cndmask_b32 v{m}, 0, v{m}, {mV}')
    for x in dp: e(x)
    e('s_branch L_QK_maxd'); maxcode = e.L[n0:]; del e.L[n0:]
    e(f'v_rcp_f32 v{m}, v{m}\ns_mov_b64 exec, s[42:43]')
    for i in (0, 2): e(f'v_pk_mul_f32 {v(EX+i,2)}, {v(EX+i,2)}, {v(m,2)} op_sel_hi:[1,0]')
    e(f'{cvt(PB, EX)}\n{cvt(PB+1, EX+2)}')
    if e.o.get('ackts'): e.ts(9)
    e(f'buffer_store_dwordx2 {v(PB,2)}, v9, {sWS}, {sCR} offen sc1\ns_mov_b64 exec, -1')
    if e.o.get('ackts'): e('s_waitcnt vmcnt(0)')
    e.ts(4)
    for x in h2: e(x)
    e('L_QK_sk:')
    hh = h1 + h2; npb = e.o.get('w23pre', 2)
    n0 = len(e.L); e('L_QK_w23:')
    for x in hh[:npb]: e(x)
    e('s_waitcnt lgkmcnt(0)\ns_barrier')
    for x in hh[npb:]: e(x + (f'\ns_nop {e.o["w23nop"]}' if e.o.get('w23nop') else ''))
    e('s_branch L_QK_sk'); maxcode += e.L[n0:]; del e.L[n0:]
    if lq == 24: e(flagQ(0))
    if e.o.get('damp', 0): e(flagQ(1))
    e.ts(6)
    e.tsflush(11, 72)
    e(f's_barrier\ns_add_u32 {sS}, {sS}, 2\ns_cmp_lt_u32 {sS}, {e.o["nseg"]}\ns_cbranch_scc1 L_QK_loop')
    e(f's_mov_b32 {sPTo}, {sPT}')
    for x in ta_pre() + ta_ops(False):
        if x not in '|-': e(x)
    e('s_branch L_end')
    slow()
    e.L += maxcode

def role_r(e):
    sCR, sCN, sB0, sTB = 's35', 's36', 's37', 's38'
    sP = ['s46', 's47', 's48', 's49', 's50']; sV = ['s51', 's52']; sFQ, sLead, sTC, sPG, sXO = 's53', 's54', 's55', 's56', 's57'
    sN = ['s58', 's59', 's60', 's61']
    e(f'L_R:\ns_cmp_lg_u32 {sW}, 0\ns_cbranch_scc1 L_PF')
    e.srd(8, 0, 2621440); e.srd(12, 10, 2621440); e.srd(64, 1, 10240)
    e(f's_mul_i32 {sU}, {sXQ}, 10\ns_add_u32 {sU}, {sU}, {sJ}\ns_sub_u32 {sU}, {sU}, 16\ns_cmp_eq_u32 {sJ}, 16\ns_cselect_b32 {sLead}, 0x10001, 0\ns_lshl_b32 s32, {sXQ}, 8\ns_add_u32 s32, s32, {B_FL*BS}')
    e(f's_cmp_ge_u32 {sU}, 20\ns_cselect_b32 {sPG}, 1, 0\ns_mul_i32 s40, {sPG}, 20\ns_sub_u32 s40, {sU}, s40\ns_mul_i32 {sTC}, s40, {5*BS}\ns_lshl_b32 s40, {sPG}, 21\ns_add_u32 {sTC}, {sTC}, s40\ns_lshl_b32 {sPG}, {sPG}, 13')
    e(f'''v_lshlrev_b32 {vL16}, 4, v1
    v_and_b32 v20, 15, v1
    v_lshrrev_b32 v21, 4, v1
    v_and_b32 v4, 1, v1
    v_mul_u32_u24 v4, 0xaaaa, v4
    v_add_u32 v4, 0x4444, v4
    v_and_b32 v10, 7, v1
    v_lshlrev_b32 v10, 4, v10
    v_lshl_add_u32 v10, v21, 7, v10
    v_bfe_u32 v11, v1, 3, 1
    v_lshl_add_u32 v5, v11, 3, v10
    v_and_b32 v11, 1, v20
    v_lshl_add_u32 v10, v21, 1, v11
    v_mov_b32 v7, 0x05040100
    v_mov_b32 v22, 0x03020706
    v_cmp_eq_u32 vcc, 1, v11
    v_cndmask_b32 v7, v7, v22, vcc
    v_mul_u32_u24 v23, 1280, v10
    v_and_b32 v11, 14, v20
    v_lshl_add_u32 v23, v11, 1, v23
    s_lshl_b32 s40, {sU}, 5
    v_add_u32 v23, s40, v23
    v_bfe_u32 v11, v20, 1, 1
    v_lshl_add_u32 v10, v10, 1, v11
    v_lshlrev_b32 v10, 4, v10
    v_lshrrev_b32 v11, 2, v20
    v_lshl_add_u32 v10, v11, 2, v10
    s_lshr_b32 s42, {sU}, 3
    s_lshl_b32 s42, s42, 14
    s_and_b32 s41, {sU}, 7
    s_lshl_b32 s41, s41, 8
    s_add_u32 s41, s41, s42
    v_add_u32 v6, s41, v10
    v_mul_u32_u24 v8, 1280, v20
    v_lshl_add_u32 v8, v21, 3, v8
    v_add_u32 v8, s40, v8
    v_and_b32 v9, 31, v1
    v_lshlrev_b32 v9, 7, v9
    v_and_b32 v0, 7, v1
    v_lshlrev_b32 v0, 7, v0
    v_lshlrev_b32 v3, 8, v1
    v_mov_b32 v12, 0
    v_mov_b32 v14, -1
    v_lshlrev_b32 v13, 2, v21
    v_sub_u32 v13, v20, v13
    v_mov_b32 v24, 0x3f80
    v_mov_b32 v25, 0x3f800000
    s_waitcnt lgkmcnt(0)
    buffer_load_dword v15, v23, s[64:67], 0 offen
    v_cmp_eq_u32 vcc, 0, v13
    v_cndmask_b32 v16, 0, v24, vcc
    v_cmp_eq_u32 vcc, 1, v13
    v_cndmask_b32 v16, v16, v25, vcc
    v_cmp_eq_u32 vcc, 2, v13
    v_cndmask_b32 v18, 0, v24, vcc
    v_cmp_eq_u32 vcc, 3, v13
    v_cndmask_b32 v18, v18, v25, vcc
    v_mov_b32 v17, 0
    v_mov_b32 v19, 0
    v_mov_b32 v20, 0
    v_mov_b32 v21, v16
    v_mov_b32 v22, 0
    v_mov_b32 v23, v18''')
    def reps(base): pass
    def pub(reg): e(f'buffer_store_dword {reg}, v6, {sWS}, {sCN} offen sc1')
    for g in range(4): e(f's_add_u32 {sN[g]}, {sXQ}, {g}\ns_and_b32 {sN[g]}, {sN[g]}, 3')
    l = e.lab('nl'); l2 = e.lab('nc'); l3 = e.lab('ncl')
    for r in range(24, 28): e(f'v_mov_b32 v{r}, -1')
    e(f's_mul_i32 s42, {sSIDE}, 40\ns_add_u32 s42, s42, {sU}\ns_cmp_ge_u32 s42, 64\ns_cbranch_scc1 {l3}')
    e(f's_lshr_b32 s40, s42, 1\ns_and_b32 s41, s42, 1\ns_lshl_b32 s41, s41, 13\ns_lshl_b32 s43, s40, 20\ns_add_u32 s43, s43, s41\ns_add_u32 s43, s43, {B_FL*BS}')
    for o in range(6):
        if o == 3: e(f's_add_u32 s43, s43, {4096 if e.o.get("nofine") else BS}')
        e(f'buffer_store_dwordx4 v[24:27], {vL16}, {sWS}, s43 offen offset:{(o%3)*1024} sc1')
    e(f's_lshl_b32 s43, s40, 22\ns_add_u32 s43, s43, s41\ns_add_u32 s43, s43, {BULK + B_VF*BS}')
    for o in range(4): e(f'buffer_store_dwordx4 v[24:27], {vL16}, {sWS}, s43 offen offset:{o*1024} sc1')
    e(f's_add_u32 s43, s43, 4096\nbuffer_store_dwordx4 v[24:27], {vL16}, {sWS}, s43 offen sc1')
    e(f's_cmp_ge_u32 s42, 61\ns_cbranch_scc1 {l3}\ns_sub_u32 s43, s42, 13\ns_cmp_lt_u32 s43, 8\ns_cbranch_scc1 {l3}\ns_lshl_b32 s43, s42, 14')
    for o in range(32):
        e(f'buffer_store_dwordx4 v[24:27], {vL16}, {sWS}, s43 offen offset:{(o % 4)*1024} sc1')
        if o % 4 == 3: e(f's_add_u32 s43, s43, {4096 if o != 15 else (1 << 20) - 12288}')
    e(f'{l3}:\ns_lshl_b32 s43, {sSIDE}, 22\ns_lshl_b32 s41, {sU}, 12\ns_add_u32 s43, s43, s41\ns_add_u32 s43, s43, {BULK + B_PT*BS}')
    for o in range(4): e(f'buffer_store_dwordx4 v[24:27], {vL16}, {sWS}, s43 offen offset:{o*1024} sc1')
    e(f'\ns_mov_b32 s45, 1\ns_cmp_lg_u32 {sJ}, 25\ns_cbranch_scc1 {l}')
    e(f's_and_b32 s40, s2, 7\ns_lshl_b32 s40, s40, 10\ns_add_u32 s40, s40, {B_CAL*BS}')
    for q in range(4): e(f's_add_u32 s41, s40, {8192*q}\nbuffer_store_dwordx4 v[24:27], {vL16}, {sWS}, s41 offen sc1')
    def race(lines):
        e('s_mov_b32 s46, -1\ns_mov_b32 s47, -1')
        for k in lines:
            for b in range(2):
                e(f's_memtime s[48:49]\ns_waitcnt lgkmcnt(0)\nbuffer_load_dword v31, v12, {sWS}, s{40+b} offen offset:{k*128} sc1\ns_waitcnt vmcnt(0)\ns_memtime s[50:51]\ns_waitcnt lgkmcnt(0)')
                e(f's_sub_u32 s50, s50, s48\ns_min_u32 s{46+b}, s{46+b}, s50')
        e('s_cmp_lt_u32 s47, s46')
    e('s_add_u32 s41, s40, 8192\ns_waitcnt vmcnt(0)')
    race(range(3))
    e(f's_cselect_b32 s45, 1, 0\ns_cselect_b32 s40, s41, s40\ns_add_u32 s41, s40, {BS}\ns_xor_b32 s45, s45, {sSIDE}\ns_lshl_b32 s45, s45, 16\ns_or_b32 s45, s45, 1')
    race(range(3, 8))
    e(f's_cselect_b32 s46, 1, 0\ns_xor_b32 s46, s46, {sXQ}\ns_and_b32 s46, s46, 1\ns_lshl_b32 s46, s46, 24\ns_or_b32 s45, s45, s46')
    e(f'{l}:\ns_waitcnt vmcnt(0)')
    e.ts(2)
    e.arrive(extra='s45', vt=30)
    e.wait_start(vt=30, vF='v3'); e.startflush(30)
    e(f'v_add_u32 v5, 4096, {vL16}\nv_add_u32 v9, {5*BS}, {vL16}\nv_add_u32 v10, {5*BS + 4096}, {vL16}')
    def flagR(msk):
        e(f's_add_u32 s40, {sCN}, s32\ns_mov_b32 exec_lo, {msk}\ns_mov_b32 exec_hi, {msk}\nbuffer_store_dword v12, v3, {sWS}, s40 offen sc1\ns_mov_b64 exec, -1')
    e(f's_cmp_eq_u32 {sSIDE}, 0\ns_cbranch_scc1 {l2}\ns_mov_b32 {sS}, 0')
    e('v_min_u32 v15, -2, v15')
    e.crit_off(sCN, 0); reps(sCN); pub('v15')
    e('s_waitcnt vmcnt(0)'); flagR(sLead)
    e(f'{l2}:\ns_mov_b32 {sS}, {sSIDE}')
    e('L_R_loop:')
    e.ts(0)
    e.bulk_off(sB0)
    e(f's_xor_b32 {sTB}, {sB0}, {sPG}\ns_add_u32 {sTB}, {sTB}, {sTC}\ns_barrier')
    e.ts(7)
    def ldvot(k0, k1):
        for k in range(k0, k1):
            if k % 8 == 0 and k < 32: e(f's_lshl_b32 s40, {sN[k//8]}, 14\ns_add_u32 s40, s40, {sTB}')
            elif k == 32: e(f's_add_u32 s40, {sTB}, {4*BS}')
            elif k % 4 == 0: e('s_add_u32 s40, s40, 4096')
            e(f'buffer_load_dwordx4 {a(4*k,4)}, {vL16}, {sWS}, s40 offen offset:{(k%4)*1024} sc1')
    ldvot(0, 32)
    e.crit_off(sCR); e.crit_off(sCN, 1)
    sPm = ['s94', 's95', 's96', 's97']; sVm = ['s98', 's99', 's100', 's101']
    e(f's_lshl_b32 s41, {sU}, 14\ns_add_u32 s41, s41, {sCR}\ns_add_u32 s41, s41, {B_VOM*BS}')
    for g in range(4):
        e(f's_lshl_b32 s40, {sN[g]}, 14\ns_add_u32 s40, s40, {sCR}\ns_add_u32 {sP[g]}, s40, {(B_P+1)*BS}')
        e(f's_lshl_b32 s40, {sN[g]}, 10\ns_add_u32 s40, s40, {sCR}\ns_add_u32 {sPm[g]}, s40, {B_P*BS}')
        e(f's_lshl_b32 s40, {sN[g]}, 11\ns_add_u32 {sVm[g]}, s40, s41')
    e(f's_add_u32 {sFQ}, {sCR}, s3\ns_add_u32 {sFQ}, {sFQ}, {F_Q}\ns_mul_i32 {sXO}, {sS}, 40960')
    AC, AM, AT, BM = 24, 40, 56, 120
    e('s_mov_b32 s34, 0\ns_mov_b32 s29, 0\ns_mov_b32 s30, 0')
    e.ts(5)
    e('s_barrier')
    e.poll('v12', sFQ, 252)
    e('s_barrier')
    e.ts(1)
    rt = e.lab('rt'); bad = e.lab('bad')
    e(f'{rt}:')
    nv = e.o.get('vfirst', 0)
    pat = e.o.get('rseq')
    if pat:
        cnt = {'v': 0, 't': 0, 'm': 0}; seq = []
        for ch in pat: seq.append((ch, cnt[ch])); cnt[ch] += 1
        assert cnt == {'v': 8, 't': 16, 'm': 4}
    else:
        seq = [('v', k) for k in range(nv)] + [('t', k) for k in range(16)]
        for g in range(4): seq += [('m', g)] + [('v', k) for k in (2*g, 2*g+1) if k >= nv]
    for kind, k in seq:
        if kind == 't': e(f'buffer_load_dwordx4 {v(AT+4*k,4)}, {vL16}, {sWS}, {sP[k//4]} offen offset:{(k%4)*1024} sc1')
        elif kind == 'm': e(f'buffer_load_dwordx4 {v(AM+4*k,4)}, {vL16}, {sWS}, {sPm[k]} offen sc1')
        else: e(f'buffer_load_dwordx4 {v(BM+4*k,4)}, {vL16}, {sWS}, {sVm[k//2]} offen offset:{(k%2)*1024} sc1')
    for r in range(AC, AC+4): e(f'v_mov_b32 v{r}, 0')
    e('v_mov_b32 v13, s30')
    rf = e.o['rflag']; assert 2 <= rf < 28
    chk = e.lab('chk'); bk = e.lab('bk')
    lastm = {g: max(seq.index(x) for x in (('m', g), ('v', 2*g), ('v', 2*g+1))) for g in range(4)}
    e('s_waitcnt vmcnt(27)'); e.ts(2)
    for i, (kind, k) in enumerate(seq):
        if kind == 't': e(smf(AC, AT+4*k, a(8*k, 8)))
        for g in range(4):
            if lastm[g] == i: e(smf(AC, AM+4*g, v(BM+8*g, 8)))
        if i == rf:
            l = e.lab('nf'); e(f's_cbranch_vccnz {l}\ns_barrier\ns_mov_b32 s30, -1\n{l}:')
        if i < 27: e(f's_waitcnt vmcnt({26-i})')
        if i <= rf-2: r = {'t': AT, 'v': BM, 'm': AM}[kind]+4*k; e(f'v_max3_u32 v13, v13, v{r}, v{r+3}')
        if i == rf-1: e('v_cmp_eq_u32 vcc, -1, v13')
    e.ts(3)
    e(f'v_add_f32 v{AC}, v{AC}, v{AC+1}\nv_add_f32 v{AC+1}, v{AC+2}, v{AC+3}')
    e(f'v_cvt_pk_bf16_f32 v{AC+2}, v{AC}, v{AC+1}\nv_cmp_u_f32 vcc, v{AC}, v{AC+1}')
    e(f'v_mov_b32_dpp v{AC+1}, v{AC+2} quad_perm:[1,0,3,2] row_mask:0xf bank_mask:0xf\nv_perm_b32 v{AC}, v{AC+1}, v{AC+2}, v7\ns_cbranch_vccnz {chk}\n{bk}:')
    if e.o.get('ackts'): e.ts(2)
    pub(f'v{AC}')
    if e.o.get('ackts'): e('s_waitcnt vmcnt(0)')
    e.ts(4)
    okO = e.lab('okO'); slowO = e.lab('slowO')
    AO = 28
    ringr = list(range(152, 252, 4)) + list(range(40, 120, 4)); NR = e.o.get('nr', 32); ringr = ringr[:NR]
    def ffn():
        for i in range(4): e(f'v_lshlrev_b32 v{AO+2*i}, 16, v{36+i}\nv_and_b32 v{AO+2*i+1}, 0xffff0000, v{36+i}')
        for k in range(8):
            for tt in range(2): e(mf32(AO+4*tt, a(128+4*k, 4), 'v[20:23]' if tt else 'v[16:19]', AO+4*tt))
    def opass(explicit):
        def ldp(n):
            j, tt = n//2, n % 2
            if j < 32: so, va, im = sP[j//8], (vL16, 'v5', 'v9', 'v10')[2*tt + (j//4) % 2], (j % 4)*1024
            else: so, va, im = sPm[(j-32)//2], (vL16, 'v9')[tt], (j % 2)*1024
            e(f'buffer_load_dwordx4 {v(ringr[n % NR],4)}, {va}, {sWS}, {so} offen offset:{im} sc1')
        if not explicit:
            e('s_barrier')
            ldvot(32, 40)
            e(f's_add_u32 s43, {sXO}, 20480\nbuffer_load_dwordx2 v[36:37], v8, {sA}, {sXO} offen\nbuffer_load_dwordx2 v[38:39], v8, {sA}, s43 offen')
            for g in range(4):
                e(f's_lshl_b32 s40, {sN[g]}, 14\ns_add_u32 s40, s40, {sB0}\ns_add_u32 {sP[g]}, s40, {B_PT*BS}')
                e(f's_lshl_b32 s40, {sN[g]}, 11\ns_add_u32 s40, s40, {sB0}\ns_add_u32 {sPm[g]}, s40, {(B_PT+4)*BS}')
            e('s_waitcnt vmcnt(0)'); ffn()
            e(f's_add_u32 s43, {sFQ}, {F_P-F_Q}'); e.poll('v12', 's43', 252)
            e('s_barrier')
            e.ts(8)
        if explicit: ffn()
        for n in range(NR): ldp(n)
        if explicit: e('v_mov_b32 v13, 0')
        iss = NR
        for n in range(80):
            j, tt = n//2, n % 2; r = ringr[n % NR]
            if n == 0: e(f's_waitcnt vmcnt({iss-1})')
            e(mf32(AO+4*tt, a(4*j, 4) if j < 32 else v(BM+4*(j-32), 4), v(r, 4), AO+4*tt))
            if n < 79: e(f's_waitcnt vmcnt({iss-2-n})')
            if explicit: e(f'v_max3_u32 v13, v13, v{r}, v{r+1}\nv_max3_u32 v13, v13, v{r+2}, v{r+3}')
            if iss < 80: ldp(iss); iss += 1
            elif n == 80-NR and not explicit: e('s_barrier')
    opass(False)
    e(f'v_cmp_u_f32 vcc, v{AO}, v{AO+4}\ns_cbranch_vccnz {slowO}\n{okO}:')
    for i in range(4): e(f'v_cvt_pk_bf16_f32 v{42+i}, v{AO+2*i}, v{AO+2*i+1}')
    e(f's_add_u32 s43, {sXO}, 20480\nbuffer_store_dwordx2 v[42:43], v8, {sB}, {sXO} offen {e.o.get("outfl", "")}\nbuffer_store_dwordx2 v[44:45], v8, {sB}, s43 offen {e.o.get("outfl", "")}')
    e.ts(6)
    e.tsflush(9, 48)
    e(f's_add_u32 {sS}, {sS}, 2\ns_cmp_lt_u32 {sS}, {e.o["nseg"]}\ns_cbranch_scc1 L_R_loop\ns_branch L_end')
    e(f'{chk}:')
    if e.o['stamps']:
        e('v_mov_b32 v13, 0')
        for r in range(BM, BM+32, 2): e(f'v_max3_u32 v13, v13, v{r}, v{r+1}')
        e('v_cmp_eq_u32 vcc, -1, v13\ns_cmp_lg_u64 vcc, 0\ns_cselect_b32 s40, 0x1000000, 0x10000\ns_add_u32 s29, s29, s40') if False else e('v_cmp_eq_u32 vcc, -1, v13\ns_mov_b32 s41, 0x10000\ns_cmp_lg_u64 vcc, 0\ns_cselect_b32 s40, 0x1000000, s41\ns_add_u32 s29, s29, s40')
    e(f's_cmp_lt_u32 s34, 2\ns_cbranch_scc1 {bad}\nv_mov_b32 v13, 0')
    for r in range(AM, BM+32, 2): e(f'v_max3_u32 v13, v13, v{r}, v{r+1}')
    e(f'v_cmp_eq_u32 vcc, -1, v13\ns_cbranch_vccz {bk}')
    e(f'{bad}:\ns_add_u32 s34, s34, 1\ns_nop 7'); e.tmo(rt)
    e(f'{slowO}:\ns_nop 7')
    if e.o['stamps']: e('s_add_u32 s34, s34, 0x10000')
    opass(True)
    e(f's_nop 7\nv_cmp_eq_u32 vcc, -1, v13\ns_cbranch_vccz {okO}'); e.tmo(slowO)

def role_pf(e):
    e('L_PF:')
    if e.o.get('cpf', 0):
        e(f's_getpc_b64 s[8:9]\nL_pc:\ns_sub_u32 s8, s8, L_pc-{NAME}\ns_subb_u32 s9, s9, 0\ns_mov_b32 s10, L_end-{NAME}\ns_mov_b32 s11, 0x20000')
        e(f's_sub_u32 s40, {sJ}, 16\ns_mul_i32 s40, s40, 3\ns_add_u32 s40, s40, {sW}\ns_sub_u32 s40, s40, 1\ns_lshl_b32 s40, s40, 12\nv_lshlrev_b32 v2, 6, v1')
        e(f'buffer_load_dword v3, v2, s[8:11], s40 offen')
    e.wait_start(vt=30, vF='v3')
    e(f's_lshl_b32 s40, {sJ}, 2\ns_add_u32 s40, s40, {sW}\ns_cmp_eq_u32 s40, {16*4+2}\ns_cselect_b32 s30, 0x10001, 0\ns_mov_b32 s31, s30\ns_lshl_b32 s33, {sXQ}, 8\ns_add_u32 s33, s33, {B_FL*BS}')
    e(f'v_and_b32 v9, 31, v1\nv_lshlrev_b32 v9, 7, v9\nv_and_b32 v11, 7, v1\nv_lshlrev_b32 v11, 7, v11\nv_mov_b32 v12, 0\ns_mov_b32 {sS}, {sSIDE}\ns_add_u32 s32, s3, {F_Q}')
    e(f's_mul_i32 {sU}, {sXQ}, 10\ns_add_u32 {sU}, {sU}, {sJ}\ns_sub_u32 {sU}, {sU}, 16\nv_lshlrev_b32 v2, 4, v1')
    for r in range(4, 8): e(f'v_mov_b32 v{r}, -1')
    e(f's_add_u32 s38, {sU}, {B_VOM}\ns_lshl_b32 s38, s38, 14\ns_and_b32 s40, {sW}, 1\ns_lshl_b32 s40, s40, 12\ns_add_u32 s38, s38, s40')
    e(f's_lshr_b32 s39, {sU}, 2\ns_add_u32 s39, s39, {B_PT}\ns_lshl_b32 s39, s39, 14\ns_and_b32 s40, {sU}, 3\ns_lshl_b32 s40, s40, 11\ns_add_u32 s39, s39, s40')
    e(f's_lshr_b32 s40, {sU}, 3\ns_lshl_b32 s40, s40, 14\ns_and_b32 s41, {sU}, 7\ns_lshl_b32 s42, s41, 8\ns_add_u32 s42, s42, s40\ns_lshl_b32 s43, s41, 9\ns_add_u32 s43, s43, s40\ns_add_u32 s43, s43, {B_P*BS - 512}')
    e('v_and_b32 v8, 255, v2\nv_add_u32 v8, s42, v8\nv_add_u32 v10, s43, v2\nv_cmp_gt_u32 vcc, 32, v1\nv_cndmask_b32 v8, v10, v8, vcc')
    e('L_PF_loop:')
    l = e.lab('nv')
    e.bulk_off('s36'); e(f's_add_u32 s36, s36, {B_VF*BS}\ns_add_u32 s34, s36, 4096\nv_mov_b32 v25, 0')
    l3 = e.lab('n3'); e(f's_cmp_lg_u32 {sW}, 3\ns_cbranch_scc1 {l3}\nbuffer_load_dword v25, v11, {sWS}, s34 offen sc1\n{l3}:')
    e(f's_cmp_lg_u32 {sW}, 1\ns_cbranch_scc1 {l}')
    e.poll('v9', 's36', 24, D=1, sleep=e.o.get('vsleep', 4))
    e(f'{l}:')
    e.crit_off('s35'); e.crit_off('s37', 1)
    e('s_add_u32 s35, s35, s32\ns_add_u32 s37, s37, s33\ns_barrier\ns_barrier')
    e.poll('v12', 's35', 20)
    e(f's_barrier\ns_add_u32 s35, s35, {F_P-F_Q}\ns_mov_b64 exec, s[30:31]\ns_barrier')
    e(f'buffer_store_dword v12, v3, {sWS}, s37 offen sc1\ns_mov_b64 exec, -1')
    l4 = e.lab('n4'); e(f'v_cmp_eq_u32 vcc, -1, v25\ns_cbranch_vccz {l4}'); e.poll('v11', 's34', 25, D=1, sleep=2); e(f'{l4}:\ns_barrier')
    l = e.lab('c1'); l2 = e.lab('c2')
    e.crit_off('s36', 4)
    e(f's_cmp_eq_u32 {sW}, 1\ns_cbranch_scc1 {l}\ns_add_u32 s36, s36, s38')
    for o in range(4): e(f'buffer_store_dwordx4 v[4:7], v2, {sWS}, s36 offen offset:{o*1024} sc1')
    e(f's_branch {l2}\n{l}:\nbuffer_store_dwordx4 v[4:7], v8, {sWS}, s36 offen sc1')
    e.bulk_off('s36', 4); e('s_add_u32 s36, s36, s39')
    for o in range(2): e(f'buffer_store_dwordx4 v[4:7], v2, {sWS}, s36 offen offset:{o*1024} sc1')
    e(f'{l2}:\ns_waitcnt vmcnt(0)')
    e.poll('v12', 's35', 20)
    e(f's_barrier\ns_barrier\ns_add_u32 {sS}, {sS}, 2\ns_cmp_lt_u32 {sS}, {e.o["nseg"]}\ns_cbranch_scc1 L_PF_loop\ns_branch L_end')

HEAD = open('cdna_kernels/' + NAME[:-7] + '.s.ref').read().split('; Override launch')[0]
def gen(aslist=False, **o):
    e = G(**o)
    e.ts(0)
    if e.o.get('empty'): e('s_branch L_end')
    e(f'''s_cmp_ge_u32 s2, 256
    s_cbranch_scc1 L_end
    s_add_u32 s3, s2, {e.o.get('rot', 0)}
    s_and_b32 s3, s3, 7
    s_and_b32 s2, s2, 0xf8
    s_or_b32 {sS}, s2, s3
    s_getreg_b32 s3, hwreg(HW_REG_XCC_ID, 0, 3)
    s_or_b32 s2, s2, s3
    s_load_dwordx2 s[4:5], s[0:1], 96
    s_load_dwordx2 s[16:17], s[0:1], 88
    v_and_b32 v1, 63, v0
    v_lshrrev_b32 v2, 6, v0
    s_mov_b32 {sC0}, 0
    v_readfirstlane_b32 {sW}, v2
    s_lshr_b32 {sJ}, s2, 3
    s_mov_b32 {sTO}, 0
    s_mov_b32 s18, 256
    s_mov_b32 s19, 0x20000
    s_mov_b32 s6, {252<<20}
    s_mov_b32 s7, 0x20000
    s_waitcnt lgkmcnt(0)
    s_add_u32 s4, s4, 0x3fffff
    s_addc_u32 s5, s5, 0
    s_and_b32 s4, s4, 0xffc00000
    L_dispatch:
    s_and_b32 {sXQ}, s2, 3
    s_bfe_u32 {sSIDE}, s2, 0x10002
    s_cmp_lt_u32 {sJ}, 8
    s_cbranch_scc1 L_QK
    s_cmp_lt_u32 {sJ}, 16
    s_cbranch_scc1 L_VO
    s_cmp_lt_u32 {sJ}, 26
    s_cbranch_scc1 L_R
    s_cmp_lt_u32 {sJ}, 28
    s_cbranch_scc1 L_FFN''')
    role_ln(e); role_qk(e); role_vo(e); role_r(e); role_pf(e)
    e(f'L_restart:\ns_waitcnt vmcnt(0) lgkmcnt(0)\ns_barrier\ns_mov_b32 s2, {sS}\ns_mov_b32 {sC0}, 64\ns_branch L_dispatch')
    e(f'L_abort:\nv_mov_b32 v30, 8\nv_mov_b32 v31, 1\ns_mov_b64 exec, 1\nbuffer_atomic_add v31, v30, {sDBG}, 0 offen sc1\nL_end:\ns_endpgm')
    L = resolve(e.L)
    if e.o.get('xp'):
        out = []; zone = False; n = 0
        for ln in L:
            t = ln.strip()
            if t in ('L_QK_loop:', 'L_VF_loop:'): zone = True
            if t.startswith('poll_'): zone = False
            if zone and t.startswith('v_mfma'):
                n += 1
                if e.o['xp'] == 1 or (e.o['xp'] == 2 and n % 2): ln = '    s_nop 2'
            if zone and e.o['xp'] == 3 and t.startswith('ds_read_b128') and ', v2 ' in t: ln = '    ds_read_b32 ' + t.split()[1].split(':')[0].replace('[', '') + ', v2'
            out.append(ln)
        L = out
    body, nn = hazard.run(L)
    launch = f'; @launch kernel={NAME} grid=(256,1,1) block=(256,1,1) lds=163840' if aslist else '; @launch grid=(256,1,1) block=(256,1,1) lds=163840'
    return HEAD + launch + '\n.amdgcn_target "amdgcn-amd-amdhsa--gfx950"\n.text\n' + kernel_head(NAME) + '\n'.join(body) + '\n' + kernel_desc(NAME, 512, 102, 256)

if __name__ == '__main__':
    o = dict(kv.split('=') for kv in sys.argv[2:]); o = {k: (int(x) if x.lstrip('-').isdigit() else x) for k, x in o.items()}
    open(sys.argv[1], 'w').write(gen(**o))
```

```python
import sys
from asmlib import *
import hazard

NAME = 'parallel_sum__memory_aug_recurrent_mem_tr__dense_activation_silu__prompt_kernel'
BS = 16384
BULK = 36 << 20
XN = 172 << 20
DBGW = 180 << 20
B_MEM, B_P, B_FL, B_VOM, B_CAL = 0, 8, 18, 21, 16
F_R, F_Q, F_P = 0, 1024, 2048
B_PT, B_VF = 100, 110
L_X, L_MISC, L_W = 0, 40960, 57344
WPW = 26624
TMO = 1 << 17
NARR = 112
LOG2E = 1.4426950408889634
import struct
def f2u(x): return struct.unpack('<I', struct.pack('<f', x))[0]
CSC = f2u(LOG2E / 192 ** 0.5)

sWS, sA, sB, sDBG = 's[4:7]', 's[8:11]', 's[12:15]', 's[16:19]'
sXQ, sJ, sSIDE, sW, sU, sS, sTO, sC0 = 's20', 's21', 's22', 's23', 's25', 's26', 's27', 's28'

class G(A):
    def __init__(self, **o):
        super().__init__(); self.o = dict(leadQ=15, rflag=7, rseq='vvvvtttttttmvvtttmvvtttmtttm', fplead=34, stamps=0, nseg=64); self.o.update(o)
    def crit_off(self, dst, add=0, t0='s40', t1='s41'):
        e = self
        e(f's_add_u32 {t0}, {sS}, {add}\ns_lshr_b32 {t1}, {t0}, 2\ns_xor_b32 {t1}, {t1}, {t0}\ns_xor_b32 {t1}, {t1}, {sC0}\ns_and_b32 {t1}, {t1}, 1\ns_lshl_b32 {t1}, {t1}, 13')
        e(f's_lshr_b32 {t0}, {t0}, 1\ns_lshl_b32 {t0}, {t0}, 20\ns_or_b32 {dst}, {t0}, {t1}')
    def bulk_off(self, dst, add=0, t0='s40', t1='s41'):
        e = self
        e(f's_add_u32 {t0}, {sS}, {add}\ns_xor_b32 {t1}, {t0}, {sC0}\ns_and_b32 {t1}, {t1}, 1\ns_lshl_b32 {t1}, {t1}, 13')
        e(f's_lshr_b32 {t0}, {t0}, 1\ns_lshl_b32 {t0}, {t0}, 22\ns_add_u32 {t0}, {t0}, {BULK}\ns_or_b32 {dst}, {t0}, {t1}')
    def tmo(self, again):
        self(f's_add_u32 {sTO}, {sTO}, 1\ns_cmp_lt_u32 {sTO}, {TMO}\ns_cbranch_scc1 {again}\ns_branch L_abort')
    def srd(self, dst, slot, nbytes):
        self(f's_load_dwordx2 s[{dst}:{dst+1}], s[0:1], {slot*8}\ns_mov_b32 s{dst+2}, {nbytes}\ns_mov_b32 s{dst+3}, 0x20000')
    def rotword(self, dst):
        e = self
        e(f's_sub_u32 s40, s2, {sS}\ns_and_b32 {dst}, s40, 1\ns_bfe_u32 s41, s40, 0x10001\ns_lshl_b32 s41, s41, 9\ns_or_b32 {dst}, {dst}, s41')
        e(f's_bfe_u32 s41, s40, 0x10002\ns_lshl_b32 s41, s41, 18\ns_or_b32 {dst}, {dst}, s41')
    def arrive(self, extra=None, vt=2):
        e = self; l = e.lab('nla'); lp = e.lab('all'); dn = e.lab('alld')
        e.rotword('s42')
        e(f's_add_u32 s43, {"1" if extra is None else extra}, 128\nv_mov_b32 v{vt+2}, 0\nv_mov_b32 v{vt}, s43\nv_mov_b32 v{vt+1}, s42')
        e(f's_mov_b64 exec, 1\nbuffer_atomic_add_x2 {v(vt,2)}, v{vt+2}, {sDBG}, {sC0} offen sc0 sc1\ns_waitcnt vmcnt(0)')
        e(f'v_readfirstlane_b32 s40, v{vt}\ns_and_b32 s40, s40, 127\ns_cmp_lg_u32 s40, {NARR-1}\ns_cbranch_scc1 {l}')
        e(f'{lp}:\nbuffer_load_dwordx2 {v(vt,2)}, v{vt+2}, {sDBG}, {sC0} offen sc1\ns_waitcnt vmcnt(0)\nv_readfirstlane_b32 s40, v{vt}\nv_readfirstlane_b32 s41, v{vt+1}')
        e(f's_bfe_u32 s42, s40, 0x90007\ns_cmp_eq_u32 s42, 256\ns_cbranch_scc1 {dn}\ns_sleep 8'); e.tmo(lp)
        e(f'{dn}:\ns_and_b32 s41, s41, {255 | 255 << 9 | 255 << 18}\ns_cselect_b32 s41, 0x80000000, 0\ns_or_b32 s40, s40, s41\nv_mov_b32 v{vt}, s40')
        e(f'buffer_store_dword v{vt}, v{vt+2}, {sDBG}, {sC0} offen offset:128 sc1\n{l}:\ns_mov_b64 exec, -1')
    def start_prime(self, vt): self(f'v_mov_b32 v{vt}, 0\nbuffer_load_dword v{vt+1}, v{vt}, {sDBG}, {sC0} offen offset:128 sc1')
    def wait_start(self, vt=2, vF=None, primed=False):
        e = self; lp = e.lab('ws'); dn = e.lab('wsd'); ck = e.lab('wsc')
        if primed: e(f's_branch {ck}')
        e(f'{lp}:'); e.start_prime(vt); e.L[-1] += ' ;!'; e(f's_waitcnt vmcnt(0)\n{ck}:')
        e(f'v_readfirstlane_b32 s40, v{vt+1}\ns_cmp_lt_i32 s40, 0\ns_cbranch_scc1 L_restart\ns_cmp_lg_u32 s40, 0\ns_cbranch_scc1 {dn}\ns_sleep 4')
        e.tmo(lp)
        e(f'{dn}:\ns_bfe_u32 s41, s40, 0x40010\ns_cmp_ge_u32 s41, 5\ns_cselect_b32 {sC0}, 1, 0')
        c1x = e.o.get('c1x', 0)
        e(f's_bfe_u32 s41, s40, 0x40018\ns_cmp_ge_u32 s41, 5\ns_cselect_b32 s41, {1 ^ c1x}, {c1x}')
        e(f's_xor_b32 s3, {sXQ}, s41\ns_and_b32 s3, s3, {0 if e.o.get("nofine") else 1}\ns_lshl_b32 s3, s3, 14\ns_lshl_b32 s40, {sW}, 8\ns_add_u32 s3, s3, s40')
        if e.o.get('nofine'): e(f's_and_b32 s40, {sXQ}, 1\ns_lshl_b32 s40, s40, 12\ns_add_u32 s3, s3, s40')
        e(f's_lshr_b32 s40, {sXQ}, 1\ns_lshl_b32 s40, s40, 7\ns_add_u32 s3, s3, s40\ns_add_u32 s3, s3, {B_FL*BS}')
        if vF:
            if e.o.get('nofine'): e(f'v_bfe_u32 {vF}, v1, 4, 1\nv_lshlrev_b32 {vF}, 12, {vF}')
            else: e(f'v_bfe_u32 {vF}, v1, 4, 1\nv_xor_b32 {vF}, s41, {vF}\nv_lshlrev_b32 {vF}, 14, {vF}')
            e(f'v_lshrrev_b32 v{vt}, 5, v1\nv_lshl_add_u32 {vF}, v{vt}, 7, {vF}')
        e.ts(3)
    def startflush(self, vt):
        if self.o['stamps']:
            self(f's_xor_b32 {sS}, {sSIDE}, 1'); self.tsflush(8, vt)
    def poll_prime(self, vaddr, soff, r0):
        return [f'buffer_load_dword v{r0+i}, {vaddr}, {sWS}, {soff} offen sc1' for i in range(self.o.get('pd', 3))]
    def poll(self, vaddr, soff, r0, D=None, sleep=0, primed=False):
        e = self; lp = e.lab('poll'); dn = e.lab('pd')
        one = D is None and e.o.get('poll1', 0)
        if D is None: D = e.o.get('pd', 3)
        if one: e('s_mov_b64 exec, 1')
        iss = lambda i: e(f'buffer_load_dword v{r0+i}, {vaddr}, {sWS}, {soff} offen sc1')
        for i in range(0 if primed else D):
            iss(i)
            if i < D-1: e('s_nop 15')
        e(f'{lp}:')
        for i in range(D):
            e(f's_waitcnt vmcnt({D-1})\nv_cmp_eq_u32 vcc, -1, v{r0+i}\ns_cbranch_vccz {dn}')
            if sleep: e(f's_sleep {sleep}')
            iss(i)
        e.tmo(lp)
        e(f'{dn}:')
        if one: e('s_mov_b64 exec, -1')
    def ts(self, i):
        if self.o['stamps'] and (self.o.get('tsmask', -1) >> i) & 1: self(f'{"s_memrealtime" if self.o["stamps"] == 1 else "s_memtime"} s[{70+2*i}:{71+2*i}]')
    def tsflush(self, n, vbase):
        if not self.o['stamps']: return
        e = self
        e(f's_waitcnt lgkmcnt(0)\ns_lshl_b32 s40, s2, 2\ns_add_u32 s40, s40, {sW}\ns_lshl_b32 s40, s40, 6\ns_add_u32 s40, s40, {sS}\ns_lshl_b32 s40, s40, 6\ns_add_u32 s40, s40, {DBGW}')
        e(f'v_mov_b32 v{vbase}, 0')
        for i in range(n): e(f'v_writelane_b32 v{vbase}, s{70+2*i}, {i}')
        e(f'v_writelane_b32 v{vbase}, s34, 15\nv_writelane_b32 v{vbase}, s29, 14')
        e(f'v_lshlrev_b32 v{vbase+1}, 2, v1\ns_mov_b64 exec, 0xffff\nbuffer_store_dword v{vbase}, v{vbase+1}, {sWS}, s40 offen\ns_mov_b64 exec, -1')

def resolve(lines):
    out = []; nl = nv = 0; tag = {}; masked = False
    for ln in lines:
        t = ln.strip()
        w = t.replace(',', ' ').split()
        if len(w) > 2 and w[0].startswith('s_') and w[1] == 'exec': masked = w[2:] != ['-1']
        if t.startswith('@wl '): out.append(f'    s_waitcnt lgkmcnt({min(15, nl - tag[t[4:]])})'); continue
        if t.startswith('@wv '): out.append(f'    s_waitcnt vmcnt({min(63, nv - tag[t[4:]])})'); continue
        if t.startswith('ds_') and not masked: nl += 1
        if t.startswith('buffer_') and not masked and ';!' not in t: nv += 1
        ln = ln.split(';!')[0].rstrip()
        assert not (masked and ';@' in t)
        if ';@' in t:
            tag[t.split(';@')[1].strip()] = nl if t.startswith('ds_') else nv
            ln = ln.split(';@')[0].rstrip()
        out.append(ln)
    return out

def xsum(e, r, t, op='v_add_f32', steps=(16, 32)):
    for st in steps:
        e(f'v_mov_b32 v{t}, v{r}\nv_permlane{st}_swap_b32 v{r}, v{t}\n{op} v{r}, v{r}, v{t}')

def role_ln(e):
    e('L_LN:')
    e.srd(8, 0, 2621440)
    e(f's_and_b32 s40, s2, 7\ns_lshl_b32 s40, s40, 2\ns_add_u32 s40, s40, {sJ}\ns_sub_u32 s40, s40, 28\ns_lshl_b32 s40, s40, 2\ns_add_u32 s42, s40, {sW}')
    e(f'v_and_b32 v2, 15, v1\nv_lshrrev_b32 v3, 4, v1\nv_mul_u32_u24 v2, 1280, v2\nv_lshl_add_u32 v2, v3, 4, v2\ns_mul_i32 s43, s42, {16*1280}\ns_waitcnt lgkmcnt(0)')
    R0, F0 = 8, 88
    for k in range(20): e(f'buffer_load_dwordx4 {v(R0+4*k,4)}, v2, {sA}, s43 offen offset:{k*64}')
    e('v_mov_b32 v4, 0\nv_mov_b32 v5, 0')
    for k in range(20):
        e(f's_waitcnt vmcnt({19-k})')
        for r in range(4):
            x = R0+4*k+r; f = F0+8*k+2*r
            e(f'v_lshlrev_b32 v{f}, 16, v{x}\nv_and_b32 v{f+1}, 0xffff0000, v{x}\nv_add_f32 v4, v4, v{f}\nv_add_f32 v5, v5, v{f+1}')
    e('v_add_f32 v4, v4, v5'); xsum(e, 4, 5)
    e(f'v_mul_f32 v4, {f2u(1/640)}, v4')
    e('v_mov_b32 v5, 0\nv_mov_b32 v6, 0')
    for i in range(0, 160, 2):
        e(f'v_sub_f32 v7, v{F0+i}, v4\nv_sub_f32 v248, v{F0+i+1}, v4\nv_fmac_f32 v5, v7, v7\nv_fmac_f32 v6, v248, v248')
    e('v_add_f32 v5, v5, v6'); xsum(e, 5, 6)
    e(f'v_mul_f32 v5, {f2u(1/640)}, v5')
    e('v_cvt_pk_bf16_f32 v6, v4, v5\nv_lshlrev_b32 v4, 16, v6\nv_and_b32 v5, 0xffff0000, v6')
    e(f'v_add_f32 v5, {f2u(1e-5)}, v5\nv_cvt_pk_bf16_f32 v5, v5, v5\nv_lshlrev_b32 v5, 16, v5\nv_sqrt_f32 v5, v5\nv_cvt_pk_bf16_f32 v5, v5, v5\nv_lshlrev_b32 v5, 16, v5\nv_rcp_f32 v5, v5')
    e(f's_lshr_b32 s40, s42, 1\ns_lshl_b32 s40, s40, 16\ns_and_b32 s41, s42, 1\ns_lshl_b32 s41, s41, 10\ns_add_u32 s40, s40, s41\ns_add_u32 s40, s40, {XN}\nv_lshlrev_b32 v2, 4, v1\nv_add_u32 v3, 40960, v2')
    for k in range(20):
        for r in range(4):
            x = R0+4*k+r; f = F0+8*k+2*r
            e(f'v_sub_f32 v{f}, v{f}, v4\nv_sub_f32 v{f+1}, v{f+1}, v4\nv_cvt_pk_bf16_f32 v6, v{f}, v{f+1}\nv_lshlrev_b32 v{f}, 16, v6\nv_and_b32 v{f+1}, 0xffff0000, v6')
            e(f'v_mul_f32 v{f}, v{f}, v5\nv_mul_f32 v{f+1}, v{f+1}, v5\nv_cvt_pk_bf16_f32 v{x}, v{f}, v{f+1}')
        e(f'buffer_store_dwordx4 {v(R0+4*k,4)}, v2, {sWS}, s40 offen offset:{(k%2)*2048} sc1')
        if k < 12: e(f'buffer_store_dwordx4 {v(R0+4*k,4)}, v3, {sWS}, s40 offen offset:{(k%2)*2048} sc1')
        if k % 2: e('s_add_u32 s40, s40, 4096')
    e(f's_waitcnt vmcnt(0)\ns_barrier\ns_cmp_lg_u32 {sW}, 0\ns_cbranch_scc1 L_LN2')
    e.ts(2)
    e.arrive()
    e('L_LN2:'); e.wait_start(vt=30); e.startflush(30)
    e(f's_cmp_ge_u32 {sJ}, 29\ns_cbranch_scc1 {"L_CP" if e.o.get("cpf", 1) else "L_end"}')
    e(f'v_mov_b32 v12, 0\ns_mov_b32 {sS}, {sSIDE}\nL_RF_loop:')
    e.crit_off('s35'); e('s_add_u32 s35, s35, s3')
    e.poll('v12', 's35', 20, D=4)
    e(f's_add_u32 {sS}, {sS}, 2\ns_cmp_lt_u32 {sS}, {e.o["nseg"]}\ns_cbranch_scc1 L_RF_loop\ns_branch L_end')
    e(f'L_CP:\ns_cmp_lg_u32 {sJ}, 29\ns_cbranch_scc1 L_end')
    e(f's_getpc_b64 s[8:9]\nL_pc:\ns_add_u32 s8, s8, L_QK-L_pc\ns_addc_u32 s9, s9, 0\ns_mov_b32 s10, L_end-L_QK\ns_mov_b32 s11, 0x20000')
    e(f'v_mov_b32 v12, 0\nv_lshlrev_b32 v2, 6, v1\ns_lshl_b32 s42, {sW}, 12\ns_mov_b32 {sS}, {sSIDE}')
    e.crit_off('s35'); e(f's_add_u32 s35, s35, s3\ns_add_u32 s35, s35, {F_P}\nL_CP_loop:')
    for q in range(3): e(f's_add_u32 s43, s42, {q*16384}\nbuffer_load_dword v{4+q}, v2, s[8:11], s43 offen sc1')
    e(f'buffer_load_dword v8, v12, {sWS}, s35 offen sc1\ns_waitcnt vmcnt(0)\nv_cmp_eq_u32 vcc, -1, v8\ns_cbranch_vccz L_end\ns_sleep 24')
    e.tmo('L_CP_loop')

class Units:
    def __init__(self, keys_reg, keys_lds):
        self.m = {}
        for i, k in enumerate(keys_reg):
            self.m[k] = ('a', 8*i) if i < 32 else ('v', 136 + 8*(i-32))
        assert len(keys_reg) <= 47 and len(keys_lds) <= 13
        for i, k in enumerate(keys_lds): self.m[k] = ('l', i)
    def reg(self, k, off=0, n=8):
        t, r = self.m[k]; assert t != 'l'
        return (a if t == 'a' else v)(r+off, n)
    def islds(self, k): return self.m[k][0] == 'l'
    def ldsoff(self, k, half): return self.m[k][1]*2048 + half*1024

sROT = 's36'
vL16, vWL = 'v2', 'v3'

def common_wsetup(e):
    e(f's_mul_i32 s48, {sSIDE}, {2 if e.o.get("srot", 1) else 0}\ns_xor_b32 {sROT}, {sXQ}, s48')
    e(f'v_lshlrev_b32 {vL16}, 4, v1\ns_mul_i32 s40, {sW}, {WPW}\ns_add_u32 s40, s40, {L_W}\nv_add_u32 {vWL}, s40, {vL16}')

def load_weights(e, U, chunks, started, sX, full):
    n = len(chunks); TMP = 40; idn = e.lab('w'); assert n % 4 == 0
    e(f's_mul_i32 s44, {sW}, 3072')
    e.rotword('s42')
    e(f'v_mov_b32 v32, 128\nv_mov_b32 v33, s42\nv_mov_b32 v34, 0\ns_and_b32 s46, {sJ}, 7\ns_lshl_b32 s47, {sW}, 3\ns_or_b32 s46, s46, s47')
    def issue(c):
        ch = chunks[c]
        ch['soff'](); base = (c % 4)*12288
        for ii in range(3):
            e(f's_add_u32 m0, s44, {base + 1024*ii}\nbuffer_load_dwordx4 v{ch["voff"]+ii}, {ch["srd"]}, s45 offen {e.o.get("wfl", "")} lds ;@{idn}_{c}')
    e.ts(1)
    e('s_waitcnt lgkmcnt(0)')
    for c in range(3): issue(c)
    for c in range(n):
        e(f'@wv {idn}_{c}\ns_barrier')
        if c in (0, 10, 20, 30): e.ts(4 + c//10)
        if 1 <= c <= 8:
            e(f's_cmp_eq_u32 s46, {c-1}\ns_cselect_b64 exec, 1, 0\nbuffer_atomic_add_x2 v[32:33], v34, {sDBG}, {sC0} offen sc1\ns_mov_b64 exec, -1')
        if c == n-7: e.start_prime(30)
        if c+3 < n: issue(c+3)
        if c == n-3:
            started()
            e(f's_lshl_b32 {sX}, {sSIDE}, 3\ns_add_u32 {sX}, {sX}, {sROT}\ns_lshl_b32 {sX}, {sX}, 13\ns_add_u32 {sX}, {sX}, {XN}')
        if c >= n-3:
            k0 = 6*(c-n+3); L = xdma_list(k0, k0+6, sX); L[-1] += f' ;@{idn}_x{k0}'
            for x in L: e(x)
        base = (c % 4)*12288; pend = []; t = TMP
        for (key, ro, va, imm) in chunks[c]['reads']:
            if U.islds(key):
                e(f'ds_read_b64_tr_b16 {v(t,2)}, {va} offset:{base+imm}'); pend.append((key, ro, t)); t += 2
            else:
                e(f'ds_read_b64_tr_b16 {U.reg(key, ro, 2)}, {va} offset:{base+imm}')
        e('s_waitcnt lgkmcnt(0)')
        for i in range(0, len(pend), 2):
            key, ro, t = pend[i]; assert pend[i+1][0] == key and pend[i+1][1] == ro+2 and ro % 4 == 0
            e(f'ds_write_b128 {vWL}, {v(t,4)} offset:{U.ldsoff(key, ro//4)}')
    e(f'@wv {idn}_x{6 if full else 12}\ns_waitcnt lgkmcnt(0)\ns_barrier')
    if full: xdma(e, 18, 20, sX)
    e.ts(2); e.startflush(30)

def setup_colchunk(e, vo, vr, sStride):
    for ii in range(3):
        e(f'v_add_u32 v10, {64*ii}, v1\nv_mul_u32_u24 v11, 2731, v10\nv_lshrrev_b32 v11, 16, v11')
        e(f'v_mul_u32_u24 v12, 24, v11\nv_sub_u32 v10, v10, v12\ns_lshl_b32 s40, {sW}, 3\nv_add_u32 v11, s40, v11\nv_mul_lo_u32 v11, v11, {sStride}\nv_lshl_add_u32 v{vo+ii}, v10, 4, v11')
    e(f'v_lshrrev_b32 v10, 4, v1\nv_lshlrev_b32 v10, 3, v10\nv_bfe_u32 v11, v1, 2, 2\nv_add_u32 v10, v10, v11\nv_mul_u32_u24 v10, 384, v10')
    e(f'v_and_b32 v11, 3, v1\nv_lshl_add_u32 v10, v11, 3, v10\ns_xor_b32 s40, {sW}, s48\ns_mul_i32 s40, s40, 96\nv_add_u32 v{vr}, s40, v10')

def col_chunks(e, srd, vo, vr, sBase, sStep, keyf):
    out = []
    for kp in range(20):
        def soff(kp=kp): e(f's_lshl_b32 s45, {sROT}, 2\ns_add_u32 s45, s45, {kp}\ns_cmp_ge_u32 s45, 20\ns_cselect_b32 s43, 20, 0\ns_sub_u32 s45, s45, s43\ns_mul_i32 s45, {sStep}, s45\ns_add_u32 s45, s45, {sBase}')
        reads = []
        for t in range(3):
            for q in range(2): reads.append((keyf(t, kp//2), 4*(kp % 2)+2*q, f'v{vr}', 32*t + 1536*q))
        out.append(dict(srd=srd, voff=vo, soff=soff, reads=reads))
    return out

def xdma_list(k0, k1, sX, t0='s44', t1='s45'):
    per = (k1-k0)*2 // 4; L = []
    for i in range(per):
        if i == 0: L.append(f's_mul_i32 {t0}, {sW}, {per*1024}\ns_add_u32 m0, {t0}, {L_X + k0*2048}\ns_add_u32 {t1}, m0, {sX}')
        elif i % 4 == 0: L.append(f's_add_u32 m0, m0, 4096\ns_add_u32 {t1}, {t1}, 4096')
        L.append(f'buffer_load_dwordx4 {vL16}, {sWS}, {t1} offen offset:{(i % 4)*1024} sc1 lds')
    return L
def xdma(e, k0, k1, sX):
    for x in xdma_list(k0, k1, sX): e(x)

def memloads_def(e, MF, sM):
    def ld(k, fl=''):
        e(f'buffer_load_dwordx4 {v(MF+4*k,4)}, {vL16}, {sWS}, {sM[k//2]} offen offset:{(k%2)*1024} {fl}')
    return ld

def mem_offs(t, sM, sCR):
    for pr in range(5):
        t(f's_add_u32 s40, {sROT}, {pr}\ns_cmp_ge_u32 s40, 5\ns_cselect_b32 s41, 5, 0\ns_sub_u32 s40, s40, s41\ns_lshl_b32 s40, s40, 14\ns_add_u32 {sM[pr]}, {sCR}, s40')

def smf(D, Af, B, idx='v4'): return f'v_smfmac_f32_16x16x64_bf16 {v(D,4)}, {v(Af,4)}, {B}, {idx}'
def mf32(D, Aop, Bop, C=None): return f'v_mfma_f32_16x16x32_bf16 {v(D,4)}, {Aop}, {Bop}, {"0" if C is None else v(C,4)}'
def mf16(D, Aop, Bop, C=None): return f'v_mfma_f32_16x16x16_bf16 {v(D,4)}, {Aop}, {Bop}, {"0" if C is None else v(C,4)}'

class Ring:
    def __init__(self, e, U, keys, base, ns):
        self.e, self.U, self.keys, self.base, self.ns = e, U, [k for k in keys if U.islds(k)], base, ns
        self.reset()
    def reset(self): self.q = 0; self.nq = 0; self.emitted = 0; self.pend = []
    def queue(self):
        if self.nq < len(self.keys):
            k = self.keys[self.nq]; r = self.base + 8*(self.nq % self.ns)
            self.pend += [f'ds_read_b128 {v(r+4*h,4)}, {vWL} offset:{self.U.ldsoff(k,h)}' for h in range(2)]
            self.nq += 1
    def fill(self, n=1):
        c = 0
        while self.pend and c < n: self.e(self.pend.pop(0)); self.emitted += 1; c += 1
        return c
    def prime(self):
        self.reset()
        for _ in range(self.ns): self.queue()
        self.fill(99)
    def wait(self, key, other=0):
        if self.U.islds(key):
            assert self.keys[self.q] == key
            need = 2*(self.q+1)
            if self.emitted < need: self.fill(need - self.emitted)
            self.e(f's_waitcnt lgkmcnt({self.emitted - need + other})')
    def op(self, D, Af, key):
        if not self.U.islds(key): self.e(smf(D, Af, self.U.reg(key))); return
        self.e(smf(D, Af, v(self.base + 8*(self.q % self.ns), 8)))
        self.q += 1; self.queue()
    def state(self): return (self.q, self.nq, self.emitted, tuple(self.pend))

NPRE = 7
def crit_pass1(e, ring, MF, sM, tiles, vMax, zero_regs, KO=tuple(range(10))):
    ld0 = memloads_def(e, MF, sM)
    ld = lambda k, fl: ld0(KO[k], fl)
    slow, ok = e.lab('slow'), e.lab('ok')
    NPRE = e.o.get('npre', 7); PACE = e.o.get('pace', 14)
    def body(fl, first):
        zr = list(zero_regs)[::2]; per = -(-len(zr)//(NPRE-1))
        for k in range(NPRE):
            ld(k, fl)
            if k == 0 and not first: e('s_waitcnt lgkmcnt(0)'); ring.prime()
            if k < NPRE-1:
                z = [zr.pop(0) for _ in range(min(per, len(zr)))]; left = max(0, PACE - len(z))
                for j, r in enumerate(z):
                    n = (left*(j+1))//len(z) - (left*j)//len(z)
                    e(f'v_mov_b64 {v(r,2)}, 0' + (f'\ns_nop {n-1}' if n else ''))
        issued = NPRE
        for k in range(10):
            e(f's_waitcnt vmcnt({issued-1-k})')
            if k == 0 and first: e.ts(2)
            if k == 1 and first and e.o.get('early', 0): e(f's_cbranch_vccnz {slow}')
            todo = ['ld'] if issued < 10 else []
            for i, (D, kf) in enumerate(tiles):
                ring.wait(kf(KO[k]))
                ring.op(D, MF+4*KO[k], kf(KO[k]))
                if i == len(tiles)-1:
                    ring.fill(99)
                    if todo: ld(issued, fl); issued += 1
                    if k == 0 and first and e.o.get('early', 0): e(f'v_cmp_u_f32 vcc, v{MF}, v{MF+3}')
                elif ring.fill(1): pass
                elif todo: todo.pop(); ld(issued, fl); issued += 1
    e.ts(1)
    body('', True)
    end = ring.state()
    backs = []
    def nancheck(D, summed=False):
        c = e.lab('chk'); bk = e.lab('bk'); backs.append((c, bk))
        if summed: return [f'v_cmp_u_f32 vcc, v{D}, v{D+2}', f's_cbranch_vccnz {c}\n{bk}:']
        return [f'v_cmp_u_f32 s[62:63], v{D}, v{D+1}', f'v_cmp_u_f32 vcc, v{D+2}, v{D+3}', f's_or_b64 vcc, vcc, s[62:63]\ns_cbranch_scc1 {c}\n{bk}:']
    def slowpath():
        (c, bk), = backs
        e(f'{c}:\ns_cmp_lt_u32 s34, 2\ns_cbranch_scc1 {slow}\nv_mov_b32 {vMax}, 0')
        for k in range(10):
            r = MF+4*k; e(f'v_max3_u32 {vMax}, {vMax}, v{r}, v{r+1}\nv_max3_u32 {vMax}, {vMax}, v{r+2}, v{r+3}')
        e(f'v_cmp_eq_u32 vcc, -1, {vMax}\ns_cbranch_vccz {bk}')
        go = e.lab('go'); e.tmo(go); e(f'{go}:')
        e(f'{slow}:\ns_add_u32 s34, s34, 1\ns_nop 7')
        if e.o.get('damp', 0): e('s_mov_b64 s[30:31], 0')
        body('sc1', False)
        assert ring.state() == end
        e(f's_nop 7\ns_branch {ok}')
    e(f'{ok}:')
    return nancheck, slowpath

class Tok1:
    def __init__(self, e, U, tiles, XB, ST):
        self.e, self.U, self.tiles, self.XB, self.ST, self.id = e, U, tiles, XB, ST, e.lab('t')
    def lds_keys(self, kp): return [kf(kp//2) for (_, kf) in self.tiles if self.U.islds(kf(kp//2))]
    def reads(self, kp):
        b = kp % 3
        out = [f'ds_read_b128 {v(self.XB+8*b+4*tt,4)}, {vL16} offset:{L_X + kp*2048 + tt*1024}' for tt in range(2)]
        out += [f'ds_read_b128 {v(self.ST+8*b+4*i,4)}, {vWL} offset:{self.U.ldsoff(k, kp%2)}' for i, k in enumerate(self.lds_keys(kp))]
        out[-1] += f' ;@{self.id}_{kp}'
        return out
    def prologue(self): return self.reads(0) + self.reads(1)
    def run(self, hooks, extra, late=None):
        e, U = self.e, self.U
        extra = list(extra); hk = list(hooks[-1]()) if -1 in hooks else []; late = late or {}
        cost = lambda x: 2 if x.startswith(('v_exp', 'v_rcp', 'v_perml', 'buffer_', 'ds_', 's_')) or 'barrier' in x else 1
        def fill(room):
            c = 0
            while extra and c < room:
                x = extra[0]
                if x == '-':
                    if c == 0: extra.pop(0)
                    break
                if x == '|':
                    extra.pop(0)
                    if c: break
                    continue
                if c + cost(x) > room or (room < 2 and x.startswith('@')): break
                e(extra.pop(0)); c += cost(x)
        e(f'@wl {self.id}_0'); NT = 2*len(self.tiles); since = 9
        for kp in range(20):
            nxt = self.reads(kp+2) if kp+2 < 20 else []
            b = kp % 3; lk = self.lds_keys(kp); n = 0
            for (acc, kf) in self.tiles:
                k = kf(kp//2)
                Aop = v(self.ST+8*b+4*lk.index(k), 4) if U.islds(k) else U.reg(k, 4*(kp % 2), 4)
                for tt in range(2):
                    e(mf32(acc+4*tt, Aop, v(self.XB+8*b+4*tt, 4), None if kp == 0 else acc+4*tt)); n += 1; since += 1
                    last = n == NT and kp < 19
                    if last: e(f'@wl {self.id}_{kp+1}')
                    n1 = len(e.L)
                    if n == NT and kp in hooks: hk += hooks[kp]()
                    if len(e.L) > n1: pass
                    elif (kp, n) in late: e(late[(kp, n)])
                    elif nxt: e(nxt.pop(0)); fill(1)
                    elif hk and not last and (since >= 4 or not 'buffer_' in hk[0]):
                        if 'buffer_' in hk[0]: since = 0
                        e(hk.pop(0))
                    elif last and extra and extra[0].startswith(('s_', '@')): pass
                    else: fill(2)
            assert not nxt
        assert not hk and not [x for x in extra if x not in '|-'], (hk, extra)

def salu_groups(t):
    sal = [x.strip() for x in t.L]; L = []; cur = []
    for x in sal:
        if len(cur) == 3 or (x.startswith('s_cmp') and len(cur) == 2): L.append('\n'.join(cur)); cur = []
        cur.append(x)
    L.append('\n'.join(cur))
    return L

def schedule(e, main, ops, pos0, burst=99):
    pos = dict(pos0); n0 = len(e.L); ops = list(ops); main = list(main)
    cur = lambda: sum(1 for x in e.L[n0:] if not x.strip().endswith(':'))
    def dist(d):
        L = [x.strip() for x in e.L[n0:] if not x.strip().endswith(':')]
        a = len(L) - pos[d] - 1
        ism = lambda x: x.startswith(('v_mfma', 'v_smfmac'))
        if pos[d] < 0 or ism(L[pos[d]]):
            later = [i for i in range(max(pos[d]+1, 0), len(L)) if ism(L[i])]
            if later: a = max(a, 4*len(later) + len(L) - later[-1] - 1)
        return a
    def ready(o): return all(d in pos and dist(d) >= k for d, k in o[3])
    def emit(o): pos[o[0]] = cur(); e(o[1]); ops.remove(o)
    def fillers(n):
        for o in [o for o in ops if o[2] == 's' and ready(o)]: emit(o)
        for _ in range(n):
            c = [o for o in ops if o[2] == 'v' and ready(o)]
            if c: emit(c[0])
    while main:
        c = [o for o in ops if o[2] == 'm' and ready(o)]
        if c: emit(c[0]); fillers(2); continue
        nm, fn = main.pop(0); c0 = cur(); fn(); L = [x.strip() for x in e.L[n0:] if not x.strip().endswith(':')]; pos[nm] = max(i for i in range(c0, len(L)) if L[i].startswith('v_smf')); fillers(1)
        if len([o for o in ops if o[2] == 'v' and all(d in pos for d, _ in o[3])]) >= burst: fillers(1)
    while ops:
        c = [o for o in ops if ready(o)]
        if c: emit(c[0])
        else: e('s_nop 0')

def flagclear_bulk(e, blk, vt):
    e(f'v_lshlrev_b32 v{vt}, 22, v1\ns_lshl_b32 s40, {sSIDE}, 13\ns_add_u32 s40, s40, s42\ns_add_u32 s40, s40, {BULK + blk*BS}')
    e(f'v_mov_b32 v{vt+1}, -1\ns_mov_b32 exec_hi, 0\nbuffer_store_dword v{vt+1}, v{vt}, {sWS}, s40 offen sc1\ns_mov_b32 exec_hi, -1')

def role_vo(e):
    keys_l = [('v', 2, k) for k in range(10)] + [('v', 1, k) for k in (2, 5, 8)]
    keys_r = [('o', u, k) for u in range(10) for k in range(3)] + [('v', t, k) for t in range(2) for k in range(10) if ('v', t, k) not in keys_l]
    U = Units(keys_r, keys_l)
    sFFN, sSTR, sWB, sSTP, sOB = 's29', 's30', 's31', 's32', 's33'
    sCR, sCR2, sB0, sB1, sX, sM = 's35', 's36', 's37', 's38', 's39', ('s46', 's47', 's48', 's58', 's59')
    sSL, sFR = 's49', 's50'
    L_VX, L_VM = L_MISC, L_MISC + 12288
    e('L_VO:')
    e.srd(8, 4, 7864320); e.srd(12, 5, 7864320)
    e(f's_lshl_b32 {sU}, {sXQ}, 3\ns_add_u32 {sU}, {sU}, {sJ}\ns_sub_u32 {sU}, {sU}, 8\ns_mov_b32 {sFFN}, 0\ns_mov_b32 {sSTR}, 12288\ns_mov_b32 s42, {sU}\ns_branch L_VF')
    e('L_FFN:')
    e.srd(8, 8, 1966080); e.srd(12, 9, 1966080)
    e(f's_lshl_b32 {sU}, {sXQ}, 1\ns_add_u32 {sU}, {sU}, {sJ}\ns_sub_u32 {sU}, {sU}, 26\ns_mov_b32 {sFFN}, 1\ns_mov_b32 {sSTR}, 3072\ns_add_u32 s42, {sU}, 32')
    e('L_VF:')
    e(f's_lshr_b32 s40, s42, 3\ns_lshl_b32 s40, s40, 14\ns_and_b32 s41, s42, 7\ns_lshl_b32 s41, s41, 10\ns_add_u32 {sSL}, s40, s41\ns_lshl_b32 s51, s42, 7')
    e(f's_mul_i32 {sWB}, {sU}, 384\ns_lshl_b32 {sSTP}, {sSTR}, 5\ns_mul_i32 {sOB}, {sU}, 245760')
    common_wsetup(e)
    VO1, VR1, VO2, VR2 = 16, 19, 20, 23
    setup_colchunk(e, VO1, VR1, sSTR)
    for ii in range(3):
        e(f's_mul_i32 s40, {sW}, 192\ns_add_u32 s40, s40, {64*ii}\ns_min_u32 s40, s40, 576\nv_add_u32 v10, s40, v1\nv_mul_u32_u24 v11, 1639, v10\nv_lshrrev_b32 v11, 16, v11')
        e(f'v_mul_u32_u24 v12, 40, v11\nv_sub_u32 v12, v10, v12\nv_mul_u32_u24 v11, 1280, v11\nv_lshl_add_u32 v{VO2+ii}, v12, 4, v11')
    e(f'v_lshrrev_b32 v10, 2, v1\nv_mul_u32_u24 v10, 640, v10\nv_and_b32 v11, 3, v1\nv_lshl_add_u32 v10, v11, 3, v10\ns_mul_i32 s40, {sW}, 160\nv_add_u32 v{VR2}, s40, v10')
    chunks = col_chunks(e, sA, VO1, VR1, sWB, sSTP, lambda t, k: ('v', t, k))
    for r16 in range(12):
        for hf in range(2):
            def soff(r16=r16, hf=hf): e(f's_mul_i32 s45, s48, {(3 if r16 < 6 else -3)*16*1280}\ns_add_u32 s45, s45, {sOB}\ns_add_u32 s45, s45, {r16*16*1280 + hf*640}')
            chunks.append(dict(srd=sB, voff=VO2, soff=soff, reads=[(('o', 5*hf+uu, r16//4), 2*(r16 % 4), f'v{VR2}', 32*uu) for uu in range(5)]))
    e(f'v_and_b32 v13, 15, v1\nv_lshrrev_b32 v14, 4, v1')
    e(f'v_and_b32 v4, 1, v1\nv_mul_u32_u24 v4, 0xaaaa, v4\nv_add_u32 v4, 0x4444, v4')
    for (dst, tau) in ((5, 0), (6, 1)):
        e(f's_mul_i32 s40, {sW}, 3\ns_add_u32 s40, s40, {tau}\ns_lshr_b32 s41, s40, 1\ns_and_b32 s40, s40, 1')
        e(f's_lshl_b32 s43, s41, 10\ns_lshl_b32 s44, s40, 3\ns_add_u32 s43, s43, s44\ns_add_u32 s43, s43, {L_VX}\nv_add_u32 v{dst}, s43, {vL16}')
        e(f's_lshl_b32 s43, s41, 9\ns_lshl_b32 s44, s40, 2\ns_add_u32 s43, s43, s44\ns_add_u32 s43, s43, {L_VM}\nv_mov_b32 v{dst+2}, s43')
    e('''v_lshrrev_b32 v10, 3, v13
    v_lshlrev_b32 v10, 8, v10
    v_bfe_u32 v11, v13, 1, 1
    v_lshl_add_u32 v10, v11, 4, v10
    v_bfe_u32 v11, v13, 2, 1
    v_lshl_add_u32 v10, v11, 3, v10
    v_and_b32 v11, 1, v13
    v_lshl_add_u32 v10, v11, 5, v10
    v_lshl_add_u32 v10, v14, 6, v10
    v_add_u32 v7, v7, v10
    v_add_u32 v8, v8, v10''')
    e(f'''v_and_b32 v10, 1, v14
    v_lshrrev_b32 v11, 1, v14
    v_lshl_add_u32 v12, v10, 1, v11
    s_mul_i32 s40, {sW}, 5
    s_add_u32 s40, s40, {B_VOM}
    s_lshl_b32 s40, s40, 14
    s_lshl_b32 s41, {sU}, 8
    s_add_u32 s40, s40, s41
    v_lshl_add_u32 v15, v13, 4, s40
    v_lshl_add_u32 v9, v12, 14, v15
    v_lshlrev_b32 v10, 3, v10
    v_add_u32 v11, 23, v11
    v_lshl_add_u32 v11, v11, 14, v15
    v_add_u32 v11, v11, v10
    v_add_u32 v10, {19*BS}, v9
    v_add_u32 v15, {4*BS}, v9
    v_cmp_eq_u32 vcc, 0, v12
    v_cndmask_b32 v10, v10, v15, vcc
    v_and_b32 v12, 1, v1
    v_cmp_eq_u32 vcc, 1, v12
    v_mov_b32 v14, 0x05040100
    v_mov_b32 v12, 0x03020706
    v_cndmask_b32 v14, v14, v12, vcc
    v_mov_b32 v12, 0''')
    def clear_vom(so):
        for r in range(124, 128): e(f'v_mov_b32 v{r}, -1')
        e(f'buffer_store_dwordx4 v[124:127], v9, {sWS}, {so} offen sc1\nbuffer_store_dwordx4 v[124:127], v10, {sWS}, {so} offen sc1\nbuffer_store_dwordx2 v[124:125], v11, {sWS}, {so} offen sc1')
    load_weights(e, U, chunks, lambda: e.wait_start(vt=30, primed=True), sX, True)
    XB, ST, AC1, VF, AC2, PK = 40, 64, 92, 84, 16, 32
    T1 = Tok1(e, U, [(AC1+8*t, (lambda k, t=t: ('v', t, k))) for t in range(3)], XB, ST)
    e(f's_sub_u32 {sS}, {sSIDE}, 2\ns_mov_b32 s43, 0\ns_mov_b32 s52, 0\ns_or_b32 s64, {sFFN}, {sSIDE}\ns_xor_b32 s64, s64, 1')
    e('L_VF_E:\ns_mov_b64 s[54:55], 0\ns_mov_b64 s[56:57], 0\ns_mov_b64 s[60:61], 0\ns_mov_b32 s53, 1')
    for x in T1.prologue(): e(x.split(';@')[0])
    e('s_waitcnt lgkmcnt(0)\ns_branch L_VF_B')
    e('L_VF_loop:')
    e.ts(0)
    for kp in range(6):
        for tt in range(2): e(f'ds_read_b128 {v(VF+8*kp+4*tt,4)}, {vL16} offset:{L_VX + (tt*6+kp)*1024} ;@vf{kp}')
    t = G(**e.o); t(f's_add_u32 {sX}, {sX}, 131072\ns_mov_b32 s53, {sFFN}\ns_mov_b64 s[60:61], -1'); t.bulk_off(sB0)
    t(f's_add_u32 {sB1}, {sB0}, {2<<20}\ns_xor_b32 {sB1}, {sB1}, 8192')
    t(f's_mul_i32 s42, {sW}, {25*BS}\ns_add_u32 s42, s42, {sSL}\ns_add_u32 s43, s42, {sB1}\ns_add_u32 s42, s42, {sB0}')
    t(f's_add_u32 s52, {sB0}, s51\ns_add_u32 s52, s52, {B_VF*BS}')
    t(f's_cmp_eq_u32 {sFFN}, 0\ns_cselect_b64 s[54:55], -1, 0\ns_cmp_eq_u32 {sW}, 0\ns_cselect_b64 s[56:57], 1, 0')
    sa = salu_groups(t)
    dm = xdma_list(0, 20, sX); dm[-1] += ' ;@xdma'
    def fin(u):
        ac = AC2+8*(u % 2); pk = PK+4*(u % 2); sr = 's42' if u < 5 else 's43'
        c = [f'v_cvt_pk_bf16_f32 v{pk+i}, v{ac+4*(i&1)+2*(i>>1)}, v{ac+4*(i&1)+2*(i>>1)+1}' for i in (0, 2, 1, 3)]
        st = f'buffer_store_dwordx4 {v(pk,4)}, {vL16}, {sWS}, {sr} offen sc1'
        return [c[0]+'\n'+c[1], c[2]+'\n'+c[3], (f's_add_u32 {sr}, {sr}, {5*BS}\n' if u % 5 else '') + st]
    pro = T1.prologue()
    for u in range(10):
        ac = AC2+8*(u % 2); pend = fin(u-1) if u else []
        n = 0
        for kp in range(6):
            if u == 0: e(f'@wl vf{kp}')
            for tt in range(2):
                e(mf32(ac+4*tt, v(VF+8*kp+4*tt, 4), U.reg(('o', u, kp//2), 4*(kp % 2), 4), None if kp == 0 else ac+4*tt)); n += 1
                if u == 0:
                    if sa: e(sa.pop(0))
                elif n in (2, 3, 4): e(pend.pop(0))
                elif dm and (n in (7, 11) or (n in (6, 10) and dm[0].startswith('s_'))): e(dm.pop(0))
                elif u == 9 and n == 5: e('@wv xdma\ns_barrier')
                elif u == 9 and n >= 6 and pro: e(pro.pop(0))
        assert not sa
    assert not pro and not dm
    e('s_cmp_lg_u32 s64, 0\ns_cbranch_scc1 L_VF_lite')
    e('L_VF_B:')
    e.ts(6)
    t = G(**e.o); t.crit_off(sCR); mem_offs(t, sM, sCR)
    t(f's_add_u32 {sFR}, {sCR}, s3\ns_mov_b32 s34, 0')
    f9 = fin(9); x = f9[2].split('\n')
    ex = ['-'] + f9[0].split('\n') + f9[1].split('\n') + [x[0], f's_mov_b64 exec, s[60:61]\n{x[1]}\ns_mov_b64 exec, -1'] + salu_groups(t)
    def hkflag():
        e('s_waitcnt vmcnt(0)\ns_barrier')
        return [f's_mov_b64 exec, s[56:57]\nbuffer_store_dword v12, v12, {sWS}, s52 offen sc1\ns_mov_b64 exec, -1']
    def hkclr(): return [f's_mov_b64 exec, s[54:55]\nbuffer_store_{x}, {sWS}, {sCR2} offen sc1\ns_mov_b64 exec, -1' for x in ('dwordx4 v[124:127], v9', 'dwordx4 v[124:127], v10', 'dwordx2 v[124:125], v11')]
    pp = e.poll_prime('v12', sFR, 132)
    n0 = len(e.L); e('L_VF_lite:\ns_nop 7')
    for x in ex:
        if x not in '|-': e(x)
    for x in hkflag() + pp: e(x)
    e('s_waitcnt lgkmcnt(0)\ns_branch L_VF_C'); lite = e.L[n0:]; del e.L[n0:]
    T1.run({7: hkflag}, ex, {(19, 2): pp[0]})
    e.ts(7)
    l = e.lab('nsilu'); e(f's_cmp_lg_u32 {sFFN}, 0\ns_cbranch_scc1 L_silu\n{l}:')
    n0 = len(e.L); e('L_silu:\ns_nop 7')
    for r in range(AC1, AC1+24, 2):
        e(f'v_cvt_pk_bf16_f32 v16, v{r}, v{r+1}\nv_lshlrev_b32 v{r}, 16, v16\nv_and_b32 v{r+1}, 0xffff0000, v16')
        e(f'v_mul_f32 v16, {f2u(-LOG2E)}, v{r}\nv_mul_f32 v17, {f2u(-LOG2E)}, v{r+1}\nv_exp_f32 v16, v16\nv_exp_f32 v17, v17\nv_add_f32 v16, 1.0, v16\nv_add_f32 v17, 1.0, v17')
        e(f'v_rcp_f32 v16, v16\nv_rcp_f32 v17, v17\nv_mul_f32 v{r}, v{r}, v16\nv_mul_f32 v{r+1}, v{r+1}, v17')
    e(f's_branch {l}'); silu_code = e.L[n0:]; del e.L[n0:]
    for t in range(3):
        for tt in range(2):
            r = AC1+8*t+4*tt; d = 16+4*t+2*tt
            e(f'v_cvt_pk_bf16_f32 v{d}, v{r}, v{r+1}\nv_cvt_pk_bf16_f32 v{d+1}, v{r+2}, v{r+3}')
            e(f'ds_write_b64 {"v6" if t == 1 else "v5"}, {v(d,2)} offset:{tt*6144 + (1024 if t == 2 else 0)}')
        if t < 2: e(pp[1+t])
    e(f's_cmp_lg_u32 s53, 0\ns_cbranch_scc1 L_VF_skip\nL_VF_C:')
    MF, AC, RS, AD = 16, 56, 68, 92
    KO = [k ^ e.o.get('vswap', 0) for k in range(10)]
    order = [('v', t, k) for k in KO for t in (2, 1, 0)]
    ring = Ring(e, U, order, RS, 3)
    ring.prime()
    e.ts(5)
    e.poll('v12', sFR, 132, primed=True)
    e('s_barrier')
    nanchk, slow = crit_pass1(e, ring, MF, sM, [(AC+4*t, (lambda k, t=t: ('v', t, k))) for t in (2, 1, 0)], 'v13', list(range(AC, AC+12)) + list(range(AD, AD+32)), KO)
    e.ts(10)
    nc = nanchk(AC+8, True)
    z = [f'v_mov_b64 {v(r,2)}, 0' for r in range(AD+32, AD+40, 2)]
    vb = e.o.get('vb', 4)
    def s1(t): d = AC+4*t; return f'v_add_f32 v{d}, v{d}, v{d+1}\nv_add_f32 v{d+2}, v{d+2}, v{d+3}\nv_cvt_pk_bf16_f32 v{d+1}, v{d}, v{d+2}'
    def s2(t):
        d = AC+4*t
        return f'v_mov_b32_dpp v{d+3}, v{d+1} quad_perm:[1,0,3,2] row_mask:0xf bank_mask:0xf\nv_perm_b32 v{d+1}, v{d+3}, v{d+1}, v14\nds_write_b32 {"v8" if t == 1 else "v7"}, v{d+1} offset:{512 if t == 2 else 0}'
    for x in (s1(2), s1(1), s2(2), s1(0), s2(1), s2(0), nc[0], z[0], 's_nop 2', nc[1]): e(x)
    e(f's_waitcnt lgkmcnt(0)\n{z[1]}\ns_barrier')
    for k in range(3): e(f'ds_read_b128 {v(MF+4*k,4)}, {vL16} offset:{L_VM + k*1024}')
    e(f'{z[2]}\ns_nop {vb}\n{z[3]}')
    e.ts(3)
    OT = 28
    main = []; ops = []
    for pi in range(5):
        for u in (2*pi, 2*pi+1):
            for k in range(3):
                def fn(pi=pi, k=k, u=u):
                    if u == 0: e(f's_waitcnt lgkmcnt({2-k})')
                    e(smf(AD+4*u, MF+4*k, U.reg(('o', u, k))))
                main.append((f's{u}_{k}', fn))
        for u in (2*pi, 2*pi+1):
            d = AD+4*u; o = OT+u
            ops.append((f'a{u}', f'v_add_f32 v{d}, v{d}, v{d+1}', 'v', [(f's{u}_2', 8)]))
            ops.append((f'b{u}', f'v_add_f32 v{d+2}, v{d+2}, v{d+3}', 'v', [(f'a{u}', 0)]))
            ops.append((f'c{u}', f'v_cvt_pk_bf16_f32 v{o}, v{d}, v{d+2}', 'v', [(f'b{u}', 0)]))
        o = OT+2*pi
        ops.append((f'w{pi}', f'v_permlane32_swap_b32 v{o}, v{o+1}', 'v', [(f'c{2*pi}', 2), (f'c{2*pi+1}', 2)]))
        if pi in (1, 3):
            g0 = OT+4*(pi//2)
            ops.append((f'x{pi}_0', f'v_permlane16_swap_b32 v{g0}, v{g0+2}', 'v', [(f'w{pi}', 2), (f'w{pi-1}', 2)]))
            ops.append((f'x{pi}_1', f'v_permlane16_swap_b32 v{g0+1}, v{g0+3}', 'v', [(f'w{pi}', 2), (f'w{pi-1}', 2)]))
            ops.append((f'st{pi}', f'buffer_store_dwordx4 {v(g0,4)}, v{9+pi//2}, {sWS}, {sCR} offen sc1', 'v', [(f'x{pi}_1', 0), (f'x{pi}_0', 0)]))
        if pi == 4:
            ops.append(('st4', f'buffer_store_dwordx2 {v(o,2)}, v11, {sWS}, {sCR} offen sc1', 'v', [('w4', 0)]))
    schedule(e, main, ops, {}, burst=e.o.get('burst', 9))
    if e.o.get('ackts'): e.ts(9); e('s_waitcnt vmcnt(0)')
    e.ts(4)
    e.tsflush(11, 60)
    e('s_cmp_lg_u32 s64, 0\ns_mov_b32 s64, 0\ns_cbranch_scc1 L_VF_E')
    e('L_VF_next:')
    e(f's_add_u32 {sS}, {sS}, 2\ns_cmp_lt_u32 {sS}, {e.o["nseg"]}\ns_cbranch_scc1 L_VF_loop\ns_branch L_end')
    e('L_VF_skip:\ns_waitcnt lgkmcnt(0)\ns_barrier\ns_branch L_VF_next')
    slow()
    e.L += silu_code + lite

def dppred(op, m):
    return [f'{op}_dpp v{m}, v{m}, v{m} {c} row_mask:0xf bank_mask:0xf' for c in ('quad_perm:[1,0,3,2]', 'quad_perm:[2,3,0,1]', 'row_half_mirror', 'row_ror:8')]

def role_qk(e):
    keys_l = [('q', 2, k) for k in range(10)] + [('k', 1, k) for k in (5, 7, 9)]
    K1ORD = [0, 5, 1, 2, 7, 3, 4, 9, 6, 8]
    keys_r = [(m, t, k) for m in 'qk' for t in range(3) for k in range(10) if (m, t, k) not in keys_l]
    U = Units(keys_r, keys_l)
    sSTR, sWB, sSTP = 's30', 's31', 's32'
    sCR, sCR2, sB0, sX, sM = 's35', 's36', 's37', 's39', ('s46', 's47', 's48', 's56', 's57')
    sFR, sPT, sPTc, sLead, sRP, sPTo = 's50', 's51', 's52', 's53', 's49', 's33'
    sC2 = 's[54:55]'
    mN8, mMM, mV, mTA = 's[56:57]', 's[58:59]', 's[60:61]', 's[64:65]'
    L_SM, L_TM = L_MISC, L_MISC + 12288
    vZ = 'v6'; SEL = 12
    CM = [f's[{r}:{r+1}]' for r in (8, 10, 12, 14, 94, 96, 98, 100)]
    e('L_QK:')
    e.srd(8, 2, 7864320); e.srd(12, 3, 7864320)
    e(f's_lshl_b32 {sU}, {sXQ}, 3\ns_add_u32 {sU}, {sU}, {sJ}\ns_mov_b32 {sSTR}, 12288\ns_mul_i32 {sWB}, {sU}, 384\ns_lshl_b32 {sSTP}, {sSTR}, 5')
    e(f's_mov_b32 s56, 0x00ff00ff\ns_mov_b32 s57, 0x00ff00ff\ns_mov_b32 s58, 0\ns_mov_b32 s59, 0x00ff00ff\ns_mov_b32 s60, 0x03ff03ff\ns_mov_b32 s61, 0x03ff03ff\ns_mov_b32 s54, {CSC}\ns_mov_b32 s55, {CSC}')
    e(f's_lshl_b32 s40, {sJ}, 2\ns_add_u32 s40, s40, {sW}\ns_cmp_eq_u32 s40, 3\ns_cselect_b32 {sLead}, 1, 0')
    e(f's_cmp_lt_u32 {sW}, 2\ns_cselect_b64 s[42:43], {mV}, 0\ns_mov_b32 s24, s42\ns_add_u32 s40, {sW}, 1\ns_bitcmp1_b32 s40, 1\ns_cselect_b64 {mTA}, -1, 0')
    common_wsetup(e)
    VO1, VR1 = 16, 19
    setup_colchunk(e, VO1, VR1, sSTR)
    cq = col_chunks(e, sA, VO1, VR1, sWB, sSTP, lambda t, k: ('q', t, k))
    ck = col_chunks(e, sB, VO1, VR1, sWB, sSTP, lambda t, k: ('k', t, k))
    chunks = [c for p in zip(cq, ck) for c in p]
    e(f'v_and_b32 v20, 15, v1\nv_lshrrev_b32 v21, 4, v1\nv_and_b32 v22, 1, v21\nv_lshrrev_b32 v23, 1, v21')
    e(f'v_and_b32 v4, 1, v1\nv_mul_u32_u24 v4, 0xaaaa, v4\nv_add_u32 v4, 0x4444, v4')
    e(f"""s_mul_i32 s40, {sW}, 1536
    s_add_u32 s40, s40, {L_SM}
    v_bfe_u32 v24, v20, 1, 2
    v_mul_u32_u24 v5, 176, v24
    v_and_b32 v24, 1, v20
    v_mul_u32_u24 v24, 768, v24
    v_add3_u32 v5, v5, v24, s40
    v_lshl_add_u32 v5, v23, 6, v5
    v_lshl_add_u32 v5, v22, 4, v5
    v_lshrrev_b32 v24, 3, v20
    v_mul_u32_u24 v24, 6144, v24
    v_add_u32 v5, v5, v24
    s_and_b32 s43, {sW}, 1
    s_lshl_b32 s43, s43, 2
    v_add_u32 v24, s43, v21
    v_lshrrev_b32 v0, 1, v24
    v_mul_u32_u24 v0, 176, v0
    v_mul_u32_u24 v25, 768, v22
    v_add_u32 v0, v0, v25
    v_lshl_add_u32 v0, v20, 4, v0
    v_mov_b32 {vZ}, 0
    s_lshl_b32 s40, {sW}, 10
    v_add_u32 v7, s40, {vL16}
    s_lshr_b32 s41, {sW}, 1
    s_lshl_b32 s40, s41, 9
    s_add_u32 s40, s40, {L_TM}
    v_lshl_add_u32 v8, v20, 4, s40
    v_lshl_add_u32 v8, v23, 8, v8
    v_lshl_add_u32 v8, v22, 3, v8
    s_lshl_b32 s40, s41, 4
    v_add_u32 v10, s40, v20
    v_lshlrev_b32 v11, 2, v21
    v_sub_u32 v10, v10, v11
    v_lshlrev_b32 v11, 4, v20
    v_lshl_add_u32 v11, v22, 3, v11
    v_lshl_add_u32 v11, v23, 2, v11""")
    e(f"""s_mul_i32 s41, s41, 40
    s_add_u32 s40, s41, {sU}
    s_lshr_b32 s42, s40, 3
    s_lshl_b32 s42, s42, 14
    s_and_b32 s40, s40, 7
    s_lshl_b32 s40, s40, 10
    s_add_u32 {sPTc}, s42, s40
    s_lshr_b32 s40, {sU}, 2
    s_add_u32 s40, s40, s41
    s_add_u32 s40, s40, 32
    s_lshr_b32 s42, s40, 3
    s_lshl_b32 s42, s42, 14
    s_and_b32 s40, s40, 7
    s_lshl_b32 s40, s40, 10
    s_add_u32 s42, s42, s40
    s_and_b32 s40, {sU}, 3
    s_lshl_b32 s40, s40, 8
    s_add_u32 s42, s42, s40
    s_sub_u32 s42, s42, {sPTc}
    v_add_u32 v11, s42, v11
    s_add_u32 {sPTc}, {sPTc}, {B_PT*BS}""")
    e(f"""v_lshlrev_b32 v25, 5, v24
    v_and_b32 v26, 1, v20
    v_lshl_add_u32 v27, v26, 4, v25
    v_and_b32 v26, 3, v20
    v_lshl_add_u32 v25, v26, 3, v25
    s_lshr_b32 s40, {sU}, 1
    s_lshl_b32 s40, s40, 8
    s_and_b32 s41, {sU}, 1
    s_lshl_b32 s41, s41, 3
    s_add_u32 s40, s40, s41
    s_add_u32 s40, s40, {B_P*BS}
    v_add_u32 v27, s40, v27
    s_lshr_b32 s41, {sU}, 3
    s_lshl_b32 s41, s41, 14
    s_and_b32 s40, {sU}, 7
    s_lshl_b32 s40, s40, 9
    s_add_u32 s40, s40, s41
    s_add_u32 s40, s40, {(B_P+1)*BS}
    v_bfe_u32 v26, v20, 2, 1
    v_lshl_add_u32 v25, v26, 8, v25
    v_add_u32 v9, s40, v25
    v_cmp_gt_u32 vcc, 8, v20
    v_cndmask_b32 v9, v27, v9, vcc""")
    e('v_lshlrev_b32 v25, 1, v21\nv_sub_u32 v25, v20, v25\nv_mov_b32 v26, 0x3f803f80')
    for r, j in ((0, 0), (1, 1), (2, 8), (3, 9)):
        e(f'v_cmp_eq_u32 vcc, {j}, v25\nv_cndmask_b32 v{SEL+r}, 0, v26, vcc')
    def started():
        for i in range(8): e(f'v_cmp_le_i32 {CM[i]}, {(i//4)*16 + i % 4}, v10')
        e.wait_start(vt=30, vF='v10', primed=True)
    load_weights(e, U, chunks, started, sX, False)
    e(f's_mov_b32 {sS}, {sSIDE}\ns_mov_b64 s[66:67], 0\ns_mov_b32 {sPT}, 0')
    X = 16
    SA = [116, 124, 132, 28, 32]
    def ta_pre():
        L = [f'ds_write_b128 v7, {v(SA[i],4)} offset:{L_MISC + i*4096}' for i in range(3)]
        L += [f's_mov_b32 exec_lo, 0\nds_write_b128 v7, {v(SA[3+tq],4)} offset:{L_TM - 512 + tq*512} ;@sw\ns_mov_b32 exec_lo, -1' for tq in range(2)]
        L = [L[3], f's_lshr_b32 s40, {sW}, 1\ns_lshl_b32 s40, s40, 12', L[4].replace(' ;@sw', ''), f'v_add_u32 v38, s40, {vL16}', 'v_add_u32 v39, s40, v38', L[0], f'v_mov_b32 v37, {f2u(-1e9 * 192**0.5)}', '|',
             L[1], '-', L[2] + ' ;@sw', '-', '-', '-', '-', '@wl sw\ns_barrier']
        dst = [(X, X+4, X+8), (26, 30, 34), (116, 124, 132), (26, 30, 34)]
        rd = lambda w: [f'ds_read_b128 {v(dst[w][0],4)}, v38 offset:{L_MISC + w*1024}', f'ds_read_b128 {v(dst[w][1],4)}, v39 offset:{L_MISC + w*1024}', f'ds_read_b64 {v(dst[w][2],2)}, v8 offset:{w*1024} ;@sr{w}']
        ad = lambda w: ['|'] + [(f'@wl sr{w}\n' if i == 0 else '') + f'v_add_f32 v{X+i}, v{X+i}, v{dst[w][i//4] + i % 4}' for i in range(10)]
        return L + rd(0) + rd(1) + rd(2) + ['-'] + ad(1) + rd(3) + ad(2) + ad(3)
    def ta_ops(inter=True):
        m, t = 34, 36
        L = []
        for i in range(8): L.append(f'v_cndmask_b32 v{X+i}, v37, v{X+i}, {CM[i]}')
        L += [f'v_max3_f32 v{m}, v{X}, v{X+1}, v{X+2}'] + [f'v_max3_f32 v{m}, v{m}, v{X+i}, v{X+i+1}' for i in (3, 5, 7)] + [f'v_max_f32 v{m}, v{m}, v{X+9}']
        def xs(op):
            o = []
            for st in (16, 32): o += [f'v_mov_b32 v{t}, v{m}', f'v_permlane{st}_swap_b32 v{m}, v{t}', f'{op} v{m}, v{m}, v{t}']
            return o
        L += xs('v_max_f32')
        L += [f'v_mul_f32 v{m}, s54, v{m}']
        L += [f'v_fma_f32 v{X+i}, v{X+i}, s54, -v{m}' for i in range(10)]
        L += [f'v_exp_f32 v{X+i}, v{X+i}' for i in range(10)]
        L += [f'v_add_f32 v{m}, v{X}, v{X+1}'] + [f'v_add_f32 v{m}, v{m}, v{X+i}' for i in range(2, 10)]
        L += xs('v_add_f32')
        L += ['|', f'v_rcp_f32 v{m}, v{m}']
        L += [f'v_mul_f32 v{X+i}, v{X+i}, v{m}' for i in range(10)]
        L += [f'v_cvt_pk_bf16_f32 v{28+d}, v{X+4*(d&1)+2*(d>>1)}, v{X+4*(d&1)+2*(d>>1)+1}' for d in range(4)] + [f'v_cvt_pk_bf16_f32 v32, v{X+8}, v{X+9}', '|']
        L += [f's_mov_b64 exec, s[66:67]\nbuffer_store_dwordx4 v[28:31], {vL16}, {sWS}, {sPTo} offen sc1\ns_mov_b64 exec, -1', '|',
              f's_mov_b64 exec, s[66:67]\nbuffer_store_dword v32, v11, {sWS}, {sPTo} offen sc1\ns_mov_b64 exec, -1', '|']
        fp = f's_mov_b64 exec, s[92:93]\nbuffer_store_dword {vZ}, v10, {sWS}, s32 offen sc1\ns_mov_b64 exec, -1'
        pos = len(L) - (e.o.get('fplead', 30) if inter else e.o.get('fplast', 60))
        L[pos:pos] = ['|', fp]
        return L
    e(f's_mov_b64 s[92:93], 0\ns_mov_b32 s32, 0\ns_mul_i32 s68, {sLead}, 0x10001\ns_mov_b32 s69, s68\ns_mov_b32 s42, s24\ns_mov_b32 s43, s24')
    e('L_QK_loop:')
    e.ts(0)
    AC, XB, ST = 40, 88, 112
    Q = lambda tt: 16+6*tt
    Kt = lambda tt: 28+6*tt
    tiles = [(AC+8*(3*mi+t), (lambda k, m=m, t=t: (m, t, k))) for mi, m in enumerate('qk') for t in range(3)]
    T1 = Tok1(e, U, tiles, XB, ST)
    for x in T1.prologue(): e(x)
    e(f's_mov_b32 {sPTo}, {sPT}')
    def hk0():
        L = xdma_list(14, 20, sX); L[-1] += ' ;@xlate'; return L + [f's_add_u32 {sX}, {sX}, 131072']
    def hk(k0, k1):
        def f(): e('s_barrier'); return xdma_list(k0, k1, sX)
        return f
    def hk9(): e('@wv xlate\ns_barrier'); return []
    t = G(**e.o); t.crit_off(sCR); t.bulk_off(sB0); t(f's_add_u32 {sPT}, {sB0}, {sPTc}'); mem_offs(t, sM, sCR)
    t(f's_add_u32 {sFR}, {sCR}, s3\ns_mov_b32 s34, 0\ns_mov_b64 s[66:67], {mTA}')
    t(f's_mov_b64 s[30:31], {"s[92:93]" if e.o.get("fdamp", 1) else "s[68:69]"}\ns_lshl_b32 s40, {sXQ}, 8\ns_add_u32 s40, s40, {sCR}\ns_add_u32 s38, s40, {B_FL*BS + F_Q}\ns_add_u32 s32, s40, {B_FL*BS + F_P}')
    t(f's_mov_b64 s[92:93], s[68:69]')
    cl = salu_groups(t)
    MF, AD, RS, TQ = 40, 80, 104, 128
    def cv(i, tt):
        mi, t = divmod(i, 3); r = AC+8*i+4*tt; d = (Kt if mi else Q)(tt)+2*t
        return f'v_cvt_pk_bf16_f32 v{d}, v{r}, v{r+1}\nv_cvt_pk_bf16_f32 v{d+1}, v{r+2}, v{r+3}'
    order = [('q', 2, k) for k in range(10)] + [('k', 1, k) for k in K1ORD]
    ring = Ring(e, U, order, RS, 3)
    n0 = len(e.L); ring.prime(); pr = [x.strip() for x in e.L[n0:]]; del e.L[n0:]
    late = {(18, 1): pr[0], (18, 2): pr[1], (19, 1): pr[2], (19, 2): pr[3]}
    for i in range(5):
        for tt in range(2): late[(19, 2*i+3+tt)] = cv(i, tt)
    pp = e.poll_prime(vZ, sFR, 128); assert len(pp) == 3
    late[(18, 7)] = pp[0]; late[(18, 12)] = pp[1]
    T1.run({e.o.get('xl', 6): hk0, 11: hk9, 13: hk(0, 14)}, ta_pre() + ta_ops() + cl, late)
    e.ts(7)
    e(pp[2]); e(pr[4]); e(pr[5]); e(cv(5, 0)); e(cv(5, 1))
    e.ts(5)
    e.poll(vZ, sFR, 128, primed=True)
    e('s_barrier')
    q0, k0, q1, q2, k1, k2 = (AD+4*i for i in range(6))
    p1 = [(q2, lambda k: ('q', 2, k)), (q0, lambda k: ('q', 0, k)), (k0, lambda k: ('k', 0, k)), (q1, lambda k: ('q', 1, k))]
    nanchk, slow = crit_pass1(e, ring, MF, sM, p1, 'v134', range(AD, AD+24))
    e.ts(9)
    def flagQ(cond, after='-1'):
        if cond == 0: return f's_mov_b64 exec, s[30:31]\nbuffer_store_dword {vZ}, v10, {sWS}, s38 offen sc1\ns_mov_b64 exec, {after}'
        return f's_andn2_b64 exec, s[68:69], s[30:31]\nbuffer_store_dword {vZ}, v10, {sWS}, s38 offen sc1\ns_mov_b64 exec, {after}'
    lq = e.o['leadQ']
    cvt = lambda d, r: f'v_cvt_pk_bf16_f32 v{d}, v{r}, v{r+1}'
    main = []
    for (D, m) in ((k1, ('k', 1)), (k2, ('k', 2))):
        for p, k in enumerate(K1ORD):
            def fn(D=D, m=m, k=k, p=p):
                ring.op(D, MF+4*k, m + (k,))
                if m == ('k', 1) and p in (0, 3): e(f's_waitcnt lgkmcnt({4 if p == 0 else 0})')
            main.append((f'{m[0]}{m[1]}_{p}', fn))
    len_main = [0]
    nc = nanchk(q1)
    TK = q1; S0, S1, SM = q0, k0, q2
    Selq, Selk = v(SEL, 2), v(SEL+2, 2)
    T_a, T_b, T_c = 104, 108, 112
    slot = lambda j: RS + 8*((10+j) % 3)
    Ta, Tb, Tc = slot(0), slot(0)+4, slot(1)
    ops = [
        ('zq2a', cvt(q2, q2), 'v', [('q2', 8)]), ('zq2b', cvt(q2+1, q2+2), 'v', [('zq2a', 0)]),
        ('zq0a', cvt(q0, q0), 'v', [('q0', 8)]), ('zq0b', cvt(q0+1, q0+2), 'v', [('zq0a', 0)]),
        ('zk0a', cvt(q0+2, k0), 'v', [('k0', 8), ('zq0b', 0)]), ('zk0b', cvt(q0+3, k0+2), 'v', [('zk0a', 0)]),
        ('c1', nc[0], 'v', [('q1', 8)]), ('c2', nc[1], 'v', [('c1', 0)]), ('c3', nc[2], 's', [('c2', 4)]),
        ('zq1a', cvt(q1, q1), 'v', [('c2', 0)]), ('zq1b', cvt(q1+1, q1+2), 'v', [('zq1a', 0)]),
        ('Tq2', mf16(Ta, v(q2, 2), Selq), 'm', [('zq2b', 2), ('k1_1', 0)]),
        ('T0', mf32(Tb, v(q0, 4), v(SEL, 4)), 'm', [('zk0b', 2), ('k1_1', 0)]),
        ('Tq1', mf16(Tc, v(q1, 2), Selq), 'm', [('zq1b', 2), ('k1_4', 0)]),
        ('p2a', cvt(TQ+4, Ta), 'v', [('Tq2', 8)]), ('p2b', cvt(TQ+5, Ta+2), 'v', [('p2a', 0)]),
        ('p0a', cvt(TQ, Tb), 'v', [('T0', 8)]), ('p0b', cvt(TQ+1, Tb+2), 'v', [('p0a', 0)]),
        ('p1a', cvt(TQ+2, Tc), 'v', [('Tq1', 8)]), ('p1b', cvt(TQ+3, Tc+2), 'v', [('p1a', 0)]),
        ('zk1a', cvt(k1, k1), 'v', [('k1_9', 8)]), ('zk1b', cvt(k1+1, k1+2), 'v', [('zk1a', 0)]),
        ('S0a', mf16(S0, v(Kt(0)+4, 2), v(TQ+4, 2)), 'm', [('p2b', 2), ('T0', 0)]),
        ('S1a', mf16(S1, v(Kt(1)+4, 2), v(TQ+4, 2)), 'm', [('p2b', 2), ('T0', 0)]),
        ('S0b', mf32(S0, v(Kt(0), 4), v(TQ, 4), S0), 'm', [('p0b', 2), ('p1b', 2), ('S0a', 6)]),
        ('S1b', mf32(S1, v(Kt(1), 4), v(TQ, 4), S1), 'm', [('p0b', 2), ('p1b', 2), ('S1a', 6)]),
        ('w0', f'ds_write_b128 v5, {v(S0,4)}', 'v', [('S0b', 8)]),
        ('w1', f'ds_write_b128 v5, {v(S1,4)} offset:32', 'v', [('S1b', 8), ('w0', 2)]),
        ('zk2a', cvt(k2, k2), 'v', [('k2_9', 8)]), ('zk2b', cvt(k2+1, k2+2), 'v', [('zk2a', 0)]),
        ('Tk2', mf16(Tb, v(k2, 2), Selk), 'm', [('zk2b', 2)]),
        ('Tk1', mf16(Ta, v(k1, 2), Selk), 'm', [('zk1b', 2), ('k2_9', 0)]),
        ('SMa', mf16(SM, v(TQ, 2), v(TQ, 2)), 'm', [('p0b', 2), ('k2_9', 0)]),
        ('pk1a', cvt(TK, Ta), 'v', [('Tk1', 8)]), ('pk1b', cvt(TK+1, Ta+2), 'v', [('pk1a', 0)]),
        ('pk2a', cvt(TK+2, Tb), 'v', [('Tk2', 8)]), ('pk2b', cvt(TK+3, Tb+2), 'v', [('pk2a', 0)]),
        ('SMb', mf32(SM, v(TK, 4), v(TQ+2, 4), SM), 'm', [('pk2b', 2), ('pk1b', 2), ('SMa', 6)]),
    ]
    PB = 44
    ops.append(('pre', 'v_mov_b32 v60, 0', 'v', [('SMb', 3)]))
    if lq < 20: ops.insert(0, ('fl', flagQ(0), 'v', [(main[lq][0], 0), ('c3', 0)]))
    if lq == 20: ops.append(('fl', flagQ(0), 'v', [('Tk2', 0)]))
    if lq == 21: ops.append(('fl', flagQ(0), 'v', [('SMb', 0)]))
    ops.append(('wm', f's_cmp_ge_u32 {sW}, 2\ns_mov_b64 exec, {mMM}\nds_write_b128 v5, {v(SM,4)} offset:64', 'v', [('SMb', 6)]))
    schedule(e, main, ops, {'q2': -8, 'q0': -6, 'k0': -4, 'q1': -2})
    e.ts(10)
    tt3 = ((0, 0), (0, 1), (1, 1))
    a16 = [mf16(SA[i], v(Kt(tk)+4, 2), v(Q(tq)+4, 2)) for i, (tk, tq) in enumerate(tt3)]
    a32 = [mf32(SA[i], v(Kt(tk), 4), v(Q(tq), 4), SA[i]) for i, (tk, tq) in enumerate(tt3)]
    n1 = e.o.get('nh1', 0)
    h1 = (a16 + a32)[:3+n1]
    h2 = (a16 + a32)[3+n1:] + [mf16(SA[3+tq], v(TQ, 2), v(Q(tq), 2)) for tq in range(2)] + [mf32(SA[3+tq], v(TK, 4), v(Q(tq)+2, 4), SA[3+tq]) for tq in range(2)]
    e('s_mov_b64 exec, -1\ns_cbranch_scc1 L_QK_w23')
    for x in h1: e(x)
    e('s_mov_b64 exec, s[42:43]\ns_waitcnt lgkmcnt(0)\nv_mov_b32 v61, 0\ns_barrier')
    e.ts(3)
    Tt, m, t = PB-4, 60, 62
    for w in range(4): e(f'ds_read_b128 {v(PB+4*w,4)}, v0 offset:{L_SM + w*1536}')
    nh = 0
    e('s_waitcnt lgkmcnt(2)')
    for i in (0, 2): e(f'v_pk_add_f32 {v(PB+i,2)}, {v(PB+i,2)}, {v(PB+4+i,2)}')
    for i in (0, 2): e(f'v_pk_mul_f32 {v(PB+i,2)}, {v(PB+i,2)}, {sC2}')
    e('s_waitcnt lgkmcnt(0)')
    for i in (0, 2): e(f'v_pk_add_f32 {v(PB+8+i,2)}, {v(PB+8+i,2)}, {v(PB+12+i,2)}')
    for i in (0, 2): e(f'v_pk_fma_f32 {v(Tt+i,2)}, {v(PB+8+i,2)}, {sC2}, {v(PB+i,2)}')
    EX = PB+4; u = PB+8
    for i in range(4): e(f'v_exp_f32 v{EX+i}, v{Tt+i}')
    dp = dppred('v_add_f32', m)
    e(f'v_max3_f32 v{u}, abs(v{Tt}), abs(v{Tt+1}), abs(v{Tt+2})\nv_pk_add_f32 {v(t,2)}, {v(EX,2)}, {v(EX+2,2)}\nv_add_f32 v{m}, v{t}, v{t+1}')
    e(f's_mov_b64 exec, -1\nv_max_f32 v{u}, abs(v{Tt+3}), v{u}\n{dp[0]}')
    e(f'v_cmp_lt_f32 vcc, {f2u(e.o.get("thr", 64.0))}, v{u}\n{dp[1]}\n{dp[2]}\ns_and_b64 vcc, vcc, {mV}\ns_cbranch_scc1 L_QK_max\n{dp[3]}\nL_QK_maxd:')
    n0 = len(e.L); e(f'L_QK_max:\nv_mov_b32 v{u}, {f2u(-1e30)}')
    for i in range(4): e(f'v_cndmask_b32 v{Tt+i}, v{u}, v{Tt+i}, {mV}')
    e(f'v_max3_f32 v{m}, v{Tt}, v{Tt+1}, v{Tt+2}\nv_max_f32 v{m}, v{m}, v{Tt+3}')
    for x in dppred('v_max_f32', m): e(x)
    for i in range(4): e(f'v_sub_f32 v{Tt+i}, v{Tt+i}, v{m}')
    for i in range(4): e(f'v_exp_f32 v{EX+i}, v{Tt+i}')
    e(f'v_pk_add_f32 {v(t,2)}, {v(EX,2)}, {v(EX+2,2)}\nv_add_f32 v{m}, v{t}, v{t+1}\nv_cndmask_b32 v{m}, 0, v{m}, {mV}')
    for x in dp: e(x)
    e('s_branch L_QK_maxd'); maxcode = e.L[n0:]; del e.L[n0:]
    e(f'v_rcp_f32 v{m}, v{m}\ns_mov_b64 exec, s[42:43]')
    for i in (0, 2): e(f'v_pk_mul_f32 {v(EX+i,2)}, {v(EX+i,2)}, {v(m,2)} op_sel_hi:[1,0]')
    e(f'{cvt(PB, EX)}\n{cvt(PB+1, EX+2)}')
    if e.o.get('ackts'): e.ts(9)
    e(f'buffer_store_dwordx2 {v(PB,2)}, v9, {sWS}, {sCR} offen sc1\ns_mov_b64 exec, -1')
    if e.o.get('ackts'): e('s_waitcnt vmcnt(0)')
    e.ts(4)
    for x in h2: e(x)
    e('L_QK_sk:')
    hh = h1 + h2; npb = e.o.get('w23pre', 2)
    n0 = len(e.L); e('L_QK_w23:')
    for x in hh[:npb]: e(x)
    e('s_waitcnt lgkmcnt(0)\ns_barrier')
    for x in hh[npb:]: e(x + (f'\ns_nop {e.o["w23nop"]}' if e.o.get('w23nop') else ''))
    e('s_branch L_QK_sk'); maxcode += e.L[n0:]; del e.L[n0:]
    if lq == 24: e(flagQ(0))
    e.ts(6)
    e.tsflush(11, 72)
    e('s_barrier'); e(flagQ(1))
    e(f's_add_u32 {sS}, {sS}, 2\ns_cmp_lt_u32 {sS}, {e.o["nseg"]}\ns_cbranch_scc1 L_QK_loop')
    e(f's_mov_b32 {sPTo}, {sPT}')
    for x in ta_pre() + ta_ops(False):
        if x not in '|-': e(x)
    e('s_branch L_end')
    slow()
    e.L += maxcode

def role_r(e):
    sCR, sCN, sB0, sTB = 's35', 's36', 's37', 's38'
    sP = ['s46', 's47', 's48', 's49', 's50']; sV = ['s51', 's52']; sFQ, sLead, sTC, sPG, sXO = 's53', 's54', 's55', 's56', 's57'
    sN = ['s58', 's59', 's60', 's61']
    e(f'L_R:\ns_cmp_lg_u32 {sW}, 0\ns_cbranch_scc1 L_PF')
    e.srd(8, 0, 2621440); e.srd(12, 10, 2621440); e.srd(64, 1, 10240)
    e(f's_mul_i32 {sU}, {sXQ}, 10\ns_add_u32 {sU}, {sU}, {sJ}\ns_sub_u32 {sU}, {sU}, 16\ns_cmp_eq_u32 {sJ}, 16\ns_cselect_b32 {sLead}, 0x10001, 0\ns_lshl_b32 s32, {sXQ}, 8\ns_add_u32 s32, s32, {B_FL*BS}')
    e(f's_cmp_ge_u32 {sU}, 20\ns_cselect_b32 {sPG}, 1, 0\ns_mul_i32 s40, {sPG}, 20\ns_sub_u32 s40, {sU}, s40\ns_mul_i32 {sTC}, s40, {5*BS}\ns_lshl_b32 s40, {sPG}, 21\ns_add_u32 {sTC}, {sTC}, s40\ns_lshl_b32 {sPG}, {sPG}, 13')
    e(f'''v_lshlrev_b32 {vL16}, 4, v1
    v_and_b32 v20, 15, v1
    v_lshrrev_b32 v21, 4, v1
    v_and_b32 v4, 1, v1
    v_mul_u32_u24 v4, 0xaaaa, v4
    v_add_u32 v4, 0x4444, v4
    v_and_b32 v10, 7, v1
    v_lshlrev_b32 v10, 4, v10
    v_lshl_add_u32 v10, v21, 7, v10
    v_bfe_u32 v11, v1, 3, 1
    v_lshl_add_u32 v5, v11, 3, v10
    v_and_b32 v11, 1, v20
    v_lshl_add_u32 v10, v21, 1, v11
    v_mov_b32 v7, 0x05040100
    v_mov_b32 v22, 0x03020706
    v_cmp_eq_u32 vcc, 1, v11
    v_cndmask_b32 v7, v7, v22, vcc
    v_mul_u32_u24 v23, 1280, v10
    v_and_b32 v11, 14, v20
    v_lshl_add_u32 v23, v11, 1, v23
    s_lshl_b32 s40, {sU}, 5
    v_add_u32 v23, s40, v23
    v_bfe_u32 v11, v20, 1, 1
    v_lshl_add_u32 v10, v10, 1, v11
    v_lshlrev_b32 v10, 4, v10
    v_lshrrev_b32 v11, 2, v20
    v_lshl_add_u32 v10, v11, 2, v10
    s_lshr_b32 s42, {sU}, 3
    s_lshl_b32 s42, s42, 14
    s_and_b32 s41, {sU}, 7
    s_lshl_b32 s41, s41, 8
    s_add_u32 s41, s41, s42
    v_add_u32 v6, s41, v10
    v_mul_u32_u24 v8, 1280, v20
    v_lshl_add_u32 v8, v21, 3, v8
    v_add_u32 v8, s40, v8
    v_and_b32 v9, 31, v1
    v_lshlrev_b32 v9, 7, v9
    v_and_b32 v0, 7, v1
    v_lshlrev_b32 v0, 7, v0
    v_lshlrev_b32 v3, 8, v1
    v_mov_b32 v12, 0
    v_mov_b32 v14, -1
    v_lshlrev_b32 v13, 2, v21
    v_sub_u32 v13, v20, v13
    v_mov_b32 v24, 0x3f80
    v_mov_b32 v25, 0x3f800000
    s_waitcnt lgkmcnt(0)
    buffer_load_dword v15, v23, s[64:67], 0 offen
    v_cmp_eq_u32 vcc, 0, v13
    v_cndmask_b32 v16, 0, v24, vcc
    v_cmp_eq_u32 vcc, 1, v13
    v_cndmask_b32 v16, v16, v25, vcc
    v_cmp_eq_u32 vcc, 2, v13
    v_cndmask_b32 v18, 0, v24, vcc
    v_cmp_eq_u32 vcc, 3, v13
    v_cndmask_b32 v18, v18, v25, vcc
    v_mov_b32 v17, 0
    v_mov_b32 v19, 0
    v_mov_b32 v20, 0
    v_mov_b32 v21, v16
    v_mov_b32 v22, 0
    v_mov_b32 v23, v18''')
    def reps(base): pass
    def pub(reg): e(f'buffer_store_dword {reg}, v6, {sWS}, {sCN} offen sc1')
    for g in range(4): e(f's_add_u32 {sN[g]}, {sXQ}, {g}\ns_and_b32 {sN[g]}, {sN[g]}, 3')
    l = e.lab('nl'); l2 = e.lab('nc'); l3 = e.lab('ncl')
    for r in range(24, 28): e(f'v_mov_b32 v{r}, -1')
    e(f's_mul_i32 s42, {sSIDE}, 40\ns_add_u32 s42, s42, {sU}\ns_cmp_ge_u32 s42, 64\ns_cbranch_scc1 {l3}')
    e(f's_lshr_b32 s40, s42, 1\ns_and_b32 s41, s42, 1\ns_lshl_b32 s41, s41, 13\ns_lshl_b32 s43, s40, 20\ns_add_u32 s43, s43, s41\ns_add_u32 s43, s43, {B_FL*BS}')
    for o in range(6):
        if o == 3: e(f's_add_u32 s43, s43, {4096 if e.o.get("nofine") else BS}')
        e(f'buffer_store_dwordx4 v[24:27], {vL16}, {sWS}, s43 offen offset:{(o%3)*1024} sc1')
    e(f's_lshl_b32 s43, s40, 22\ns_add_u32 s43, s43, s41\ns_add_u32 s43, s43, {BULK + B_VF*BS}')
    for o in range(4): e(f'buffer_store_dwordx4 v[24:27], {vL16}, {sWS}, s43 offen offset:{o*1024} sc1')
    e(f's_add_u32 s43, s43, 4096\nbuffer_store_dwordx4 v[24:27], {vL16}, {sWS}, s43 offen sc1')
    e(f's_cmp_ge_u32 s42, 61\ns_cbranch_scc1 {l3}\ns_sub_u32 s43, s42, 13\ns_cmp_lt_u32 s43, 8\ns_cbranch_scc1 {l3}\ns_lshl_b32 s43, s42, 14')
    for o in range(32):
        e(f'buffer_store_dwordx4 v[24:27], {vL16}, {sWS}, s43 offen offset:{(o % 4)*1024} sc1')
        if o % 4 == 3: e(f's_add_u32 s43, s43, {4096 if o != 15 else (1 << 20) - 12288}')
    e(f'{l3}:\ns_lshl_b32 s43, {sSIDE}, 22\ns_lshl_b32 s41, {sU}, 12\ns_add_u32 s43, s43, s41\ns_add_u32 s43, s43, {BULK + B_PT*BS}')
    for o in range(4): e(f'buffer_store_dwordx4 v[24:27], {vL16}, {sWS}, s43 offen offset:{o*1024} sc1')
    e(f'\ns_mov_b32 s45, 1\ns_cmp_lg_u32 {sJ}, 25\ns_cbranch_scc1 {l}')
    e(f's_and_b32 s40, s2, 7\ns_lshl_b32 s40, s40, 10\ns_add_u32 s40, s40, {B_CAL*BS}')
    for q in range(4): e(f's_add_u32 s41, s40, {8192*q}\nbuffer_store_dwordx4 v[24:27], {vL16}, {sWS}, s41 offen sc1')
    def race(lines):
        e('s_mov_b32 s46, -1\ns_mov_b32 s47, -1')
        for k in lines:
            for b in range(2):
                e(f's_memtime s[48:49]\ns_waitcnt lgkmcnt(0)\nbuffer_load_dword v31, v12, {sWS}, s{40+b} offen offset:{k*128} sc1\ns_waitcnt vmcnt(0)\ns_memtime s[50:51]\ns_waitcnt lgkmcnt(0)')
                e(f's_sub_u32 s50, s50, s48\ns_min_u32 s{46+b}, s{46+b}, s50')
        e('s_cmp_lt_u32 s47, s46')
    e('s_add_u32 s41, s40, 8192\ns_waitcnt vmcnt(0)')
    race(range(3))
    e(f's_cselect_b32 s45, 1, 0\ns_cselect_b32 s40, s41, s40\ns_add_u32 s41, s40, {BS}\ns_xor_b32 s45, s45, {sSIDE}\ns_lshl_b32 s45, s45, 16\ns_or_b32 s45, s45, 1')
    race(range(3, 8))
    e(f's_cselect_b32 s46, 1, 0\ns_xor_b32 s46, s46, {sXQ}\ns_and_b32 s46, s46, 1\ns_lshl_b32 s46, s46, 24\ns_or_b32 s45, s45, s46')
    e(f'{l}:\ns_waitcnt vmcnt(0)')
    e.ts(2)
    e.arrive(extra='s45', vt=30)
    e.wait_start(vt=30, vF='v3'); e.startflush(30)
    e(f'v_add_u32 v5, 4096, {vL16}\nv_add_u32 v9, {5*BS}, {vL16}\nv_add_u32 v10, {5*BS + 4096}, {vL16}')
    def flagR(msk):
        e(f's_add_u32 s40, {sCN}, s32\ns_mov_b32 exec_lo, {msk}\ns_mov_b32 exec_hi, {msk}\nbuffer_store_dword v12, v3, {sWS}, s40 offen sc1\ns_mov_b64 exec, -1')
    e(f's_cmp_eq_u32 {sSIDE}, 0\ns_cbranch_scc1 {l2}\ns_mov_b32 {sS}, 0')
    e('v_min_u32 v15, -2, v15')
    e.crit_off(sCN, 0); reps(sCN); pub('v15')
    if not e.o.get('sync0', 0): e('s_waitcnt vmcnt(0)'); flagR(sLead)
    e(f'{l2}:\ns_mov_b32 {sS}, {sSIDE}')
    e('L_R_loop:')
    e.ts(0)
    e.bulk_off(sB0)
    e(f's_xor_b32 {sTB}, {sB0}, {sPG}\ns_add_u32 {sTB}, {sTB}, {sTC}\ns_barrier')
    e.ts(7)
    def ldvot(k0, k1):
        for k in range(k0, k1):
            if k % 8 == 0 and k < 32: e(f's_lshl_b32 s40, {sN[k//8]}, 14\ns_add_u32 s40, s40, {sTB}')
            elif k == 32: e(f's_add_u32 s40, {sTB}, {4*BS}')
            elif k % 4 == 0: e('s_add_u32 s40, s40, 4096')
            e(f'buffer_load_dwordx4 {a(4*k,4)}, {vL16}, {sWS}, s40 offen offset:{(k%4)*1024} sc1')
    ldvot(0, 32)
    e.crit_off(sCR); e.crit_off(sCN, 1)
    sPm = ['s94', 's95', 's96', 's97']; sVm = ['s98', 's99', 's100', 's101']
    e(f's_lshl_b32 s41, {sU}, 14\ns_add_u32 s41, s41, {sCR}\ns_add_u32 s41, s41, {B_VOM*BS}')
    for g in range(4):
        e(f's_lshl_b32 s40, {sN[g]}, 14\ns_add_u32 s40, s40, {sCR}\ns_add_u32 {sP[g]}, s40, {(B_P+1)*BS}')
        e(f's_lshl_b32 s40, {sN[g]}, 10\ns_add_u32 s40, s40, {sCR}\ns_add_u32 {sPm[g]}, s40, {B_P*BS}')
        e(f's_lshl_b32 s40, {sN[g]}, 11\ns_add_u32 {sVm[g]}, s40, s41')
    e(f's_add_u32 {sFQ}, {sCR}, s3\ns_add_u32 {sFQ}, {sFQ}, {F_Q}\ns_mul_i32 {sXO}, {sS}, 40960')
    AC, AM, AT, BM = 24, 40, 56, 120
    e('s_mov_b32 s34, 0\ns_mov_b32 s29, 0\ns_mov_b32 s30, 0')
    e.ts(5)
    e('s_barrier')
    e.poll('v12', sFQ, 252)
    e('s_barrier')
    e.ts(1)
    rt = e.lab('rt'); bad = e.lab('bad')
    e(f'{rt}:')
    nv = e.o.get('vfirst', 0)
    pat = e.o.get('rseq')
    if pat:
        cnt = {'v': 0, 't': 0, 'm': 0}; seq = []
        for ch in pat: seq.append((ch, cnt[ch])); cnt[ch] += 1
        assert cnt == {'v': 8, 't': 16, 'm': 4}
    else:
        seq = [('v', k) for k in range(nv)] + [('t', k) for k in range(16)]
        for g in range(4): seq += [('m', g)] + [('v', k) for k in (2*g, 2*g+1) if k >= nv]
    for kind, k in seq:
        if kind == 't': e(f'buffer_load_dwordx4 {v(AT+4*k,4)}, {vL16}, {sWS}, {sP[k//4]} offen offset:{(k%4)*1024} sc1')
        elif kind == 'm': e(f'buffer_load_dwordx4 {v(AM+4*k,4)}, {vL16}, {sWS}, {sPm[k]} offen sc1')
        else: e(f'buffer_load_dwordx4 {v(BM+4*k,4)}, {vL16}, {sWS}, {sVm[k//2]} offen offset:{(k%2)*1024} sc1')
    for r in range(AC, AC+4): e(f'v_mov_b32 v{r}, 0')
    e('v_mov_b32 v13, s30')
    rf = e.o['rflag']; assert 2 <= rf < 28
    chk = e.lab('chk'); bk = e.lab('bk')
    lastm = {g: max(seq.index(x) for x in (('m', g), ('v', 2*g), ('v', 2*g+1))) for g in range(4)}
    e('s_waitcnt vmcnt(27)'); e.ts(2)
    for i, (kind, k) in enumerate(seq):
        if kind == 't': e(smf(AC, AT+4*k, a(8*k, 8)))
        for g in range(4):
            if lastm[g] == i: e(smf(AC, AM+4*g, v(BM+8*g, 8)))
        if i == rf:
            l = e.lab('nf'); e(f's_cbranch_vccnz {l}\ns_barrier\ns_mov_b32 s30, -1\n{l}:')
        if i < 27: e(f's_waitcnt vmcnt({26-i})')
        if i <= rf-2: r = {'t': AT, 'v': BM, 'm': AM}[kind]+4*k; e(f'v_max3_u32 v13, v13, v{r}, v{r+3}')
        if i == rf-1: e('v_cmp_eq_u32 vcc, -1, v13')
    e.ts(3)
    e(f'v_add_f32 v{AC}, v{AC}, v{AC+1}\nv_add_f32 v{AC+1}, v{AC+2}, v{AC+3}')
    e(f'v_cvt_pk_bf16_f32 v{AC+2}, v{AC}, v{AC+1}\nv_cmp_u_f32 vcc, v{AC}, v{AC+1}')
    e(f'v_mov_b32_dpp v{AC+1}, v{AC+2} quad_perm:[1,0,3,2] row_mask:0xf bank_mask:0xf\nv_perm_b32 v{AC}, v{AC+1}, v{AC+2}, v7\ns_cbranch_vccnz {chk}\n{bk}:')
    if e.o.get('ackts'): e.ts(2)
    pub(f'v{AC}')
    if e.o.get('ackts'): e('s_waitcnt vmcnt(0)')
    e.ts(4)
    okO = e.lab('okO'); slowO = e.lab('slowO')
    AO = 28
    ringr = list(range(152, 252, 4)) + list(range(40, 120, 4)); NR = e.o.get('nr', 32); ringr = ringr[:NR]
    def ffn():
        for i in range(4): e(f'v_lshlrev_b32 v{AO+2*i}, 16, v{36+i}\nv_and_b32 v{AO+2*i+1}, 0xffff0000, v{36+i}')
        for k in range(8):
            for tt in range(2): e(mf32(AO+4*tt, a(128+4*k, 4), 'v[20:23]' if tt else 'v[16:19]', AO+4*tt))
    def opass(explicit):
        def ldp(n):
            j, tt = n//2, n % 2
            if j < 32: so, va, im = sP[j//8], (vL16, 'v5', 'v9', 'v10')[2*tt + (j//4) % 2], (j % 4)*1024
            else: so, va, im = sPm[(j-32)//2], (vL16, 'v9')[tt], (j % 2)*1024
            e(f'buffer_load_dwordx4 {v(ringr[n % NR],4)}, {va}, {sWS}, {so} offen offset:{im} sc1')
        if not explicit:
            e('s_barrier')
            ldvot(32, 40)
            e(f's_add_u32 s43, {sXO}, 20480\nbuffer_load_dwordx2 v[36:37], v8, {sA}, {sXO} offen\nbuffer_load_dwordx2 v[38:39], v8, {sA}, s43 offen')
            for g in range(4):
                e(f's_lshl_b32 s40, {sN[g]}, 14\ns_add_u32 s40, s40, {sB0}\ns_add_u32 {sP[g]}, s40, {B_PT*BS}')
                e(f's_lshl_b32 s40, {sN[g]}, 11\ns_add_u32 s40, s40, {sB0}\ns_add_u32 {sPm[g]}, s40, {(B_PT+4)*BS}')
            e('s_waitcnt vmcnt(0)'); ffn()
            e(f's_add_u32 s43, {sFQ}, {F_P-F_Q}'); e.poll('v12', 's43', 252)
            e('s_barrier')
            e.ts(8)
        if explicit: ffn()
        for n in range(NR): ldp(n)
        if explicit: e('v_mov_b32 v13, 0')
        iss = NR
        for n in range(80):
            j, tt = n//2, n % 2; r = ringr[n % NR]
            if n == 0: e(f's_waitcnt vmcnt({iss-1})')
            e(mf32(AO+4*tt, a(4*j, 4) if j < 32 else v(BM+4*(j-32), 4), v(r, 4), AO+4*tt))
            if n < 79: e(f's_waitcnt vmcnt({iss-2-n})')
            if explicit: e(f'v_max3_u32 v13, v13, v{r}, v{r+1}\nv_max3_u32 v13, v13, v{r+2}, v{r+3}')
            if iss < 80: ldp(iss); iss += 1
            elif n == 80-NR and not explicit: e('s_barrier')
    opass(False)
    e(f'v_cmp_u_f32 vcc, v{AO}, v{AO+4}\ns_cbranch_vccnz {slowO}\n{okO}:')
    for i in range(4): e(f'v_cvt_pk_bf16_f32 v{42+i}, v{AO+2*i}, v{AO+2*i+1}')
    e(f's_add_u32 s43, {sXO}, 20480\nbuffer_store_dwordx2 v[42:43], v8, {sB}, {sXO} offen {e.o.get("outfl", "")}\nbuffer_store_dwordx2 v[44:45], v8, {sB}, s43 offen {e.o.get("outfl", "")}')
    e.ts(6)
    e.tsflush(9, 48)
    e(f's_add_u32 {sS}, {sS}, 2\ns_cmp_lt_u32 {sS}, {e.o["nseg"]}\ns_cbranch_scc1 L_R_loop\ns_branch L_end')
    e(f'{chk}:')
    if e.o['stamps']:
        e('v_mov_b32 v13, 0')
        for r in range(BM, BM+32, 2): e(f'v_max3_u32 v13, v13, v{r}, v{r+1}')
        e('v_cmp_eq_u32 vcc, -1, v13\ns_cmp_lg_u64 vcc, 0\ns_cselect_b32 s40, 0x1000000, 0x10000\ns_add_u32 s29, s29, s40') if False else e('v_cmp_eq_u32 vcc, -1, v13\ns_mov_b32 s41, 0x10000\ns_cmp_lg_u64 vcc, 0\ns_cselect_b32 s40, 0x1000000, s41\ns_add_u32 s29, s29, s40')
    e(f's_cmp_lt_u32 s34, 2\ns_cbranch_scc1 {bad}\nv_mov_b32 v13, 0')
    for r in range(AM, BM+32, 2): e(f'v_max3_u32 v13, v13, v{r}, v{r+1}')
    e(f'v_cmp_eq_u32 vcc, -1, v13\ns_cbranch_vccz {bk}')
    e(f'{bad}:\ns_add_u32 s34, s34, 1\ns_nop 7'); e.tmo(rt)
    e(f'{slowO}:\ns_nop 7')
    if e.o['stamps']: e('s_add_u32 s34, s34, 0x10000')
    opass(True)
    e(f's_nop 7\nv_cmp_eq_u32 vcc, -1, v13\ns_cbranch_vccz {okO}'); e.tmo(slowO)

def role_pf(e):
    e('L_PF:')
    e.wait_start(vt=30, vF='v3')
    e(f's_lshl_b32 s40, {sJ}, 2\ns_add_u32 s40, s40, {sW}\ns_cmp_eq_u32 s40, {16*4+2}\ns_cselect_b32 s30, 0x10001, 0\ns_mov_b32 s31, s30\ns_lshl_b32 s33, {sXQ}, 8\ns_add_u32 s33, s33, {B_FL*BS}')
    e(f'v_and_b32 v9, 31, v1\nv_lshlrev_b32 v9, 7, v9\nv_and_b32 v11, 7, v1\nv_lshlrev_b32 v11, 7, v11\nv_mov_b32 v12, 0\ns_mov_b32 {sS}, {sSIDE}\ns_add_u32 s32, s3, {F_Q}')
    e(f's_mul_i32 {sU}, {sXQ}, 10\ns_add_u32 {sU}, {sU}, {sJ}\ns_sub_u32 {sU}, {sU}, 16\nv_lshlrev_b32 v2, 4, v1')
    for r in range(4, 8): e(f'v_mov_b32 v{r}, -1')
    e(f's_add_u32 s38, {sU}, {B_VOM}\ns_lshl_b32 s38, s38, 14\ns_and_b32 s40, {sW}, 1\ns_lshl_b32 s40, s40, 12\ns_add_u32 s38, s38, s40')
    e(f's_lshr_b32 s39, {sU}, 2\ns_add_u32 s39, s39, {B_PT}\ns_lshl_b32 s39, s39, 14\ns_and_b32 s40, {sU}, 3\ns_lshl_b32 s40, s40, 11\ns_add_u32 s39, s39, s40')
    e(f's_lshr_b32 s40, {sU}, 3\ns_lshl_b32 s40, s40, 14\ns_and_b32 s41, {sU}, 7\ns_lshl_b32 s42, s41, 8\ns_add_u32 s42, s42, s40\ns_lshl_b32 s43, s41, 9\ns_add_u32 s43, s43, s40\ns_add_u32 s43, s43, {B_P*BS - 512}')
    e('v_and_b32 v8, 255, v2\nv_add_u32 v8, s42, v8\nv_add_u32 v10, s43, v2\nv_cmp_gt_u32 vcc, 32, v1\nv_cndmask_b32 v8, v10, v8, vcc')
    e('L_PF_loop:')
    l = e.lab('nv')
    e.bulk_off('s36'); e(f's_add_u32 s36, s36, {B_VF*BS}\ns_add_u32 s34, s36, 4096\nv_mov_b32 v25, 0')
    l3 = e.lab('n3'); e(f's_cmp_lg_u32 {sW}, 3\ns_cbranch_scc1 {l3}\nbuffer_load_dword v25, v11, {sWS}, s34 offen sc1\n{l3}:')
    e(f's_cmp_lg_u32 {sW}, 1\ns_cbranch_scc1 {l}')
    e.poll('v9', 's36', 24, D=1, sleep=e.o.get('vsleep', 2))
    if e.o.get('sync0', 0):
        e(f's_lshl_b32 s40, {sS}, 8\ns_or_b32 s40, s40, {sJ}\ns_cmp_lg_u32 s40, 16\ns_cbranch_scc1 {l}')
        e.crit_off('s37'); e(f's_add_u32 s37, s37, s33\ns_mov_b32 exec_lo, 0x10001\ns_mov_b32 exec_hi, 0x10001\nbuffer_store_dword v12, v3, {sWS}, s37 offen sc1\ns_mov_b64 exec, -1')
    e(f'{l}:')
    e.crit_off('s35'); e.crit_off('s37', 1)
    e('s_add_u32 s35, s35, s32\ns_add_u32 s37, s37, s33\ns_barrier\ns_barrier')
    e.poll('v12', 's35', 20)
    e(f's_barrier\ns_add_u32 s35, s35, {F_P-F_Q}\ns_mov_b64 exec, s[30:31]\ns_barrier')
    e(f'buffer_store_dword v12, v3, {sWS}, s37 offen sc1\ns_mov_b64 exec, -1')
    l4 = e.lab('n4'); e(f'v_cmp_eq_u32 vcc, -1, v25\ns_cbranch_vccz {l4}'); e.poll('v11', 's34', 25, D=1, sleep=2); e(f'{l4}:\ns_barrier')
    l = e.lab('c1'); l2 = e.lab('c2')
    e.crit_off('s36', 4)
    e(f's_cmp_eq_u32 {sW}, 1\ns_cbranch_scc1 {l}\ns_add_u32 s36, s36, s38')
    for o in range(4): e(f'buffer_store_dwordx4 v[4:7], v2, {sWS}, s36 offen offset:{o*1024} sc1')
    e(f's_branch {l2}\n{l}:\nbuffer_store_dwordx4 v[4:7], v8, {sWS}, s36 offen sc1')
    e.bulk_off('s36', 4); e('s_add_u32 s36, s36, s39')
    for o in range(2): e(f'buffer_store_dwordx4 v[4:7], v2, {sWS}, s36 offen offset:{o*1024} sc1')
    e(f'{l2}:\ns_waitcnt vmcnt(0)')
    e.poll('v12', 's35', 20)
    e(f's_barrier\ns_barrier\ns_add_u32 {sS}, {sS}, 2\ns_cmp_lt_u32 {sS}, {e.o["nseg"]}\ns_cbranch_scc1 L_PF_loop\ns_branch L_end')

HEAD = open('cdna_kernels/' + NAME[:-7] + '.s.ref').read().split('; Override launch')[0]
def gen(aslist=False, **o):
    e = G(**o)
    e.ts(0)
    if e.o.get('empty'): e('s_branch L_end')
    e(f'''s_cmp_ge_u32 s2, 256
    s_cbranch_scc1 L_end
    s_add_u32 s3, s2, {e.o.get('rot', 0)}
    s_and_b32 s3, s3, 7
    s_and_b32 s2, s2, 0xf8
    s_or_b32 {sS}, s2, s3
    s_getreg_b32 s3, hwreg(HW_REG_XCC_ID, 0, 3)
    s_or_b32 s2, s2, s3
    s_load_dwordx2 s[4:5], s[0:1], 96
    s_load_dwordx2 s[16:17], s[0:1], 88
    v_and_b32 v1, 63, v0
    v_lshrrev_b32 v2, 6, v0
    s_mov_b32 {sC0}, 0
    v_readfirstlane_b32 {sW}, v2
    s_lshr_b32 {sJ}, s2, 3
    s_mov_b32 {sTO}, 0
    s_mov_b32 s18, 256
    s_mov_b32 s19, 0x20000
    s_mov_b32 s6, {252<<20}
    s_mov_b32 s7, 0x20000
    s_waitcnt lgkmcnt(0)
    s_add_u32 s4, s4, 0x3fffff
    s_addc_u32 s5, s5, 0
    s_and_b32 s4, s4, 0xffc00000
    L_dispatch:
    s_and_b32 {sXQ}, s2, 3
    s_bfe_u32 {sSIDE}, s2, 0x10002
    s_cmp_lt_u32 {sJ}, 8
    s_cbranch_scc1 L_QK
    s_cmp_lt_u32 {sJ}, 16
    s_cbranch_scc1 L_VO
    s_cmp_lt_u32 {sJ}, 26
    s_cbranch_scc1 L_R
    s_cmp_lt_u32 {sJ}, 28
    s_cbranch_scc1 L_FFN''')
    role_ln(e); role_qk(e); role_vo(e); role_r(e); role_pf(e)
    e(f'L_restart:\ns_waitcnt vmcnt(0) lgkmcnt(0)\ns_barrier\ns_mov_b32 s2, {sS}\ns_mov_b32 {sC0}, 64\ns_branch L_dispatch')
    e(f'L_abort:\nv_mov_b32 v30, 8\nv_mov_b32 v31, 1\ns_mov_b64 exec, 1\nbuffer_atomic_add v31, v30, {sDBG}, 0 offen sc1\nL_end:\ns_endpgm')
    L = resolve(e.L)
    if e.o.get('xp'):
        out = []; zone = False; n = 0
        for ln in L:
            t = ln.strip()
            if t in ('L_QK_loop:', 'L_VF_loop:'): zone = True
            if t.startswith('poll_'): zone = False
            if zone and t.startswith('v_mfma'):
                n += 1
                if e.o['xp'] == 1 or (e.o['xp'] == 2 and n % 2): ln = '    s_nop 2'
            if zone and e.o['xp'] == 3 and t.startswith('ds_read_b128') and ', v2 ' in t: ln = '    ds_read_b32 ' + t.split()[1].split(':')[0].replace('[', '') + ', v2'
            out.append(ln)
        L = out
    body, nn = hazard.run(L)
    launch = f'; @launch kernel={NAME} grid=(256,1,1) block=(256,1,1) lds=163840' if aslist else '; @launch grid=(256,1,1) block=(256,1,1) lds=163840'
    return HEAD + launch + '\n.amdgcn_target "amdgcn-amd-amdhsa--gfx950"\n.text\n' + kernel_head(NAME) + '\n'.join(body) + '\n' + kernel_desc(NAME, 512, 102, 256)

if __name__ == '__main__':
    o = dict(kv.split('=') for kv in sys.argv[2:]); o = {k: (int(x) if x.lstrip('-').isdigit() else x) for k, x in o.items()}
    open(sys.argv[1], 'w').write(gen(**o))
```

```python
import sys
from asmlib import *
import hazard

NAME = 'parallel_sum__memory_aug_recurrent_mem_tr__dense_activation_silu__prompt_kernel'
BS = 16384
BULK = 36 << 20
XN = 172 << 20
DBGW = 180 << 20
B_MEM, B_P, B_FL, B_VOM, B_CAL = 0, 10, 20, 24, 22
F_R, F_Q, F_P = 0, 1024, 2048
B_PT, B_VF = 100, 110
L_X, L_MISC, L_W = 0, 40960, 57344
WPW = 26624
TMO = 1 << 17
NARR = 112
LOG2E = 1.4426950408889634
import struct
def f2u(x): return struct.unpack('<I', struct.pack('<f', x))[0]
CSC = f2u(LOG2E / 192 ** 0.5)

sWS, sA, sB, sDBG = 's[4:7]', 's[8:11]', 's[12:15]', 's[16:19]'
sXQ, sJ, sSIDE, sW, sU, sS, sTO, sC0 = 's20', 's21', 's22', 's23', 's25', 's26', 's27', 's28'

class G(A):
    def __init__(self, **o):
        super().__init__(); self.o = dict(leadQ=15, rflag=8, rseq='vvvvtttttttmvvtttmvvtttmtttm', fplead=34, stamps=0, nseg=64); self.o.update(o)
    def crit_off(self, dst, add=0, t0='s40', t1='s41'):
        e = self
        e(f's_add_u32 {t0}, {sS}, {add}\ns_lshr_b32 {t1}, {t0}, 2\ns_xor_b32 {t1}, {t1}, {t0}\ns_xor_b32 {t1}, {t1}, {sC0}\ns_and_b32 {t1}, {t1}, 1\ns_lshl_b32 {t1}, {t1}, 13')
        e(f's_lshr_b32 {t0}, {t0}, 1\ns_lshl_b32 {t0}, {t0}, 20\ns_or_b32 {dst}, {t0}, {t1}')
    def bulk_off(self, dst, add=0, t0='s40', t1='s41'):
        e = self
        e(f's_add_u32 {t0}, {sS}, {add}\ns_xor_b32 {t1}, {t0}, {sC0}\ns_and_b32 {t1}, {t1}, 1\ns_lshl_b32 {t1}, {t1}, 13')
        e(f's_lshr_b32 {t0}, {t0}, 1\ns_lshl_b32 {t0}, {t0}, 22\ns_add_u32 {t0}, {t0}, {BULK}\ns_or_b32 {dst}, {t0}, {t1}')
    def tmo(self, again):
        self(f's_add_u32 {sTO}, {sTO}, 1\ns_cmp_lt_u32 {sTO}, {TMO}\ns_cbranch_scc1 {again}\ns_branch L_abort')
    def srd(self, dst, slot, nbytes):
        self(f's_load_dwordx2 s[{dst}:{dst+1}], s[0:1], {slot*8}\ns_mov_b32 s{dst+2}, {nbytes}\ns_mov_b32 s{dst+3}, 0x20000')
    def ptrs(self, nA, nB):
        self(f's_waitcnt lgkmcnt(0)\ns_mov_b32 s8, s12\ns_mov_b32 s9, s13\ns_mov_b32 s10, {nA}\ns_mov_b32 s11, 0x20000\ns_mov_b32 s12, s14\ns_mov_b32 s13, s15\ns_mov_b32 s14, {nB}\ns_mov_b32 s15, 0x20000')
        self('s_add_u32 s4, s4, 0x3fffff\ns_addc_u32 s5, s5, 0\ns_and_b32 s4, s4, 0xffc00000')
    def rotword(self, dst):
        e = self
        e(f's_sub_u32 s40, s2, {sS}\ns_and_b32 {dst}, s40, 1\ns_bfe_u32 s41, s40, 0x10001\ns_lshl_b32 s41, s41, 9\ns_or_b32 {dst}, {dst}, s41')
        e(f's_bfe_u32 s41, s40, 0x10002\ns_lshl_b32 s41, s41, 18\ns_or_b32 {dst}, {dst}, s41')
    def arrive(self, extra=None, vt=2):
        e = self; l = e.lab('nla'); lp = e.lab('all'); dn = e.lab('alld')
        e.rotword('s42')
        e(f's_add_u32 s43, {"1" if extra is None else extra}, 128\nv_mov_b32 v{vt+2}, 0\nv_mov_b32 v{vt}, s43\nv_mov_b32 v{vt+1}, s42')
        e(f's_mov_b64 exec, 1\nbuffer_atomic_add_x2 {v(vt,2)}, v{vt+2}, {sDBG}, {sC0} offen sc0 sc1\ns_waitcnt vmcnt(0)')
        e(f'v_readfirstlane_b32 s40, v{vt}\ns_and_b32 s40, s40, 127\ns_cmp_lg_u32 s40, {NARR-1}\ns_cbranch_scc1 {l}')
        e(f'{lp}:\nbuffer_load_dwordx2 {v(vt,2)}, v{vt+2}, {sDBG}, {sC0} offen sc1\ns_waitcnt vmcnt(0)\nv_readfirstlane_b32 s40, v{vt}\nv_readfirstlane_b32 s41, v{vt+1}')
        e(f's_bfe_u32 s42, s40, 0x90007\ns_cmp_eq_u32 s42, 256\ns_cbranch_scc1 {dn}\ns_sleep 8'); e.tmo(lp)
        e(f'{dn}:\ns_and_b32 s41, s41, {255 | 255 << 9 | 255 << 18}\ns_cselect_b32 s41, 0x80000000, 0\ns_or_b32 s40, s40, s41\nv_mov_b32 v{vt}, s40')
        e(f'buffer_store_dword v{vt}, v{vt+2}, {sDBG}, {sC0} offen offset:128 sc1\n{l}:\ns_mov_b64 exec, -1')
    def start_prime(self, vt): self(f'v_mov_b32 v{vt}, 0\nbuffer_load_dword v{vt+1}, v{vt}, {sDBG}, {sC0} offen offset:128 sc1')
    def wait_start(self, vt=2, vF=None, primed=False):
        e = self; lp = e.lab('ws'); dn = e.lab('wsd'); ck = e.lab('wsc')
        if primed: e(f's_branch {ck}')
        e(f'{lp}:'); e.start_prime(vt); e.L[-1] += ' ;!'; e(f's_waitcnt vmcnt(0)\n{ck}:')
        e(f'v_readfirstlane_b32 s40, v{vt+1}\ns_cmp_lt_i32 s40, 0\ns_cbranch_scc1 L_restart\ns_cmp_lg_u32 s40, 0\ns_cbranch_scc1 {dn}\ns_sleep 4')
        e.tmo(lp)
        e(f'{dn}:\ns_bfe_u32 s41, s40, 0x40010\ns_cmp_ge_u32 s41, 5\ns_cselect_b32 {sC0}, 1, 0')
        c1x = e.o.get('c1x', 0)
        e(f's_bfe_u32 s41, s40, 0x40018\ns_cmp_ge_u32 s41, 5\ns_cselect_b32 s41, {1 ^ c1x}, {c1x}')
        e(f's_xor_b32 s3, {sXQ}, s41\ns_and_b32 s3, s3, {0 if e.o.get("nofine") else 1}\ns_lshl_b32 s3, s3, 14\ns_lshl_b32 s40, {sW}, 8\ns_add_u32 s3, s3, s40')
        if e.o.get('nofine'): e(f's_and_b32 s40, {sXQ}, 1\ns_lshl_b32 s40, s40, 12\ns_add_u32 s3, s3, s40')
        e(f's_lshr_b32 s40, {sXQ}, 1\ns_lshl_b32 s40, s40, 7\ns_add_u32 s3, s3, s40\ns_add_u32 s3, s3, {B_FL*BS}')
        if vF:
            if e.o.get('nofine'): e(f'v_bfe_u32 {vF}, v1, 4, 1\nv_lshlrev_b32 {vF}, 12, {vF}')
            else: e(f'v_bfe_u32 {vF}, v1, 4, 1\nv_xor_b32 {vF}, s41, {vF}\nv_lshlrev_b32 {vF}, 14, {vF}')
            e(f'v_lshrrev_b32 v{vt}, 5, v1\nv_lshl_add_u32 {vF}, v{vt}, 7, {vF}')
        e.ts(3)
    def startflush(self, vt):
        if self.o['stamps']:
            self(f's_xor_b32 {sS}, {sSIDE}, 1'); self.tsflush(8, vt)
    def poll_prime(self, vaddr, soff, r0):
        return [f'buffer_load_dword v{r0+i}, {vaddr}, {sWS}, {soff} offen sc1' for i in range(self.o.get('pd', 3))]
    def poll(self, vaddr, soff, r0, D=None, sleep=0, primed=False):
        e = self; lp = e.lab('poll'); dn = e.lab('pd')
        one = D is None and e.o.get('poll1', 0)
        if D is None: D = e.o.get('pd', 3)
        if one: e('s_mov_b64 exec, 1')
        iss = lambda i: e(f'buffer_load_dword v{r0+i}, {vaddr}, {sWS}, {soff} offen sc1')
        for i in range(0 if primed else D):
            iss(i)
            if i < D-1: e('s_nop 15')
        e(f'{lp}:')
        for i in range(D):
            e(f's_waitcnt vmcnt({D-1})\nv_cmp_eq_u32 vcc, -1, v{r0+i}\ns_cbranch_vccz {dn}')
            if sleep: e(f's_sleep {sleep}')
            iss(i)
        e.tmo(lp)
        e(f'{dn}:')
        if one: e('s_mov_b64 exec, -1')
    def ts(self, i):
        if self.o['stamps'] and (self.o.get('tsmask', -1) >> i) & 1: self(f'{"s_memrealtime" if self.o["stamps"] == 1 else "s_memtime"} s[{70+2*i}:{71+2*i}]')
    def tsflush(self, n, vbase):
        if not self.o['stamps']: return
        e = self
        e(f's_waitcnt lgkmcnt(0)\ns_lshl_b32 s40, s2, 2\ns_add_u32 s40, s40, {sW}\ns_lshl_b32 s40, s40, 6\ns_add_u32 s40, s40, {sS}\ns_lshl_b32 s40, s40, 6\ns_add_u32 s40, s40, {DBGW}')
        e(f'v_mov_b32 v{vbase}, 0')
        for i in range(n): e(f'v_writelane_b32 v{vbase}, s{70+2*i}, {i}')
        e(f'v_writelane_b32 v{vbase}, s34, 15\nv_writelane_b32 v{vbase}, s29, 14')
        e(f'v_lshlrev_b32 v{vbase+1}, 2, v1\ns_mov_b64 exec, 0xffff\nbuffer_store_dword v{vbase}, v{vbase+1}, {sWS}, s40 offen\ns_mov_b64 exec, -1')

def resolve(lines):
    out = []; nl = nv = 0; tag = {}; masked = False
    for ln in lines:
        t = ln.strip()
        w = t.replace(',', ' ').split()
        if len(w) > 2 and w[0].startswith('s_') and w[1] == 'exec': masked = w[2:] != ['-1']
        if t.startswith('@wl '): out.append(f'    s_waitcnt lgkmcnt({min(15, nl - tag[t[4:]])})'); continue
        if t.startswith('@wv '): out.append(f'    s_waitcnt vmcnt({min(63, nv - tag[t[4:]])})'); continue
        if t.startswith('ds_') and not masked: nl += 1
        if t.startswith('buffer_') and not masked and ';!' not in t: nv += 1
        ln = ln.split(';!')[0].rstrip()
        assert not (masked and ';@' in t)
        if ';@' in t:
            tag[t.split(';@')[1].strip()] = nl if t.startswith('ds_') else nv
            ln = ln.split(';@')[0].rstrip()
        out.append(ln)
    return out

def xsum(e, r, t, op='v_add_f32', steps=(16, 32)):
    for st in steps:
        e(f'v_mov_b32 v{t}, v{r}\nv_permlane{st}_swap_b32 v{r}, v{t}\n{op} v{r}, v{r}, v{t}')

def role_ln(e):
    e('L_LN:')
    e(f's_and_b32 s40, s2, 7\ns_lshl_b32 s40, s40, 2\ns_add_u32 s40, s40, {sJ}\ns_sub_u32 s40, s40, 28\ns_lshl_b32 s40, s40, 2\ns_add_u32 s42, s40, {sW}')
    e(f'v_and_b32 v2, 15, v1\nv_lshrrev_b32 v3, 4, v1\nv_mul_u32_u24 v2, 1280, v2\nv_lshl_add_u32 v2, v3, 4, v2\ns_mul_i32 s43, s42, {16*1280}')
    e.ptrs(2621440, 10240)
    R0, F0 = 8, 88
    for k in range(20): e(f'buffer_load_dwordx4 {v(R0+4*k,4)}, v2, {sA}, s43 offen offset:{k*64}')
    e('v_mov_b32 v4, 0\nv_mov_b32 v5, 0')
    for k in range(20):
        e(f's_waitcnt vmcnt({19-k})')
        for r in range(4):
            x = R0+4*k+r; f = F0+8*k+2*r
            e(f'v_lshlrev_b32 v{f}, 16, v{x}\nv_and_b32 v{f+1}, 0xffff0000, v{x}\nv_add_f32 v4, v4, v{f}\nv_add_f32 v5, v5, v{f+1}')
    e('v_add_f32 v4, v4, v5'); xsum(e, 4, 5)
    e(f'v_mul_f32 v4, {f2u(1/640)}, v4')
    e('v_mov_b32 v5, 0\nv_mov_b32 v6, 0')
    for i in range(0, 160, 2):
        e(f'v_sub_f32 v7, v{F0+i}, v4\nv_sub_f32 v248, v{F0+i+1}, v4\nv_fmac_f32 v5, v7, v7\nv_fmac_f32 v6, v248, v248')
    e('v_add_f32 v5, v5, v6'); xsum(e, 5, 6)
    e(f'v_mul_f32 v5, {f2u(1/640)}, v5')
    e('v_cvt_pk_bf16_f32 v6, v4, v5\nv_lshlrev_b32 v4, 16, v6\nv_and_b32 v5, 0xffff0000, v6')
    e(f'v_add_f32 v5, {f2u(1e-5)}, v5\nv_cvt_pk_bf16_f32 v5, v5, v5\nv_lshlrev_b32 v5, 16, v5\nv_sqrt_f32 v5, v5\nv_cvt_pk_bf16_f32 v5, v5, v5\nv_lshlrev_b32 v5, 16, v5\nv_rcp_f32 v5, v5')
    e(f's_lshr_b32 s40, s42, 1\ns_lshl_b32 s40, s40, 16\ns_and_b32 s41, s42, 1\ns_lshl_b32 s41, s41, 10\ns_add_u32 s40, s40, s41\ns_add_u32 s40, s40, {XN}\nv_lshlrev_b32 v2, 4, v1\nv_add_u32 v3, 40960, v2')
    for k in range(20):
        for r in range(4):
            x = R0+4*k+r; f = F0+8*k+2*r
            e(f'v_sub_f32 v{f}, v{f}, v4\nv_sub_f32 v{f+1}, v{f+1}, v4\nv_cvt_pk_bf16_f32 v6, v{f}, v{f+1}\nv_lshlrev_b32 v{f}, 16, v6\nv_and_b32 v{f+1}, 0xffff0000, v6')
            e(f'v_mul_f32 v{f}, v{f}, v5\nv_mul_f32 v{f+1}, v{f+1}, v5\nv_cvt_pk_bf16_f32 v{x}, v{f}, v{f+1}')
        e(f'buffer_store_dwordx4 {v(R0+4*k,4)}, v2, {sWS}, s40 offen offset:{(k%2)*2048} sc1')
        if k < 12: e(f'buffer_store_dwordx4 {v(R0+4*k,4)}, v3, {sWS}, s40 offen offset:{(k%2)*2048} sc1')
        if k % 2: e('s_add_u32 s40, s40, 4096')
    e(f's_waitcnt vmcnt(0)\ns_barrier\ns_cmp_lg_u32 {sW}, 0\ns_cbranch_scc1 L_LN2')
    e.ts(2)
    e.arrive()
    e('L_LN2:'); e.wait_start(vt=30); e.startflush(30)
    e(f's_cmp_ge_u32 {sJ}, 29\ns_cbranch_scc1 {"L_CP" if e.o.get("cpf", 1) else "L_end"}')
    e(f'v_mov_b32 v12, 0\ns_mov_b32 {sS}, {sSIDE}\nL_RF_loop:')
    e.crit_off('s35'); e('s_add_u32 s35, s35, s3')
    e.poll('v12', 's35', 20, D=4)
    e(f's_add_u32 {sS}, {sS}, 2\ns_cmp_lt_u32 {sS}, {e.o["nseg"]}\ns_cbranch_scc1 L_RF_loop\ns_branch L_end')
    e(f'L_CP:\ns_cmp_lg_u32 {sJ}, 29\ns_cbranch_scc1 L_end')
    e(f's_getpc_b64 s[8:9]\nL_pc:\ns_sub_u32 s8, s8, L_pc-L_QK\ns_subb_u32 s9, s9, 0\ns_mov_b32 s10, L_hot_end-L_QK\ns_mov_b32 s11, 0x20000')
    e(f'v_mov_b32 v12, 0\nv_lshlrev_b32 v2, 6, v1\ns_lshl_b32 s42, {sW}, 12\ns_mov_b32 {sS}, {sSIDE}')
    e.crit_off('s35'); e(f's_add_u32 s35, s35, s3\ns_add_u32 s35, s35, {F_P}\nL_CP_loop:')
    for q in range(3): e(f's_add_u32 s43, s42, {q*16384}\nbuffer_load_dword v{4+q}, v2, s[8:11], s43 offen sc1')
    e(f'buffer_load_dword v8, v12, {sWS}, s35 offen sc1\ns_waitcnt vmcnt(0)\nv_cmp_eq_u32 vcc, -1, v8\ns_cbranch_vccz L_end\ns_sleep 24')
    e.tmo('L_CP_loop')

class Units:
    def __init__(self, keys_reg, keys_lds):
        self.m = {}
        for i, k in enumerate(keys_reg):
            self.m[k] = ('a', 8*i) if i < 32 else ('v', 136 + 8*(i-32))
        assert len(keys_reg) <= 47 and len(keys_lds) <= 13
        for i, k in enumerate(keys_lds): self.m[k] = ('l', i)
    def reg(self, k, off=0, n=8):
        t, r = self.m[k]; assert t != 'l'
        return (a if t == 'a' else v)(r+off, n)
    def islds(self, k): return self.m[k][0] == 'l'
    def ldsoff(self, k, half): return self.m[k][1]*2048 + half*1024

sROT = 's36'
vL16, vWL = 'v2', 'v3'

def common_wsetup(e):
    e(f's_mul_i32 s48, {sSIDE}, {2 if e.o.get("srot", 1) else 0}\ns_xor_b32 {sROT}, {sXQ}, s48')
    e(f'v_lshlrev_b32 {vL16}, 4, v1\ns_mul_i32 s40, {sW}, {WPW}\ns_add_u32 s40, s40, {L_W}\nv_add_u32 {vWL}, s40, {vL16}')

def load_weights(e, U, chunks, started, sX, full, setup, sizes):
    n = len(chunks); TMP = 40; idn = e.lab('w'); assert n % 4 == 0
    e(f's_mul_i32 s44, {sW}, 3072')
    def issue(c):
        ch = chunks[c]
        ch['soff'](); base = (c % 4)*12288
        for ii in range(3):
            e(f's_add_u32 m0, s44, {base + 1024*ii}\nbuffer_load_dwordx4 v{ch["voff"]+ii}, {ch["srd"]}, s45 offen {e.o.get("wfl", "")} lds ;@{idn}_{c}')
    e.ptrs(sizes, sizes)
    e.ts(1)
    for c in range(3): issue(c)
    e.L += setup
    e(f's_mul_i32 s44, {sW}, 3072')
    e.rotword('s42')
    e(f'v_mov_b32 v32, 128\nv_mov_b32 v33, s42\nv_mov_b32 v34, 0\ns_and_b32 s46, {sJ}, 7\ns_lshl_b32 s47, {sW}, 3\ns_or_b32 s46, s46, s47')
    for c in range(n):
        e(f'@wv {idn}_{c}\ns_barrier')
        if c in (0, 10, 20, 30): e.ts(4 + c//10)
        if 1 <= c <= 8:
            e(f's_cmp_eq_u32 s46, {c-1}\ns_cselect_b64 exec, 1, 0\nbuffer_atomic_add_x2 v[32:33], v34, {sDBG}, {sC0} offen sc1\ns_mov_b64 exec, -1')
        if c == n-7: e.start_prime(30)
        if c+3 < n: issue(c+3)
        if c == n-3:
            started()
            e(f's_lshl_b32 {sX}, {sSIDE}, 3\ns_add_u32 {sX}, {sX}, {sROT}\ns_lshl_b32 {sX}, {sX}, 13\ns_add_u32 {sX}, {sX}, {XN}')
        if c >= n-3:
            k0 = 6*(c-n+3); L = xdma_list(k0, k0+6, sX); L[-1] += f' ;@{idn}_x{k0}'
            for x in L: e(x)
        base = (c % 4)*12288; pend = []; t = TMP
        for (key, ro, va, imm) in chunks[c]['reads']:
            if U.islds(key):
                e(f'ds_read_b64_tr_b16 {v(t,2)}, {va} offset:{base+imm}'); pend.append((key, ro, t)); t += 2
            else:
                e(f'ds_read_b64_tr_b16 {U.reg(key, ro, 2)}, {va} offset:{base+imm}')
        e('s_waitcnt lgkmcnt(0)')
        for i in range(0, len(pend), 2):
            key, ro, t = pend[i]; assert pend[i+1][0] == key and pend[i+1][1] == ro+2 and ro % 4 == 0
            e(f'ds_write_b128 {vWL}, {v(t,4)} offset:{U.ldsoff(key, ro//4)}')
    e(f'@wv {idn}_x{6 if full else 12}\ns_waitcnt lgkmcnt(0)\ns_barrier')
    if full: xdma(e, 18, 20, sX)
    e.ts(2); e.startflush(30)

def setup_colchunk(e, vo, vr, sStride):
    for ii in range(3):
        e(f'v_add_u32 v10, {64*ii}, v1\nv_mul_u32_u24 v11, 2731, v10\nv_lshrrev_b32 v11, 16, v11')
        e(f'v_mul_u32_u24 v12, 24, v11\nv_sub_u32 v10, v10, v12\ns_lshl_b32 s40, {sW}, 3\nv_add_u32 v11, s40, v11\nv_mul_lo_u32 v11, v11, {sStride}\nv_lshl_add_u32 v{vo+ii}, v10, 4, v11')
    e(f'v_lshrrev_b32 v10, 4, v1\nv_lshlrev_b32 v10, 3, v10\nv_bfe_u32 v11, v1, 2, 2\nv_add_u32 v10, v10, v11\nv_mul_u32_u24 v10, 384, v10')
    e(f'v_and_b32 v11, 3, v1\nv_lshl_add_u32 v10, v11, 3, v10\ns_xor_b32 s40, {sW}, s48\ns_mul_i32 s40, s40, 96\nv_add_u32 v{vr}, s40, v10')

def col_chunks(e, srd, vo, vr, sBase, sStep, keyf):
    out = []
    for kp in range(20):
        def soff(kp=kp): e(f's_lshl_b32 s45, {sROT}, 2\ns_add_u32 s45, s45, {kp}\ns_cmp_ge_u32 s45, 20\ns_cselect_b32 s43, 20, 0\ns_sub_u32 s45, s45, s43\ns_mul_i32 s45, {sStep}, s45\ns_add_u32 s45, s45, {sBase}')
        reads = []
        for t in range(3):
            for q in range(2): reads.append((keyf(t, kp//2), 4*(kp % 2)+2*q, f'v{vr}', 32*t + 1536*q))
        out.append(dict(srd=srd, voff=vo, soff=soff, reads=reads))
    return out

def xdma_list(k0, k1, sX, t0='s44', t1='s45'):
    per = (k1-k0)*2 // 4; L = []
    for i in range(per):
        if i == 0: L.append(f's_mul_i32 {t0}, {sW}, {per*1024}\ns_add_u32 m0, {t0}, {L_X + k0*2048}\ns_add_u32 {t1}, m0, {sX}')
        elif i % 4 == 0: L.append(f's_add_u32 m0, m0, 4096\ns_add_u32 {t1}, {t1}, 4096')
        L.append(f'buffer_load_dwordx4 {vL16}, {sWS}, {t1} offen offset:{(i % 4)*1024} sc1 lds')
    return L
def xdma(e, k0, k1, sX):
    for x in xdma_list(k0, k1, sX): e(x)

def memloads_def(e, MF, sM):
    def ld(k, fl=''):
        e(f'buffer_load_dwordx4 {v(MF+4*k,4)}, {vL16}, {sWS}, {sM[k//2]} offen offset:{(k%2)*1024} {fl}')
    return ld

def mem_offs(t, sM, sCR):
    t(f's_and_b32 {sM[4]}, s3, 0x4000\ns_add_u32 {sM[4]}, {sM[4]}, {sCR}')
    for pr in range(5):
        t(f's_add_u32 s40, {sROT}, {pr}\ns_cmp_ge_u32 s40, 5\ns_cselect_b32 s41, 5, 0\ns_sub_u32 s40, s40, s41\ns_lshl_b32 s40, s40, 15\ns_add_u32 {sM[pr]}, {sM[4]}, s40')

def smf(D, Af, B, idx='v4'): return f'v_smfmac_f32_16x16x64_bf16 {v(D,4)}, {v(Af,4)}, {B}, {idx}'
def mf32(D, Aop, Bop, C=None): return f'v_mfma_f32_16x16x32_bf16 {v(D,4)}, {Aop}, {Bop}, {"0" if C is None else v(C,4)}'
def mf16(D, Aop, Bop, C=None): return f'v_mfma_f32_16x16x16_bf16 {v(D,4)}, {Aop}, {Bop}, {"0" if C is None else v(C,4)}'

class Ring:
    def __init__(self, e, U, keys, base, ns):
        self.e, self.U, self.keys, self.base, self.ns = e, U, [k for k in keys if U.islds(k)], base, ns
        self.reset()
    def reset(self): self.q = 0; self.nq = 0; self.emitted = 0; self.pend = []
    def queue(self):
        if self.nq < len(self.keys):
            k = self.keys[self.nq]; r = self.base + 8*(self.nq % self.ns)
            self.pend += [f'ds_read_b128 {v(r+4*h,4)}, {vWL} offset:{self.U.ldsoff(k,h)}' for h in range(2)]
            self.nq += 1
    def fill(self, n=1):
        c = 0
        while self.pend and c < n: self.e(self.pend.pop(0)); self.emitted += 1; c += 1
        return c
    def prime(self):
        self.reset()
        for _ in range(self.ns): self.queue()
        self.fill(99)
    def wait(self, key, other=0):
        if self.U.islds(key):
            assert self.keys[self.q] == key
            need = 2*(self.q+1)
            if self.emitted < need: self.fill(need - self.emitted)
            self.e(f's_waitcnt lgkmcnt({self.emitted - need + other})')
    def op(self, D, Af, key):
        if not self.U.islds(key): self.e(smf(D, Af, self.U.reg(key))); return
        self.e(smf(D, Af, v(self.base + 8*(self.q % self.ns), 8)))
        self.q += 1; self.queue()
    def state(self): return (self.q, self.nq, self.emitted, tuple(self.pend))

NPRE = 7
def crit_pass1(e, ring, MF, sM, tiles, vMax, zero_regs, KO=tuple(range(10))):
    ld0 = memloads_def(e, MF, sM)
    ld = lambda k, fl: ld0(KO[k], fl)
    slow, ok = e.lab('slow'), e.lab('ok')
    NPRE = e.o.get('npre', 7); PACE = e.o.get('pace', 14)
    ek = [0 if e.o.get('early', 1) else 2]
    def early():
        e(f'v_cmp_u_f32 vcc, v{MF+4*KO[0]}, v{MF+4*KO[1]+3}' if ek[0] == 0 else f's_cbranch_vccnz {slow}'); ek[0] += 1
    def body(fl, first):
        zr = list(zero_regs)[::2]; per = -(-len(zr)//(NPRE-1))
        for k in range(NPRE):
            ld(k, fl)
            if k == 0 and not first: e('s_waitcnt lgkmcnt(0)'); ring.prime()
            if k < NPRE-1:
                z = [zr.pop(0) for _ in range(min(per, len(zr)))]; left = max(0, PACE - len(z))
                for j, r in enumerate(z):
                    n = (left*(j+1))//len(z) - (left*j)//len(z)
                    e(f'v_mov_b64 {v(r,2)}, 0' + (f'\ns_nop {n-1}' if n else ''))
        issued = NPRE
        for k in range(10):
            e(f's_waitcnt vmcnt({issued-1-k})')
            if k == 0 and first: e.ts(2)
            todo = ['ld'] if issued < 10 else []
            for i, (D, kf) in enumerate(tiles):
                ring.wait(kf(KO[k]))
                ring.op(D, MF+4*KO[k], kf(KO[k]))
                if i == len(tiles)-1:
                    ring.fill(99)
                    if todo: ld(issued, fl); issued += 1
                    elif first and ek[0] < 2 and k >= 3 and len(tiles) == 3: early()
                elif ring.fill(1): pass
                elif todo: todo.pop(); ld(issued, fl); issued += 1
                elif first and ek[0] < 2: early()
    e.ts(1)
    body('', True)
    end = ring.state()
    backs = []
    def nancheck(D, summed=False):
        c = e.lab('chk'); bk = e.lab('bk'); backs.append((c, bk))
        if summed: return [f'v_cmp_u_f32 vcc, v{D}, v{D+2}', f's_cbranch_vccnz {c}\n{bk}:']
        return [f'v_cmp_u_f32 s[62:63], v{D}, v{D+1}', f'v_cmp_u_f32 vcc, v{D+2}, v{D+3}', f's_or_b64 vcc, vcc, s[62:63]\ns_cbranch_scc1 {c}\n{bk}:']
    def slowpath():
        (c, bk), = backs
        e(f'{c}:\ns_cmp_lt_u32 s34, 2\ns_cbranch_scc1 {slow}\nv_mov_b32 {vMax}, 0')
        for k in range(10):
            r = MF+4*k; e(f'v_max3_u32 {vMax}, {vMax}, v{r}, v{r+1}\nv_max3_u32 {vMax}, {vMax}, v{r+2}, v{r+3}')
        e(f'v_cmp_eq_u32 vcc, -1, {vMax}\ns_cbranch_vccz {bk}')
        go = e.lab('go'); e.tmo(go); e(f'{go}:')
        e(f'{slow}:\ns_add_u32 s34, s34, 1\ns_nop 7')
        if e.o.get('damp', 0): e('s_mov_b64 s[30:31], 0')
        body('sc1', False)
        assert ring.state() == end
        e(f's_nop 7\ns_branch {ok}')
    e(f'{ok}:')
    return nancheck, slowpath

class Tok1:
    def __init__(self, e, U, tiles, XB, ST):
        self.e, self.U, self.tiles, self.XB, self.ST, self.id = e, U, tiles, XB, ST, e.lab('t')
    def lds_keys(self, kp): return [kf(kp//2) for (_, kf) in self.tiles if self.U.islds(kf(kp//2))]
    def reads(self, kp):
        b = kp % 3
        out = [f'ds_read_b128 {v(self.XB+8*b+4*tt,4)}, {vL16} offset:{L_X + kp*2048 + tt*1024}' for tt in range(2)]
        out += [f'ds_read_b128 {v(self.ST+8*b+4*i,4)}, {vWL} offset:{self.U.ldsoff(k, kp%2)}' for i, k in enumerate(self.lds_keys(kp))]
        out[-1] += f' ;@{self.id}_{kp}'
        return out
    def prologue(self): return self.reads(0) + self.reads(1)
    def run(self, hooks, extra, late=None):
        e, U = self.e, self.U
        extra = list(extra); hk = list(hooks[-1]()) if -1 in hooks else []; late = late or {}
        cost = lambda x: 2 if x.startswith(('v_exp', 'v_rcp', 'v_perml', 'buffer_', 'ds_', 's_')) or 'barrier' in x else 1
        def fill(room):
            c = 0
            while extra and c < room:
                x = extra[0]
                if x == '-':
                    if c == 0: extra.pop(0)
                    break
                if x == '|':
                    extra.pop(0)
                    if c: break
                    continue
                if c + cost(x) > room or (room < 2 and x.startswith('@')): break
                e(extra.pop(0)); c += cost(x)
        e(f'@wl {self.id}_0'); NT = 2*len(self.tiles); since = 9
        for kp in range(20):
            nxt = self.reads(kp+2) if kp+2 < 20 else []
            b = kp % 3; lk = self.lds_keys(kp); n = 0
            for (acc, kf) in self.tiles:
                k = kf(kp//2)
                Aop = v(self.ST+8*b+4*lk.index(k), 4) if U.islds(k) else U.reg(k, 4*(kp % 2), 4)
                for tt in range(2):
                    e(mf32(acc+4*tt, Aop, v(self.XB+8*b+4*tt, 4), None if kp == 0 else acc+4*tt)); n += 1; since += 1
                    last = n == NT and kp < 19
                    if last: e(f'@wl {self.id}_{kp+1}')
                    n1 = len(e.L)
                    if n == NT and kp in hooks: hk += hooks[kp]()
                    if len(e.L) > n1: pass
                    elif (kp, n) in late: e(late[(kp, n)])
                    elif nxt: e(nxt.pop(0)); fill(1)
                    elif hk and not last and (since >= 4 or not 'buffer_' in hk[0]):
                        if 'buffer_' in hk[0]: since = 0
                        e(hk.pop(0))
                    elif last and extra and extra[0].startswith(('s_', '@')): pass
                    else: fill(2)
            assert not nxt
        assert not hk and not [x for x in extra if x not in '|-'], (hk, extra)

def salu_groups(t):
    sal = [x.strip() for x in t.L]; L = []; cur = []
    for x in sal:
        if len(cur) == 3 or (x.startswith('s_cmp') and len(cur) == 2): L.append('\n'.join(cur)); cur = []
        cur.append(x)
    L.append('\n'.join(cur))
    return L

def schedule(e, main, ops, pos0, burst=99):
    pos = dict(pos0); n0 = len(e.L); ops = list(ops); main = list(main)
    cur = lambda: sum(1 for x in e.L[n0:] if not x.strip().endswith(':'))
    def dist(d):
        L = [x.strip() for x in e.L[n0:] if not x.strip().endswith(':')]
        a = len(L) - pos[d] - 1
        ism = lambda x: x.startswith(('v_mfma', 'v_smfmac'))
        if pos[d] < 0 or ism(L[pos[d]]):
            later = [i for i in range(max(pos[d]+1, 0), len(L)) if ism(L[i])]
            if later: a = max(a, 4*len(later) + len(L) - later[-1] - 1)
        return a
    def ready(o): return all(d in pos and dist(d) >= k for d, k in o[3])
    def emit(o): pos[o[0]] = cur(); e(o[1]); ops.remove(o)
    def fillers(n):
        for o in [o for o in ops if o[2] == 's' and ready(o)]: emit(o)
        for _ in range(n):
            c = [o for o in ops if o[2] == 'v' and ready(o)]
            if c: emit(c[0])
    while main:
        c = [o for o in ops if o[2] == 'm' and ready(o)]
        if c: emit(c[0]); fillers(2); continue
        nm, fn = main.pop(0); c0 = cur(); fn(); L = [x.strip() for x in e.L[n0:] if not x.strip().endswith(':')]; pos[nm] = max(i for i in range(c0, len(L)) if L[i].startswith('v_smf')); fillers(1)
        if len([o for o in ops if o[2] == 'v' and all(d in pos for d, _ in o[3])]) >= burst: fillers(1)
    while ops:
        c = [o for o in ops if ready(o)]
        if c: emit(c[0])
        else: e('s_nop 0')

def flagclear_bulk(e, blk, vt):
    e(f'v_lshlrev_b32 v{vt}, 22, v1\ns_lshl_b32 s40, {sSIDE}, 13\ns_add_u32 s40, s40, s42\ns_add_u32 s40, s40, {BULK + blk*BS}')
    e(f'v_mov_b32 v{vt+1}, -1\ns_mov_b32 exec_hi, 0\nbuffer_store_dword v{vt+1}, v{vt}, {sWS}, s40 offen sc1\ns_mov_b32 exec_hi, -1')

def role_vo(e):
    keys_l = [('v', 2, k) for k in range(10)] + [('v', 1, k) for k in (2, 5, 8)]
    keys_r = [('o', u, k) for u in range(10) for k in range(3)] + [('v', t, k) for t in range(2) for k in range(10) if ('v', t, k) not in keys_l]
    U = Units(keys_r, keys_l)
    sFFN, sSTR, sWB, sSTP, sOB = 's29', 's30', 's31', 's32', 's33'
    sCR, sCR2, sB0, sB1, sX, sM = 's35', 's36', 's37', 's38', 's39', ('s46', 's47', 's48', 's58', 's59')
    sSL, sFR = 's49', 's50'
    L_VX, L_VM = L_MISC, L_MISC + 12288
    e('L_VO:')
    e('s_mov_b32 s47, 7864320')
    e(f's_lshl_b32 {sU}, {sXQ}, 3\ns_add_u32 {sU}, {sU}, {sJ}\ns_sub_u32 {sU}, {sU}, 8\ns_mov_b32 {sFFN}, 0\ns_mov_b32 {sSTR}, 12288\ns_mov_b32 s42, {sU}\ns_branch L_VF')
    e('L_FFN:')
    e('s_mov_b32 s47, 1966080')
    e(f's_lshl_b32 {sU}, {sXQ}, 1\ns_add_u32 {sU}, {sU}, {sJ}\ns_sub_u32 {sU}, {sU}, 26\ns_mov_b32 {sFFN}, 1\ns_mov_b32 {sSTR}, 3072\ns_add_u32 s42, {sU}, 32')
    e('L_VF:')
    e(f's_lshr_b32 s40, s42, 3\ns_lshl_b32 s40, s40, 14\ns_and_b32 s41, s42, 7\ns_lshl_b32 s41, s41, 10\ns_add_u32 {sSL}, s40, s41\ns_lshl_b32 s51, s42, 7')
    e(f's_mul_i32 {sWB}, {sU}, 384\ns_lshl_b32 {sSTP}, {sSTR}, 5\ns_mul_i32 {sOB}, {sU}, 245760')
    common_wsetup(e)
    VO1, VR1, VO2, VR2 = 16, 19, 20, 23
    setup_colchunk(e, VO1, VR1, sSTR)
    nset = len(e.L)
    for ii in range(3):
        e(f's_mul_i32 s40, {sW}, 192\ns_add_u32 s40, s40, {64*ii}\ns_min_u32 s40, s40, 576\nv_add_u32 v10, s40, v1\nv_mul_u32_u24 v11, 1639, v10\nv_lshrrev_b32 v11, 16, v11')
        e(f'v_mul_u32_u24 v12, 40, v11\nv_sub_u32 v12, v10, v12\nv_mul_u32_u24 v11, 1280, v11\nv_lshl_add_u32 v{VO2+ii}, v12, 4, v11')
    e(f'v_lshrrev_b32 v10, 2, v1\nv_mul_u32_u24 v10, 640, v10\nv_and_b32 v11, 3, v1\nv_lshl_add_u32 v10, v11, 3, v10\ns_mul_i32 s40, {sW}, 160\nv_add_u32 v{VR2}, s40, v10')
    chunks = col_chunks(e, sA, VO1, VR1, sWB, sSTP, lambda t, k: ('v', t, k))
    for r16 in range(12):
        for hf in range(2):
            def soff(r16=r16, hf=hf): e(f's_mul_i32 s45, s48, {(3 if r16 < 6 else -3)*16*1280}\ns_add_u32 s45, s45, {sOB}\ns_add_u32 s45, s45, {r16*16*1280 + hf*640}')
            chunks.append(dict(srd=sB, voff=VO2, soff=soff, reads=[(('o', 5*hf+uu, r16//4), 2*(r16 % 4), f'v{VR2}', 32*uu) for uu in range(5)]))
    e(f'v_and_b32 v13, 15, v1\nv_lshrrev_b32 v14, 4, v1')
    e(f'v_and_b32 v4, 1, v1\nv_mul_u32_u24 v4, 0xaaaa, v4\nv_add_u32 v4, 0x4444, v4')
    for (dst, tau) in ((5, 0), (6, 1)):
        e(f's_mul_i32 s40, {sW}, 3\ns_add_u32 s40, s40, {tau}\ns_lshr_b32 s41, s40, 1\ns_and_b32 s40, s40, 1')
        e(f's_lshl_b32 s43, s41, 10\ns_lshl_b32 s44, s40, 3\ns_add_u32 s43, s43, s44\ns_add_u32 s43, s43, {L_VX}\nv_add_u32 v{dst}, s43, {vL16}')
        e(f's_lshl_b32 s43, s41, 9\ns_lshl_b32 s44, s40, 2\ns_add_u32 s43, s43, s44\ns_add_u32 s43, s43, {L_VM}\nv_mov_b32 v{dst+2}, s43')
    e('''v_lshrrev_b32 v10, 3, v13
    v_lshlrev_b32 v10, 8, v10
    v_bfe_u32 v11, v13, 1, 1
    v_lshl_add_u32 v10, v11, 4, v10
    v_bfe_u32 v11, v13, 2, 1
    v_lshl_add_u32 v10, v11, 3, v10
    v_and_b32 v11, 1, v13
    v_lshl_add_u32 v10, v11, 5, v10
    v_lshl_add_u32 v10, v14, 6, v10
    v_add_u32 v7, v7, v10
    v_add_u32 v8, v8, v10''')
    e(f'''v_and_b32 v10, 1, v14
    v_lshrrev_b32 v11, 1, v14
    v_lshl_add_u32 v12, v10, 1, v11
    s_and_b32 s40, {sW}, 1
    s_mul_i32 s40, s40, 10
    s_add_u32 s40, s40, {B_VOM}
    s_lshl_b32 s40, s40, 14
    s_lshl_b32 s41, {sU}, 8
    s_add_u32 s40, s40, s41
    v_lshl_add_u32 v15, v13, 4, s40
    v_lshl_add_u32 v9, v12, 15, v15
    v_lshlrev_b32 v10, 3, v10
    v_add_u32 v11, 13, v11
    v_lshl_add_u32 v11, v11, 15, v15
    v_add_u32 v11, v11, v10
    v_add_u32 v10, {18*BS}, v9
    v_add_u32 v15, {8*BS}, v9
    v_cmp_eq_u32 vcc, 0, v12
    v_cndmask_b32 v10, v10, v15, vcc
    v_lshrrev_b32 v15, 19, v9
    v_lshl_add_u32 v9, v15, 14, v9
    v_lshrrev_b32 v15, 19, v10
    v_lshl_add_u32 v10, v15, 14, v10
    v_lshrrev_b32 v15, 19, v11
    v_lshl_add_u32 v11, v15, 14, v11
    v_and_b32 v12, 1, v1
    v_cmp_eq_u32 vcc, 1, v12
    v_mov_b32 v14, 0x05040100
    v_mov_b32 v12, 0x03020706
    v_cndmask_b32 v14, v14, v12, vcc
    v_mov_b32 v12, 0''')
    def clear_vom(so):
        for r in range(124, 128): e(f'v_mov_b32 v{r}, -1')
        e(f'buffer_store_dwordx4 v[124:127], v9, {sWS}, {so} offen sc1\nbuffer_store_dwordx4 v[124:127], v10, {sWS}, {so} offen sc1\nbuffer_store_dwordx2 v[124:125], v11, {sWS}, {so} offen sc1')
    setup = e.L[nset:]; del e.L[nset:]
    def started():
        e.wait_start(vt=30, primed=True)
        e(f's_lshr_b32 s40, {sW}, 1\ns_xor_b32 s40, s40, s41\ns_lshl_b32 s40, s40, 14\nv_xor_b32 v9, s40, v9\nv_xor_b32 v10, s40, v10\nv_xor_b32 v11, s40, v11')
    load_weights(e, U, chunks, started, sX, True, setup, 's47')
    XB, ST, AC1, VF, AC2, PK = 40, 64, 92, 84, 16, 32
    T1 = Tok1(e, U, [(AC1+8*t, (lambda k, t=t: ('v', t, k))) for t in range(3)], XB, ST)
    e(f's_sub_u32 {sS}, {sSIDE}, 2\ns_mov_b32 s43, 0\ns_mov_b32 s52, 0\ns_or_b32 s64, {sFFN}, {sSIDE}\ns_xor_b32 s64, s64, 1')
    e('L_VF_E:\ns_mov_b64 s[54:55], 0\ns_mov_b64 s[56:57], 0\ns_mov_b64 s[60:61], 0\ns_mov_b32 s53, 1')
    for x in T1.prologue(): e(x.split(';@')[0])
    e('s_waitcnt lgkmcnt(0)\ns_branch L_VF_B')
    e('L_VF_loop:')
    e.ts(0)
    for kp in range(6):
        for tt in range(2): e(f'ds_read_b128 {v(VF+8*kp+4*tt,4)}, {vL16} offset:{L_VX + (tt*6+kp)*1024} ;@vf{kp}')
    t = G(**e.o); t(f's_add_u32 {sX}, {sX}, 131072\ns_mov_b32 s53, {sFFN}\ns_mov_b64 s[60:61], -1'); t.bulk_off(sB0)
    t(f's_add_u32 {sB1}, {sB0}, {2<<20}\ns_xor_b32 {sB1}, {sB1}, 8192')
    t(f's_mul_i32 s42, {sW}, {25*BS}\ns_add_u32 s42, s42, {sSL}\ns_add_u32 s43, s42, {sB1}\ns_add_u32 s42, s42, {sB0}')
    t(f's_add_u32 s52, {sB0}, s51\ns_add_u32 s52, s52, {B_VF*BS}')
    t(f's_cmp_eq_u32 {sFFN}, 0\ns_cselect_b64 s[54:55], -1, 0\ns_cmp_eq_u32 {sW}, 0\ns_cselect_b64 s[56:57], 1, 0')
    sa = salu_groups(t)
    dm = xdma_list(0, 20, sX); dm[-1] += ' ;@xdma'
    def fin(u):
        ac = AC2+8*(u % 2); pk = PK+4*(u % 2); sr = 's42' if u < 5 else 's43'
        c = [f'v_cvt_pk_bf16_f32 v{pk+i}, v{ac+4*(i&1)+2*(i>>1)}, v{ac+4*(i&1)+2*(i>>1)+1}' for i in (0, 2, 1, 3)]
        st = f'buffer_store_dwordx4 {v(pk,4)}, {vL16}, {sWS}, {sr} offen sc1'
        return [c[0]+'\n'+c[1], c[2]+'\n'+c[3], (f's_add_u32 {sr}, {sr}, {5*BS}\n' if u % 5 else '') + st]
    pro = T1.prologue()
    for u in range(10):
        ac = AC2+8*(u % 2); pend = fin(u-1) if u else []
        n = 0
        for kp in range(6):
            if u == 0: e(f'@wl vf{kp}')
            for tt in range(2):
                e(mf32(ac+4*tt, v(VF+8*kp+4*tt, 4), U.reg(('o', u, kp//2), 4*(kp % 2), 4), None if kp == 0 else ac+4*tt)); n += 1
                if u == 0:
                    if sa: e(sa.pop(0))
                elif n in (2, 3, 4): e(pend.pop(0))
                elif dm and (n in (7, 11) or (n in (6, 10) and dm[0].startswith('s_'))): e(dm.pop(0))
                elif u == 9 and n == 5: e('@wv xdma\ns_barrier')
                elif u == 9 and n >= 6 and pro: e(pro.pop(0))
        assert not sa
    assert not pro and not dm
    e('s_cmp_lg_u32 s64, 0\ns_cbranch_scc1 L_VF_lite')
    e('L_VF_B:')
    e.ts(6)
    t = G(**e.o); t.crit_off(sCR); mem_offs(t, sM, sCR)
    t(f's_add_u32 {sFR}, {sCR}, s3\ns_mov_b32 s34, 0')
    f9 = fin(9); x = f9[2].split('\n')
    ex = ['-'] + f9[0].split('\n') + f9[1].split('\n') + [x[0], f's_mov_b64 exec, s[60:61]\n{x[1]}\ns_mov_b64 exec, -1'] + salu_groups(t)
    def hkflag():
        e('s_waitcnt vmcnt(0)\ns_barrier')
        return [f's_mov_b64 exec, s[56:57]\nbuffer_store_dword v12, v12, {sWS}, s52 offen sc1\ns_mov_b64 exec, -1']
    def hkclr(): return [f's_mov_b64 exec, s[54:55]\nbuffer_store_{x}, {sWS}, {sCR2} offen sc1\ns_mov_b64 exec, -1' for x in ('dwordx4 v[124:127], v9', 'dwordx4 v[124:127], v10', 'dwordx2 v[124:125], v11')]
    pp = e.poll_prime('v12', sFR, 132)
    n0 = len(e.L); e('L_VF_lite:\ns_nop 7')
    for x in ex:
        if x not in '|-': e(x)
    for x in hkflag() + pp: e(x)
    e('s_waitcnt lgkmcnt(0)\ns_branch L_VF_C'); lite = e.L[n0:]; del e.L[n0:]
    T1.run({7: hkflag}, ex, {(19, 2): pp[0]})
    e.ts(7)
    l = e.lab('nsilu'); e(f's_cmp_lg_u32 {sFFN}, 0\ns_cbranch_scc1 L_silu\n{l}:')
    n0 = len(e.L); e('L_silu:\ns_nop 7')
    for r in range(AC1, AC1+24, 2):
        e(f'v_cvt_pk_bf16_f32 v16, v{r}, v{r+1}\nv_lshlrev_b32 v{r}, 16, v16\nv_and_b32 v{r+1}, 0xffff0000, v16')
        e(f'v_mul_f32 v16, {f2u(-LOG2E)}, v{r}\nv_mul_f32 v17, {f2u(-LOG2E)}, v{r+1}\nv_exp_f32 v16, v16\nv_exp_f32 v17, v17\nv_add_f32 v16, 1.0, v16\nv_add_f32 v17, 1.0, v17')
        e(f'v_rcp_f32 v16, v16\nv_rcp_f32 v17, v17\nv_mul_f32 v{r}, v{r}, v16\nv_mul_f32 v{r+1}, v{r+1}, v17')
    e(f's_branch {l}'); silu_code = e.L[n0:]; del e.L[n0:]
    for t in range(3):
        for tt in range(2):
            r = AC1+8*t+4*tt; d = 16+4*t+2*tt
            e(f'v_cvt_pk_bf16_f32 v{d}, v{r}, v{r+1}\nv_cvt_pk_bf16_f32 v{d+1}, v{r+2}, v{r+3}')
            e(f'ds_write_b64 {"v6" if t == 1 else "v5"}, {v(d,2)} offset:{tt*6144 + (1024 if t == 2 else 0)}')
        if t < 2: e(pp[1+t])
    e(f's_cmp_lg_u32 s53, 0\ns_cbranch_scc1 L_VF_skip\nL_VF_C:')
    MF, AC, RS, AD = 16, 56, 68, 92
    KO = [k ^ e.o.get('vswap', 0) for k in range(10)]
    order = [('v', t, k) for k in KO for t in (2, 1, 0)]
    ring = Ring(e, U, order, RS, 3)
    ring.prime()
    e.ts(5)
    e.poll('v12', sFR, 132, primed=True)
    e('s_barrier')
    nanchk, slow = crit_pass1(e, ring, MF, sM, [(AC+4*t, (lambda k, t=t: ('v', t, k))) for t in (2, 1, 0)], 'v13', list(range(AC, AC+12)) + list(range(AD, AD+32)), KO)
    e.ts(10)
    nc = nanchk(AC+8, True)
    z = [f'v_mov_b64 {v(r,2)}, 0' for r in range(AD+32, AD+40, 2)]
    vb = e.o.get('vb', 4)
    def s1(t): d = AC+4*t; return f'v_add_f32 v{d}, v{d}, v{d+1}\nv_add_f32 v{d+2}, v{d+2}, v{d+3}\nv_cvt_pk_bf16_f32 v{d+1}, v{d}, v{d+2}'
    def s2(t):
        d = AC+4*t
        return f'v_mov_b32_dpp v{d+3}, v{d+1} quad_perm:[1,0,3,2] row_mask:0xf bank_mask:0xf\nv_perm_b32 v{d+1}, v{d+3}, v{d+1}, v14\nds_write_b32 {"v8" if t == 1 else "v7"}, v{d+1} offset:{512 if t == 2 else 0}'
    for x in (s1(2), s1(1), s2(2), s1(0), s2(1), s2(0), nc[0], z[0], 's_nop 2', nc[1]): e(x)
    e(f's_waitcnt lgkmcnt(0)\n{z[1]}\ns_barrier')
    for k in range(3): e(f'ds_read_b128 {v(MF+4*k,4)}, {vL16} offset:{L_VM + k*1024}')
    e(f'{z[2]}\ns_nop {vb}\n{z[3]}')
    e.ts(3)
    OT = 28
    main = []; ops = []
    for pi in range(5):
        for u in (2*pi, 2*pi+1):
            for k in range(3):
                def fn(pi=pi, k=k, u=u):
                    if u == 0: e(f's_waitcnt lgkmcnt({2-k})')
                    e(smf(AD+4*u, MF+4*k, U.reg(('o', u, k))))
                main.append((f's{u}_{k}', fn))
        for u in (2*pi, 2*pi+1):
            d = AD+4*u; o = OT+u
            ops.append((f'a{u}', f'v_add_f32 v{d}, v{d}, v{d+1}', 'v', [(f's{u}_2', 8)]))
            ops.append((f'b{u}', f'v_add_f32 v{d+2}, v{d+2}, v{d+3}', 'v', [(f'a{u}', 0)]))
            ops.append((f'c{u}', f'v_cvt_pk_bf16_f32 v{o}, v{d}, v{d+2}', 'v', [(f'b{u}', 0)]))
        o = OT+2*pi
        ops.append((f'w{pi}', f'v_permlane32_swap_b32 v{o}, v{o+1}', 'v', [(f'c{2*pi}', 2), (f'c{2*pi+1}', 2)]))
        if pi in (1, 3):
            g0 = OT+4*(pi//2)
            ops.append((f'x{pi}_0', f'v_permlane16_swap_b32 v{g0}, v{g0+2}', 'v', [(f'w{pi}', 2), (f'w{pi-1}', 2)]))
            ops.append((f'x{pi}_1', f'v_permlane16_swap_b32 v{g0+1}, v{g0+3}', 'v', [(f'w{pi}', 2), (f'w{pi-1}', 2)]))
            ops.append((f'st{pi}', f'buffer_store_dwordx4 {v(g0,4)}, v{9+pi//2}, {sWS}, {sCR} offen sc1', 'v', [(f'x{pi}_1', 0), (f'x{pi}_0', 0)]))
        if pi == 4:
            ops.append(('st4', f'buffer_store_dwordx2 {v(o,2)}, v11, {sWS}, {sCR} offen sc1', 'v', [('w4', 0)]))
    schedule(e, main, ops, {}, burst=e.o.get('burst', 9))
    if e.o.get('ackts') == 1: e.ts(9); e('s_waitcnt vmcnt(0)')
    e.ts(4)
    e.tsflush(11, 60)
    e('s_cmp_lg_u32 s64, 0\ns_mov_b32 s64, 0\ns_cbranch_scc1 L_VF_E')
    e('L_VF_next:')
    e(f's_add_u32 {sS}, {sS}, 2\ns_cmp_lt_u32 {sS}, {e.o["nseg"]}\ns_cbranch_scc1 L_VF_loop\ns_branch L_end')
    e('L_VF_skip:\ns_waitcnt lgkmcnt(0)\ns_barrier\ns_branch L_VF_next')
    slow()
    e.L += silu_code + lite

def dppred(op, m):
    return [f'{op}_dpp v{m}, v{m}, v{m} {c} row_mask:0xf bank_mask:0xf' for c in ('quad_perm:[1,0,3,2]', 'quad_perm:[2,3,0,1]', 'row_half_mirror', 'row_ror:8')]

def role_qk(e):
    keys_l = [('q', 2, k) for k in range(10)] + [('k', 1, k) for k in (5, 7, 9)]
    K1ORD = [0, 5, 1, 2, 7, 3, 4, 9, 6, 8]
    keys_r = [(m, t, k) for m in 'qk' for t in range(3) for k in range(10) if (m, t, k) not in keys_l]
    U = Units(keys_r, keys_l)
    sSTR, sWB, sSTP = 's30', 's31', 's32'
    sCR, sCR2, sB0, sX, sM = 's35', 's36', 's37', 's39', ('s46', 's47', 's48', 's56', 's57')
    sFR, sPT, sPTc, sLead, sRP, sPTo = 's50', 's51', 's52', 's53', 's49', 's33'
    sC2 = 's[54:55]'
    mN8, mMM, mV, mTA = 's[56:57]', 's[58:59]', 's[60:61]', 's[64:65]'
    L_SM, L_TM = L_MISC, L_MISC + 12288
    vZ = 'v6'; SEL = 12
    CM = [f's[{r}:{r+1}]' for r in (8, 10, 12, 14, 94, 96, 98, 100)]
    e('L_QK:')
    e(f's_lshl_b32 {sU}, {sXQ}, 3\ns_add_u32 {sU}, {sU}, {sJ}\ns_mov_b32 {sSTR}, 12288\ns_mul_i32 {sWB}, {sU}, 384\ns_lshl_b32 {sSTP}, {sSTR}, 5')
    common_wsetup(e)
    VO1, VR1 = 16, 19
    setup_colchunk(e, VO1, VR1, sSTR)
    cq = col_chunks(e, sA, VO1, VR1, sWB, sSTP, lambda t, k: ('q', t, k))
    ck = col_chunks(e, sB, VO1, VR1, sWB, sSTP, lambda t, k: ('k', t, k))
    chunks = [c for p in zip(cq, ck) for c in p]
    nset = len(e.L)
    e(f's_mov_b32 s56, 0x00ff00ff\ns_mov_b32 s57, 0x00ff00ff\ns_mov_b32 s58, 0\ns_mov_b32 s59, 0x00ff00ff\ns_mov_b32 s60, 0x03ff03ff\ns_mov_b32 s61, 0x03ff03ff\ns_mov_b32 s54, {CSC}\ns_mov_b32 s55, {CSC}')
    e(f's_lshl_b32 s40, {sJ}, 2\ns_add_u32 s40, s40, {sW}\ns_cmp_eq_u32 s40, 3\ns_cselect_b32 {sLead}, 1, 0')
    e(f's_cmp_lt_u32 {sW}, 2\ns_cselect_b64 s[42:43], {mV}, 0\ns_mov_b32 s24, s42\ns_add_u32 s40, {sW}, 1\ns_bitcmp1_b32 s40, 1\ns_cselect_b64 {mTA}, -1, 0')
    e(f'v_and_b32 v20, 15, v1\nv_lshrrev_b32 v21, 4, v1\nv_and_b32 v22, 1, v21\nv_lshrrev_b32 v23, 1, v21')
    e(f'v_and_b32 v4, 1, v1\nv_mul_u32_u24 v4, 0xaaaa, v4\nv_add_u32 v4, 0x4444, v4')
    e(f"""s_mul_i32 s40, {sW}, 1536
    s_add_u32 s40, s40, {L_SM + 6160}
    v_lshrrev_b32 v24, 2, v20
    v_mul_u32_u24 v5, 176, v24
    v_and_b32 v24, 1, v20
    v_mul_u32_u24 v24, 768, v24
    v_add3_u32 v5, v5, v24, s40
    v_bfe_u32 v25, v20, 1, 1
    v_mul_u32_u24 v24, 6160, v25
    v_sub_u32 v5, v5, v24
    v_add_u32 v25, v25, v21
    v_lshl_add_u32 v8, v25, 3, v5
    v_lshl_add_u32 v5, v23, 6, v5
    v_lshl_add_u32 v5, v22, 4, v5
    s_and_b32 s43, {sW}, 1
    s_lshl_b32 s43, s43, 2
    v_add_u32 v24, s43, v21
    v_lshrrev_b32 v0, 1, v24
    v_mul_u32_u24 v0, 176, v0
    v_mul_u32_u24 v25, 768, v22
    v_add_u32 v0, v0, v25
    v_lshl_add_u32 v0, v20, 4, v0
    v_mov_b32 {vZ}, 0
    s_lshl_b32 s40, {sW}, 10
    v_add_u32 v7, s40, {vL16}
    s_lshr_b32 s41, {sW}, 1
    s_lshl_b32 s40, s41, 4
    v_add_u32 v10, s40, v20
    v_lshlrev_b32 v11, 2, v21
    v_sub_u32 v10, v10, v11
    v_lshlrev_b32 v11, 4, v20
    v_lshl_add_u32 v11, v22, 3, v11
    v_lshl_add_u32 v11, v23, 2, v11""")
    e(f"""s_mul_i32 s41, s41, 40
    s_add_u32 s40, s41, {sU}
    s_lshr_b32 s42, s40, 3
    s_lshl_b32 s42, s42, 14
    s_and_b32 s40, s40, 7
    s_lshl_b32 s40, s40, 10
    s_add_u32 {sPTc}, s42, s40
    s_lshr_b32 s40, {sU}, 2
    s_add_u32 s40, s40, s41
    s_add_u32 s40, s40, 32
    s_lshr_b32 s42, s40, 3
    s_lshl_b32 s42, s42, 14
    s_and_b32 s40, s40, 7
    s_lshl_b32 s40, s40, 10
    s_add_u32 s42, s42, s40
    s_and_b32 s40, {sU}, 3
    s_lshl_b32 s40, s40, 8
    s_add_u32 s42, s42, s40
    s_sub_u32 s42, s42, {sPTc}
    v_add_u32 v11, s42, v11
    s_add_u32 {sPTc}, {sPTc}, {B_PT*BS}""")
    e(f"""v_lshlrev_b32 v25, 5, v24
    v_and_b32 v26, 1, v20
    v_lshl_add_u32 v27, v26, 4, v25
    v_and_b32 v26, 3, v20
    v_lshl_add_u32 v25, v26, 3, v25
    s_lshr_b32 s40, {sU}, 1
    s_lshl_b32 s40, s40, 8
    s_and_b32 s41, {sU}, 1
    s_lshl_b32 s41, s41, 3
    s_add_u32 s40, s40, s41
    s_add_u32 s40, s40, {B_P*BS}
    v_add_u32 v27, s40, v27
    s_lshr_b32 s41, {sU}, 3
    s_lshl_b32 s41, s41, 15
    s_and_b32 s40, {sU}, 7
    s_lshl_b32 s40, s40, 9
    s_add_u32 s40, s40, s41
    s_add_u32 s40, s40, {(B_P+2)*BS}
    v_bfe_u32 v26, v20, 2, 1
    v_lshl_add_u32 v25, v26, 8, v25
    v_add_u32 v9, s40, v25
    v_cmp_gt_u32 vcc, 8, v20
    v_cndmask_b32 v9, v27, v9, vcc""")
    e('v_lshlrev_b32 v25, 2, v21\nv_sub_u32 v25, v20, v25\nv_mov_b32 v26, 0x3f803f80')
    for r, j in ((0, 2), (1, 3), (2, 0), (3, 1)):
        e(f'v_cmp_eq_u32 vcc, {j}, v25\nv_cndmask_b32 v{SEL+r}, 0, v26, vcc')
    def started():
        for i in range(8): e(f'v_cmp_le_i32 {CM[i]}, {(i//4)*16 + i % 4}, v10')
        e.wait_start(vt=30, vF='v10', primed=True)
    setup = e.L[nset:]; del e.L[nset:]
    load_weights(e, U, chunks, started, sX, False, setup, 7864320)
    e(f's_mov_b32 {sS}, {sSIDE}\ns_mov_b64 s[66:67], 0\ns_mov_b32 {sPT}, 0')
    X = 16
    SA = [116, 124, 132, 28, 32]
    def ta_pre():
        L = [f'ds_write_b128 v7, {v(SA[i],4)} offset:{L_MISC + i*4096}' for i in range(3)]
        L += [f'ds_write_b64 v7, {v(SA[3+tq],2)} offset:{L_TM + tq*8}' for tq in range(2)]
        L = [L[3], L[4], L[0], f's_lshr_b32 s40, {sW}, 1\ns_lshl_b32 s41, s40, 3\ns_lshl_b32 s40, s40, 12', L[1], f'v_add_u32 v38, s40, {vL16}', 'v_add_u32 v39, s40, v38',
             L[2] + ' ;@sw', f'v_mov_b32 v37, {f2u(-1e9 * 192**0.5)}', f'v_add_u32 v36, s41, {vL16}', '-', '-', '-', '-', '@wl sw\ns_barrier']
        dst = [(X, X+4, X+8), (26, 30, 34), (116, 124, 132), (26, 30, 34)]
        rd = lambda w: [f'ds_read_b128 {v(dst[w][0],4)}, v38 offset:{L_MISC + w*1024}', f'ds_read_b128 {v(dst[w][1],4)}, v39 offset:{L_MISC + w*1024}', f'ds_read_b64 {v(dst[w][2],2)}, v36 offset:{L_TM + w*1024} ;@sr{w}']
        ad = lambda w: ['|'] + [(f'@wl sr{w}\n' if i == 0 else '') + f'v_add_f32 v{X+i}, v{X+i}, v{dst[w][i//4] + i % 4}' for i in range(10)]
        return L + rd(0) + rd(1) + rd(2) + ['-'] + ad(1) + rd(3) + ad(2) + ad(3)
    def ta_ops(inter=True):
        m, t = 34, 36
        L = []
        for i in range(8): L.append(f'v_cndmask_b32 v{X+i}, v37, v{X+i}, {CM[i]}')
        L += [f'v_max3_f32 v{m}, v{X}, v{X+1}, v{X+2}'] + [f'v_max3_f32 v{m}, v{m}, v{X+i}, v{X+i+1}' for i in (3, 5, 7)] + [f'v_max_f32 v{m}, v{m}, v{X+9}']
        def xs(op):
            o = []
            for st in (16, 32): o += [f'v_mov_b32 v{t}, v{m}', f'v_permlane{st}_swap_b32 v{m}, v{t}', f'{op} v{m}, v{m}, v{t}']
            return o
        L += xs('v_max_f32')
        L += [f'v_mul_f32 v{m}, s54, v{m}']
        L += [f'v_fma_f32 v{X+i}, v{X+i}, s54, -v{m}' for i in range(10)]
        L += [f'v_exp_f32 v{X+i}, v{X+i}' for i in range(10)]
        L += [f'v_add_f32 v{m}, v{X}, v{X+1}'] + [f'v_add_f32 v{m}, v{m}, v{X+i}' for i in range(2, 10)]
        L += xs('v_add_f32')
        L += ['|', f'v_rcp_f32 v{m}, v{m}']
        L += [f'v_mul_f32 v{X+i}, v{X+i}, v{m}' for i in range(10)]
        L += [f'v_cvt_pk_bf16_f32 v{28+d}, v{X+4*(d&1)+2*(d>>1)}, v{X+4*(d&1)+2*(d>>1)+1}' for d in range(4)] + [f'v_cvt_pk_bf16_f32 v32, v{X+8}, v{X+9}', '|']
        L += [f's_mov_b64 exec, s[66:67]\nbuffer_store_dwordx4 v[28:31], {vL16}, {sWS}, {sPTo} offen sc1\ns_mov_b64 exec, -1', '|',
              f's_mov_b64 exec, s[66:67]\nbuffer_store_dword v32, v11, {sWS}, {sPTo} offen sc1\ns_mov_b64 exec, -1', '|']
        fp = f's_mov_b64 exec, s[92:93]\nbuffer_store_dword {vZ}, v10, {sWS}, s32 offen sc1\ns_mov_b64 exec, -1'
        pos = max(0, len(L) - (e.o.get('fplead', 30) if inter else e.o.get('fplast', 75)))
        L[pos:pos] = ['|', fp]
        return L
    e(f's_mov_b64 s[92:93], 0\ns_mov_b32 s32, 0\ns_mul_i32 s68, {sLead}, 0x10001\ns_mov_b32 s69, s68\ns_mov_b32 s42, s24\ns_mov_b32 s43, s24')
    e('L_QK_loop:')
    e.ts(0)
    AC, XB, ST = 40, 88, 112
    Q = lambda tt: 16+6*tt
    Kt = lambda tt: 28+6*tt
    tiles = [(AC+8*(3*mi+t), (lambda k, m=m, t=t: (m, t, k))) for mi, m in enumerate('qk') for t in range(3)]
    T1 = Tok1(e, U, tiles, XB, ST)
    for x in T1.prologue(): e(x)
    e(f's_mov_b32 {sPTo}, {sPT}')
    def hk0():
        L = xdma_list(14, 20, sX); L[-1] += ' ;@xlate'; return L + [f's_add_u32 {sX}, {sX}, 131072']
    def hk(k0, k1):
        def f(): e('s_barrier'); return xdma_list(k0, k1, sX)
        return f
    def hk9(): e('@wv xlate\ns_barrier'); return []
    t = G(**e.o); t.crit_off(sCR); t.bulk_off(sB0); t(f's_add_u32 {sPT}, {sB0}, {sPTc}'); mem_offs(t, sM, sCR)
    t(f's_add_u32 {sFR}, {sCR}, s3\ns_mov_b32 s34, 0\ns_mov_b64 s[66:67], {mTA}')
    t(f's_mov_b64 s[30:31], {"s[92:93]" if e.o.get("fdamp", 1) else "s[68:69]"}\ns_lshl_b32 s40, {sXQ}, 8\ns_add_u32 s40, s40, {sCR}\ns_add_u32 s38, s40, {B_FL*BS + F_Q}\ns_add_u32 s32, s40, {B_FL*BS + F_P}')
    t(f's_mov_b64 s[92:93], s[68:69]\ns_and_b32 s40, s3, 0x4000\ns_add_u32 s29, {sCR}, s40\ns_xor_b32 s49, s29, 0x4000')
    cl = salu_groups(t)
    MF, AD, RS, TQ = 40, 80, 104, 128
    def cv(i, tt):
        mi, t = divmod(i, 3); r = AC+8*i+4*tt; d = (Kt if mi else Q)(tt)+2*t
        return f'v_cvt_pk_bf16_f32 v{d}, v{r}, v{r+1}\nv_cvt_pk_bf16_f32 v{d+1}, v{r+2}, v{r+3}'
    order = [('q', 2, k) for k in range(10)] + [('k', 1, k) for k in K1ORD]
    ring = Ring(e, U, order, RS, 3)
    n0 = len(e.L); ring.prime(); pr = [x.strip() for x in e.L[n0:]]; del e.L[n0:]
    late = {(18, 1): pr[0], (18, 2): pr[1], (19, 1): pr[2], (19, 2): pr[3]}
    for i in range(5):
        for tt in range(2): late[(19, 2*i+3+tt)] = cv(i, tt)
    pp = e.poll_prime(vZ, sFR, 128); assert len(pp) == 3
    late[(18, 7)] = pp[0]; late[(18, 12)] = pp[1]
    T1.run({e.o.get('xl', 6): hk0, 11: hk9, 13: hk(0, 14)}, ta_pre() + ta_ops() + cl, late)
    e.ts(7)
    e(pp[2]); e(pr[4]); e(pr[5]); e(cv(5, 0)); e(cv(5, 1))
    e.ts(5)
    e.poll(vZ, sFR, 128, primed=True)
    e('s_barrier')
    q0, k0, q1, q2, k1, k2 = (AD+4*i for i in range(6))
    p1 = [(q2, lambda k: ('q', 2, k)), (q0, lambda k: ('q', 0, k)), (k0, lambda k: ('k', 0, k)), (q1, lambda k: ('q', 1, k))]
    nanchk, slow = crit_pass1(e, ring, MF, sM, p1, 'v134', range(AD, AD+24))
    if not e.o.get('ackts'): e.ts(9)
    def flagQ(cond, after='-1'):
        if cond == 0: return f's_mov_b64 exec, s[30:31]\nbuffer_store_dword {vZ}, v10, {sWS}, s38 offen sc1\ns_mov_b64 exec, {after}'
        return f's_andn2_b64 exec, s[68:69], s[30:31]\nbuffer_store_dword {vZ}, v10, {sWS}, s38 offen sc1\ns_mov_b64 exec, {after}'
    lq = e.o['leadQ']
    cvt = lambda d, r: f'v_cvt_pk_bf16_f32 v{d}, v{r}, v{r+1}'
    main = []
    for (D, m) in ((k1, ('k', 1)), (k2, ('k', 2))):
        for p, k in enumerate(K1ORD):
            def fn(D=D, m=m, k=k, p=p):
                ring.op(D, MF+4*k, m + (k,))
                if m == ('k', 1) and p in (0, 3): e(f's_waitcnt lgkmcnt({4 if p == 0 else 0})')
            main.append((f'{m[0]}{m[1]}_{p}', fn))
    len_main = [0]
    nc = nanchk(q1)
    TK = q1; S0, S1, SM = q0, k0, q2
    Selq, Selk = v(SEL, 2), v(SEL+2, 2)
    T_a, T_b, T_c = 104, 108, 112
    slot = lambda j: RS + 8*((10+j) % 3)
    Ta, Tb, Tc = slot(0), slot(0)+4, slot(1)
    ops = [
        ('zq2a', cvt(q2, q2), 'v', [('q2', 8)]), ('zq2b', cvt(q2+1, q2+2), 'v', [('zq2a', 0)]),
        ('zq0a', cvt(q0, q0), 'v', [('q0', 8)]), ('zq0b', cvt(q0+1, q0+2), 'v', [('zq0a', 0)]),
        ('zk0a', cvt(q0+2, k0), 'v', [('k0', 8), ('zq0b', 0)]), ('zk0b', cvt(q0+3, k0+2), 'v', [('zk0a', 0)]),
        ('c1', nc[0], 'v', [('q1', 8)]), ('c2', nc[1], 'v', [('c1', 0)]), ('c3', nc[2], 's', [('c2', 4)]),
        ('zq1a', cvt(q1, q1), 'v', [('c2', 0)]), ('zq1b', cvt(q1+1, q1+2), 'v', [('zq1a', 0)]),
        ('Tq2', mf16(Ta, v(q2, 2), Selq), 'm', [('zq2b', 2), ('k1_1', 0)]),
        ('T0', mf32(Tb, v(q0, 4), v(SEL, 4)), 'm', [('zk0b', 2), ('k1_1', 0)]),
        ('Tq1', mf16(Tc, v(q1, 2), Selq), 'm', [('zq1b', 2), ('k1_4', 0)]),
        ('p2a', cvt(TQ+4, Ta), 'v', [('Tq2', 8)]), ('p2b', cvt(TQ+5, Ta+2), 'v', [('p2a', 0)]),
        ('p0a', cvt(TQ, Tb), 'v', [('T0', 8)]), ('p0b', cvt(TQ+1, Tb+2), 'v', [('p0a', 0)]),
        ('p1a', cvt(TQ+2, Tc), 'v', [('Tq1', 8)]), ('p1b', cvt(TQ+3, Tc+2), 'v', [('p1a', 0)]),
        ('zk1a', cvt(k1, k1), 'v', [('k1_9', 8)]), ('zk1b', cvt(k1+1, k1+2), 'v', [('zk1a', 0)]),
        ('S0a', mf16(S0, v(Kt(0)+4, 2), v(TQ+4, 2)), 'm', [('p2b', 2), ('T0', 0)]),
        ('S1a', mf16(S1, v(Kt(1)+4, 2), v(TQ+4, 2)), 'm', [('p2b', 2), ('T0', 0)]),
        ('S0b', mf32(S0, v(Kt(0), 4), v(TQ, 4), S0), 'm', [('p0b', 2), ('p1b', 2), ('S0a', 6)]),
        ('S1b', mf32(S1, v(Kt(1), 4), v(TQ, 4), S1), 'm', [('p0b', 2), ('p1b', 2), ('S1a', 6)]),
        ('w0', f'ds_write_b128 v5, {v(S0,4)}', 'v', [('S0b', 8)]),
        ('w1', f'ds_write_b128 v5, {v(S1,4)} offset:32', 'v', [('S1b', 8), ('w0', 2)]),
        ('zk2a', cvt(k2, k2), 'v', [('k2_9', 8)]), ('zk2b', cvt(k2+1, k2+2), 'v', [('zk2a', 0)]),
        ('Tk2', mf16(Tb, v(k2, 2), Selk), 'm', [('zk2b', 2)]),
        ('Tk1', mf16(Ta, v(k1, 2), Selk), 'm', [('zk1b', 2), ('k2_9', 0)]),
        ('SMa', mf16(SM, v(TQ, 2), v(TQ, 2)), 'm', [('p0b', 2), ('k2_9', 0)]),
        ('pk1a', cvt(TK, Ta), 'v', [('Tk1', 8)]), ('pk1b', cvt(TK+1, Ta+2), 'v', [('pk1a', 0)]),
        ('pk2a', cvt(TK+2, Tb), 'v', [('Tk2', 8)]), ('pk2b', cvt(TK+3, Tb+2), 'v', [('pk2a', 0)]),
        ('SMb', mf32(SM, v(TK, 4), v(TQ+2, 4), SM), 'm', [('pk2b', 2), ('pk1b', 2), ('SMa', 6)]),
    ]
    PB = 44
    ops.append(('pre', 'v_mov_b32 v60, 0', 'v', [('SMb', 3)]))
    if lq < 20: ops.insert(0, ('fl', flagQ(0), 'v', [(main[lq][0], 0), ('c3', 0)]))
    if lq == 20: ops.append(('fl', flagQ(0), 'v', [('Tk2', 0)]))
    if lq == 21: ops.append(('fl', flagQ(0), 'v', [('SMb', 0)]))
    ops.append(('wm', f's_cmp_ge_u32 {sW}, 2\nds_write_b64 v8, {v(SM,2)} offset:120', 'v', [('SMb', 7)]))
    schedule(e, main, ops, {'q2': -8, 'q0': -6, 'k0': -4, 'q1': -2})
    e.ts(10)
    tt3 = ((0, 0), (0, 1), (1, 1))
    a16 = [mf16(SA[i], v(Kt(tk)+4, 2), v(Q(tq)+4, 2)) for i, (tk, tq) in enumerate(tt3)]
    a32 = [mf32(SA[i], v(Kt(tk), 4), v(Q(tq), 4), SA[i]) for i, (tk, tq) in enumerate(tt3)]
    n1 = e.o.get('nh1', 0)
    h1 = (a16 + a32)[:3+n1]
    h2 = (a16 + a32)[3+n1:] + [mf16(SA[3+tq], v(TQ, 2), v(Q(tq), 2)) for tq in range(2)] + [mf32(SA[3+tq], v(TK, 4), v(Q(tq)+2, 4), SA[3+tq]) for tq in range(2)]
    e('s_cbranch_scc1 L_QK_w23')
    for x in h1: e(x)
    e('s_mov_b64 exec, s[42:43]\ns_waitcnt lgkmcnt(0)\nv_mov_b32 v61, 0\ns_barrier')
    e.ts(3)
    Tt, m, t = PB-4, 60, 62
    for w in range(4): e(f'ds_read_b128 {v(PB+4*w,4)}, v0 offset:{L_SM + w*1536}')
    nh = 0
    e('s_waitcnt lgkmcnt(2)')
    for i in (0, 2): e(f'v_pk_add_f32 {v(PB+i,2)}, {v(PB+i,2)}, {v(PB+4+i,2)}')
    for i in (0, 2): e(f'v_pk_mul_f32 {v(PB+i,2)}, {v(PB+i,2)}, {sC2}')
    e('s_waitcnt lgkmcnt(0)')
    for i in (0, 2): e(f'v_pk_add_f32 {v(PB+8+i,2)}, {v(PB+8+i,2)}, {v(PB+12+i,2)}')
    for i in (0, 2): e(f'v_pk_fma_f32 {v(Tt+i,2)}, {v(PB+8+i,2)}, {sC2}, {v(PB+i,2)}')
    EX = PB+4; u = PB+8
    for i in range(4): e(f'v_exp_f32 v{EX+i}, v{Tt+i}')
    dp = dppred('v_add_f32', m)
    e(f'v_max3_f32 v{u}, abs(v{Tt}), abs(v{Tt+1}), abs(v{Tt+2})\nv_pk_add_f32 {v(t,2)}, {v(EX,2)}, {v(EX+2,2)}\nv_add_f32 v{m}, v{t}, v{t+1}')
    e(f's_mov_b64 exec, -1\nv_max_f32 v{u}, abs(v{Tt+3}), v{u}\n{dp[0]}')
    e(f'v_cmp_lt_f32 vcc, {f2u(e.o.get("thr", 64.0))}, v{u}\n{dp[1]}\n{dp[2]}\ns_and_b64 vcc, vcc, {mV}\ns_cselect_b64 s[62:63], 0, s[42:43]\n{dp[3]}\nL_QK_maxd:')
    n0 = len(e.L); e(f'L_QK_max:\nv_mov_b32 v{u}, {f2u(-1e30)}')
    for i in range(4): e(f'v_cndmask_b32 v{Tt+i}, v{u}, v{Tt+i}, {mV}')
    e(f'v_max3_f32 v{m}, v{Tt}, v{Tt+1}, v{Tt+2}\nv_max_f32 v{m}, v{m}, v{Tt+3}')
    for x in dppred('v_max_f32', m): e(x)
    for i in range(4): e(f'v_sub_f32 v{Tt+i}, v{Tt+i}, v{m}')
    for i in range(4): e(f'v_exp_f32 v{EX+i}, v{Tt+i}')
    e(f'v_pk_add_f32 {v(t,2)}, {v(EX,2)}, {v(EX+2,2)}\nv_add_f32 v{m}, v{t}, v{t+1}\nv_cndmask_b32 v{m}, 0, v{m}, {mV}')
    for x in dp: e(x)
    e('s_mov_b64 s[62:63], s[42:43]\ns_cmp_lg_u32 0, 0\ns_branch L_QK_maxd'); maxcode = e.L[n0:]; del e.L[n0:]
    e(f'v_rcp_f32 v{m}, v{m}\ns_mov_b64 exec, s[62:63]')
    for i in (0, 2): e(f'v_pk_mul_f32 {v(EX+i,2)}, {v(EX+i,2)}, {v(m,2)} op_sel_hi:[1,0]')
    e(f'{cvt(PB, EX)}\n{cvt(PB+1, EX+2)}')
    if e.o.get('ackts'): e.ts(9)
    e(f'buffer_store_dwordx2 {v(PB,2)}, v9, {sWS}, s49 offen sc1\nbuffer_store_dwordx2 {v(PB,2)}, v9, {sWS}, s29 offen sc1\ns_mov_b64 exec, -1\ns_cbranch_scc1 L_QK_max')
    if e.o.get('ackts') == 1: e('s_waitcnt vmcnt(0)')
    e.ts(4)
    for x in h2: e(x)
    e('L_QK_sk:')
    hh = h1 + h2; npb = e.o.get('w23pre', 2)
    n0 = len(e.L); e('L_QK_w23:')
    for x in hh[:npb]: e(x)
    e('s_waitcnt lgkmcnt(0)\ns_barrier')
    for x in hh[npb:]: e(x + (f'\ns_nop {e.o["w23nop"]}' if e.o.get('w23nop') else ''))
    e('s_branch L_QK_sk'); maxcode += e.L[n0:]; del e.L[n0:]
    if lq == 24: e(flagQ(0))
    e.ts(6)
    e.tsflush(11, 72)
    e('s_barrier'); e(flagQ(1))
    e(f's_add_u32 {sS}, {sS}, 2\ns_cmp_lt_u32 {sS}, {e.o["nseg"]}\ns_cbranch_scc1 L_QK_loop')
    e(f's_mov_b32 {sPTo}, {sPT}')
    for x in ta_pre() + ta_ops(False):
        if x not in '|-': e(x)
    e('s_branch L_end')
    slow()
    e.L += maxcode

def vom_block(e, dst):
    e(f's_lshr_b32 s40, {sXQ}, 1\ns_mul_i32 s40, s40, 10\ns_add_u32 s40, s40, {sJ}\ns_add_u32 s40, s40, {B_VOM//2 - 16}\ns_lshl_b32 {dst}, s40, 15')
    e(f's_lshr_b32 s40, s40, 4\ns_lshl_b32 s40, s40, 14\ns_xor_b32 s40, s40, s3\ns_and_b32 s40, s40, 0x4000\ns_or_b32 {dst}, {dst}, s40')

def role_r(e):
    sCR, sCN, sB0, sTB = 's35', 's36', 's37', 's38'
    sP = ['s46', 's47', 's48', 's49', 's50']; sV = ['s51', 's52']; sFQ, sLead, sTC, sPG, sXO = 's53', 's54', 's55', 's56', 's57'
    sN = ['s58', 's59', 's60', 's61']
    e(f'L_R:\ns_cmp_lg_u32 {sW}, 0\ns_cbranch_scc1 L_PF')
    e.srd(64, 10, 2621440)
    e(f's_mul_i32 {sU}, {sXQ}, 10\ns_add_u32 {sU}, {sU}, {sJ}\ns_sub_u32 {sU}, {sU}, 16\ns_cmp_eq_u32 {sJ}, 16\ns_cselect_b32 {sLead}, 0x10001, 0\ns_lshl_b32 s32, {sXQ}, 8\ns_add_u32 s32, s32, {B_FL*BS}')
    e(f's_cmp_ge_u32 {sU}, 20\ns_cselect_b32 {sPG}, 1, 0\ns_mul_i32 s40, {sPG}, 20\ns_sub_u32 s40, {sU}, s40\ns_mul_i32 {sTC}, s40, {5*BS}\ns_lshl_b32 s40, {sPG}, 21\ns_add_u32 {sTC}, {sTC}, s40\ns_lshl_b32 {sPG}, {sPG}, 13')
    e(f'''v_lshlrev_b32 {vL16}, 4, v1
    v_and_b32 v20, 15, v1
    v_lshrrev_b32 v21, 4, v1
    v_and_b32 v4, 1, v1
    v_mul_u32_u24 v4, 0xaaaa, v4
    v_add_u32 v4, 0x4444, v4
    v_and_b32 v10, 7, v1
    v_lshlrev_b32 v10, 4, v10
    v_lshl_add_u32 v10, v21, 7, v10
    v_bfe_u32 v11, v1, 3, 1
    v_lshl_add_u32 v5, v11, 3, v10
    v_and_b32 v11, 1, v20
    v_lshl_add_u32 v10, v21, 1, v11
    v_mov_b32 v7, 0x05040100
    v_mov_b32 v22, 0x03020706
    v_cmp_eq_u32 vcc, 1, v11
    v_cndmask_b32 v7, v7, v22, vcc
    v_mul_u32_u24 v23, 1280, v10
    v_and_b32 v11, 14, v20
    v_lshl_add_u32 v23, v11, 1, v23
    s_lshl_b32 s40, {sU}, 5
    v_add_u32 v23, s40, v23
    v_bfe_u32 v11, v20, 1, 1
    v_lshl_add_u32 v10, v10, 1, v11
    v_lshlrev_b32 v10, 4, v10
    v_lshrrev_b32 v11, 2, v20
    v_lshl_add_u32 v10, v11, 2, v10
    s_lshr_b32 s42, {sU}, 3
    s_lshl_b32 s42, s42, 15
    s_and_b32 s41, {sU}, 7
    s_lshl_b32 s41, s41, 8
    s_add_u32 s41, s41, s42
    v_add_u32 v6, s41, v10
    v_mul_u32_u24 v8, 1280, v20
    v_lshl_add_u32 v8, v21, 3, v8
    v_add_u32 v8, s40, v8
    v_and_b32 v9, 31, v1
    v_lshlrev_b32 v9, 7, v9
    v_and_b32 v0, 7, v1
    v_lshlrev_b32 v0, 7, v0
    v_lshlrev_b32 v3, 8, v1
    v_mov_b32 v12, 0
    v_mov_b32 v14, -1
    v_lshlrev_b32 v13, 2, v21
    v_sub_u32 v13, v20, v13
    v_mov_b32 v24, 0x3f80
    v_mov_b32 v25, 0x3f800000
    ''')
    e.ptrs(2621440, 10240)
    e(f'''buffer_load_dword v15, v23, s[12:15], 0 offen
    v_cmp_eq_u32 vcc, 0, v13
    v_cndmask_b32 v16, 0, v24, vcc
    v_cmp_eq_u32 vcc, 1, v13
    v_cndmask_b32 v16, v16, v25, vcc
    v_cmp_eq_u32 vcc, 2, v13
    v_cndmask_b32 v18, 0, v24, vcc
    v_cmp_eq_u32 vcc, 3, v13
    v_cndmask_b32 v18, v18, v25, vcc
    v_mov_b32 v17, 0
    v_mov_b32 v19, 0
    v_mov_b32 v20, 0
    v_mov_b32 v21, v16
    v_mov_b32 v22, 0
    v_mov_b32 v23, v18''')
    def reps(base): pass
    def pub(reg): e(f'buffer_store_dword {reg}, v6, {sWS}, {sCN} offen sc1\nbuffer_store_dword {reg}, v11, {sWS}, {sCN} offen sc1')
    for g in range(4): e(f's_add_u32 {sN[g]}, {sXQ}, {g}\ns_and_b32 {sN[g]}, {sN[g]}, 3')
    l = e.lab('nl'); l2 = e.lab('nc'); l3 = e.lab('ncl')
    for r in range(24, 28): e(f'v_mov_b32 v{r}, -1')
    e(f's_mul_i32 s42, {sSIDE}, 40\ns_add_u32 s42, s42, {sU}\ns_cmp_ge_u32 s42, 64\ns_cbranch_scc1 {l3}')
    e(f's_lshr_b32 s40, s42, 1\ns_and_b32 s41, s42, 1\ns_lshl_b32 s41, s41, 13\ns_lshl_b32 s43, s40, 20\ns_add_u32 s43, s43, s41\ns_add_u32 s43, s43, {B_FL*BS}')
    for o in range(6):
        if o == 3: e(f's_add_u32 s43, s43, {4096 if e.o.get("nofine") else BS}')
        e(f'buffer_store_dwordx4 v[24:27], {vL16}, {sWS}, s43 offen offset:{(o%3)*1024} sc1')
    e(f's_lshl_b32 s43, s40, 22\ns_add_u32 s43, s43, s41\ns_add_u32 s43, s43, {BULK + B_VF*BS}')
    for o in range(4): e(f'buffer_store_dwordx4 v[24:27], {vL16}, {sWS}, s43 offen offset:{o*1024} sc1')
    e(f's_add_u32 s43, s43, 4096\nbuffer_store_dwordx4 v[24:27], {vL16}, {sWS}, s43 offen sc1')
    e(f's_sub_u32 s43, s42, {B_FL}\ns_cmp_lt_u32 s43, 4\ns_cbranch_scc1 {l3}\ns_lshl_b32 s43, s42, 14')
    for o in range(32):
        e(f'buffer_store_dwordx4 v[24:27], {vL16}, {sWS}, s43 offen offset:{(o % 4)*1024} sc1')
        if o % 4 == 3: e(f's_add_u32 s43, s43, {4096 if o != 15 else (1 << 20) - 12288}')
    e(f'{l3}:\ns_lshl_b32 s43, {sSIDE}, 22\ns_lshl_b32 s41, {sU}, 12\ns_add_u32 s43, s43, s41\ns_add_u32 s43, s43, {BULK + B_PT*BS}')
    for o in range(4): e(f'buffer_store_dwordx4 v[24:27], {vL16}, {sWS}, s43 offen offset:{o*1024} sc1')
    e(f'\ns_mov_b32 s45, 1\ns_cmp_lg_u32 {sJ}, 25\ns_cbranch_scc1 {l}')
    e(f's_and_b32 s40, s2, 7\ns_lshl_b32 s40, s40, 10\ns_add_u32 s40, s40, {B_CAL*BS}')
    for q in range(4): e(f's_add_u32 s41, s40, {8192*q}\nbuffer_store_dwordx4 v[24:27], {vL16}, {sWS}, s41 offen sc1')
    def race(lines):
        e('s_mov_b32 s46, -1\ns_mov_b32 s47, -1')
        for k in lines:
            for b in range(2):
                e(f's_memtime s[48:49]\ns_waitcnt lgkmcnt(0)\nbuffer_load_dword v31, v12, {sWS}, s{40+b} offen offset:{k*128} sc1\ns_waitcnt vmcnt(0)\ns_memtime s[50:51]\ns_waitcnt lgkmcnt(0)')
                e(f's_sub_u32 s50, s50, s48\ns_min_u32 s{46+b}, s{46+b}, s50')
        e('s_cmp_lt_u32 s47, s46')
    e('s_add_u32 s41, s40, 8192\ns_waitcnt vmcnt(0)')
    race(range(3))
    e(f's_cselect_b32 s45, 1, 0\ns_cselect_b32 s40, s41, s40\ns_add_u32 s41, s40, {BS}\ns_xor_b32 s45, s45, {sSIDE}\ns_lshl_b32 s45, s45, 16\ns_or_b32 s45, s45, 1')
    race(range(3, 8))
    e(f's_cselect_b32 s46, 1, 0\ns_xor_b32 s46, s46, {sXQ}\ns_and_b32 s46, s46, 1\ns_lshl_b32 s46, s46, 24\ns_or_b32 s45, s45, s46')
    e(f'{l}:\ns_waitcnt vmcnt(0)')
    e.ts(2)
    e.arrive(extra='s45', vt=30)
    e.wait_start(vt=30, vF='v3'); e.startflush(30)
    vom_block(e, 's50')
    e(f'v_add_u32 v11, {BS}, v6\nv_add_u32 v5, 4096, {vL16}\nv_add_u32 v9, {5*BS}, {vL16}\nv_add_u32 v10, {5*BS + 4096}, {vL16}')
    def flagR(msk):
        e(f's_add_u32 s40, {sCN}, s32\ns_mov_b32 exec_lo, {msk}\ns_mov_b32 exec_hi, {msk}\nbuffer_store_dword v12, v3, {sWS}, s40 offen sc1\ns_mov_b64 exec, -1')
    e(f's_cmp_eq_u32 {sSIDE}, 0\ns_cbranch_scc1 {l2}\ns_mov_b32 {sS}, 0')
    e('v_min_u32 v15, -2, v15')
    e.crit_off(sCN, 0); reps(sCN); pub('v15')
    if not e.o.get('sync0', 0): e('s_waitcnt vmcnt(0)'); flagR(sLead)
    e(f'{l2}:\ns_mov_b32 {sS}, {sSIDE}')
    e('L_R_loop:')
    e.ts(0)
    e.bulk_off(sB0)
    e(f's_xor_b32 {sTB}, {sB0}, {sPG}\ns_add_u32 {sTB}, {sTB}, {sTC}\ns_barrier')
    e.ts(7)
    def ldvot(k0, k1):
        for k in range(k0, k1):
            if k % 8 == 0 and k < 32: e(f's_lshl_b32 s40, {sN[k//8]}, 14\ns_add_u32 s40, s40, {sTB}')
            elif k == 32: e(f's_add_u32 s40, {sTB}, {4*BS}')
            elif k % 4 == 0: e('s_add_u32 s40, s40, 4096')
            e(f'buffer_load_dwordx4 {a(4*k,4)}, {vL16}, {sWS}, s40 offen offset:{(k%4)*1024} sc1')
    ldvot(0, 32)
    e.crit_off(sCR); e.crit_off(sCN, 1)
    sPm = ['s94', 's95', 's96', 's97']; sVm = ['s98', 's99', 's100', 's101']
    e(f's_add_u32 s41, s50, {sCR}\ns_and_b32 s42, s3, 0x4000\ns_add_u32 s42, s42, {sCR}')
    for g in range(4):
        e(f's_lshl_b32 s40, {sN[g]}, 15\ns_add_u32 s40, s40, s42\ns_add_u32 {sP[g]}, s40, {(B_P+2)*BS}')
        e(f's_lshl_b32 s40, {sN[g]}, 10\ns_add_u32 s40, s40, s42\ns_add_u32 {sPm[g]}, s40, {B_P*BS}')
        e(f's_lshl_b32 s40, {sN[g]}, 11\ns_add_u32 {sVm[g]}, s40, s41')
    e(f's_add_u32 {sFQ}, {sCR}, s3\ns_add_u32 {sFQ}, {sFQ}, {F_Q}\ns_mul_i32 {sXO}, {sS}, 40960')
    AC, AM, AT, BM, AO = 24, 40, 56, 120, 28
    def ffn():
        for i in range(4): e(f'v_lshlrev_b32 v{AO+2*i}, 16, v{36+i}\nv_and_b32 v{AO+2*i+1}, 0xffff0000, v{36+i}')
        for k in range(8):
            for tt in range(2): e(mf32(AO+4*tt, a(128+4*k, 4), 'v[20:23]' if tt else 'v[16:19]', AO+4*tt))
    def ffnx():
        ldvot(32, 40)
        e(f's_add_u32 s43, {sXO}, 20480\nbuffer_load_dwordx2 v[36:37], v8, {sA}, {sXO} offen\nbuffer_load_dwordx2 v[38:39], v8, {sA}, s43 offen\ns_waitcnt vmcnt(0)')
        ffn()
    l = e.lab('nl63'); e(f's_cmp_lg_u32 {sS}, 63\ns_cselect_b64 s[62:63], -1, 0\ns_cbranch_scc1 {l}'); ffnx(); e(f'{l}:')
    e('s_mov_b32 s34, 0\ns_mov_b32 s29, 0\ns_mov_b32 s30, 0')
    e.ts(5)
    e('s_barrier')
    e.poll('v12', sFQ, 252)
    e('s_barrier')
    e.ts(1)
    rt = e.lab('rt'); bad = e.lab('bad')
    e(f'{rt}:')
    nv = e.o.get('vfirst', 0)
    pat = e.o.get('rseq')
    if pat:
        cnt = {'v': 0, 't': 0, 'm': 0}; seq = []
        for ch in pat: seq.append((ch, cnt[ch])); cnt[ch] += 1
        assert cnt == {'v': 8, 't': 16, 'm': 4}
    else:
        seq = [('v', k) for k in range(nv)] + [('t', k) for k in range(16)]
        for g in range(4): seq += [('m', g)] + [('v', k) for k in (2*g, 2*g+1) if k >= nv]
    for kind, k in seq:
        if kind == 't': e(f'buffer_load_dwordx4 {v(AT+4*k,4)}, {vL16}, {sWS}, {sP[k//4]} offen offset:{(k%4)*1024} sc1')
        elif kind == 'm': e(f'buffer_load_dwordx4 {v(AM+4*k,4)}, {vL16}, {sWS}, {sPm[k]} offen sc1')
        else: e(f'buffer_load_dwordx4 {v(BM+4*k,4)}, {vL16}, {sWS}, {sVm[k//2]} offen offset:{(k%2)*1024} sc1')
    for r in range(AC, AC+4): e(f'v_mov_b32 v{r}, 0')
    e('v_mov_b32 v13, s30')
    rf = e.o['rflag']; assert 2 <= rf < 28
    chk = e.lab('chk'); bk = e.lab('bk')
    lastm = {g: max(seq.index(x) for x in (('m', g), ('v', 2*g), ('v', 2*g+1))) for g in range(4)}
    e('s_waitcnt vmcnt(27)'); e.ts(2)
    for i, (kind, k) in enumerate(seq):
        if kind == 't': e(smf(AC, AT+4*k, a(8*k, 8)))
        for g in range(4):
            if lastm[g] == i: e(smf(AC, AM+4*g, v(BM+8*g, 8)))
        if i == rf:
            l = e.lab('nf'); e(f's_cbranch_vccnz {l}\ns_barrier\ns_mov_b32 s30, -1\n{l}:')
        if i < 27: e(f's_waitcnt vmcnt({26-i})')
        if i <= rf-2: r = {'t': AT, 'v': BM, 'm': AM}[kind]+4*k; e(f'v_max3_u32 v13, v13, v{r}, v{r+3}')
        if i == rf-1: e('v_cmp_eq_u32 vcc, -1, v13')
    e.ts(3)
    e(f'v_add_f32 v{AC}, v{AC}, v{AC+1}\nv_add_f32 v{AC+1}, v{AC+2}, v{AC+3}')
    e(f'v_cvt_pk_bf16_f32 v{AC+2}, v{AC}, v{AC+1}\nv_cmp_u_f32 vcc, v{AC}, v{AC+1}')
    e(f'v_mov_b32_dpp v{AC+1}, v{AC+2} quad_perm:[1,0,3,2] row_mask:0xf bank_mask:0xf\ns_cmp_eq_u64 vcc, 0\nv_perm_b32 v{AC}, v{AC+1}, v{AC+2}, v7\n{bk}:\ns_cselect_b64 exec, s[62:63], 0')
    if e.o.get('ackts'): e.ts(2)
    pub(f'v{AC}'); e(f's_mov_b64 exec, -1\ns_cbranch_scc0 {chk}')
    if e.o.get('ackts') == 1: e('s_waitcnt vmcnt(0)')
    e.ts(4)
    okO = e.lab('okO'); slowO = e.lab('slowO')
    AO = 28
    ringr = list(range(152, 252, 4)) + list(range(40, 120, 4)); NR = e.o.get('nr', 32); ringr = ringr[:NR]
    def opass(explicit):
        def ldp(n):
            j, tt = n//2, n % 2
            if j < 32: so, va, im = sP[j//8], (vL16, 'v5', 'v9', 'v10')[2*tt + (j//4) % 2], (j % 4)*1024
            else: so, va, im = sPm[(j-32)//2], (vL16, 'v9')[tt], (j % 2)*1024
            e(f'buffer_load_dwordx4 {v(ringr[n % NR],4)}, {va}, {sWS}, {so} offen offset:{im} sc1')
        if not explicit:
            l = e.lab('nffn')
            e('s_barrier')
            for g in range(4):
                e(f's_lshl_b32 s40, {sN[g]}, 14\ns_add_u32 s40, s40, {sB0}\ns_add_u32 {sP[g]}, s40, {B_PT*BS}')
                e(f's_lshl_b32 s40, {sN[g]}, 11\ns_add_u32 s40, s40, {sB0}\ns_add_u32 {sPm[g]}, s40, {(B_PT+4)*BS}')
            e(f's_cmp_eq_u32 {sS}, 63\ns_cbranch_scc1 {l}'); ffnx(); e(f'{l}:')
            e(f's_add_u32 s43, {sFQ}, {F_P-F_Q}'); e.poll('v12', 's43', 252)
            e('s_barrier')
            e.ts(8)
        if explicit: ffn()
        for n in range(NR): ldp(n)
        if explicit: e('v_mov_b32 v13, 0')
        iss = NR
        for n in range(80):
            j, tt = n//2, n % 2; r = ringr[n % NR]
            if n == 0: e(f's_waitcnt vmcnt({iss-1})')
            e(mf32(AO+4*tt, a(4*j, 4) if j < 32 else v(BM+4*(j-32), 4), v(r, 4), AO+4*tt))
            if n < 79: e(f's_waitcnt vmcnt({iss-2-n})')
            if explicit: e(f'v_max3_u32 v13, v13, v{r}, v{r+1}\nv_max3_u32 v13, v13, v{r+2}, v{r+3}')
            if iss < 80: ldp(iss); iss += 1
            elif n == 80-NR and not explicit: e('s_barrier')
    opass(False)
    e(f'v_cmp_u_f32 vcc, v{AO}, v{AO+4}\ns_cbranch_vccnz {slowO}\n{okO}:')
    for i in range(4): e(f'v_cvt_pk_bf16_f32 v{42+i}, v{AO+2*i}, v{AO+2*i+1}')
    e(f's_add_u32 s43, {sXO}, 20480\nbuffer_store_dwordx2 v[42:43], v8, s[64:67], {sXO} offen {e.o.get("outfl", "")}\nbuffer_store_dwordx2 v[44:45], v8, s[64:67], s43 offen {e.o.get("outfl", "")}')
    e.ts(6)
    e.tsflush(9, 48)
    e(f's_add_u32 {sS}, {sS}, 2\ns_cmp_lt_u32 {sS}, {e.o["nseg"]}\ns_cbranch_scc1 L_R_loop\ns_branch L_end')
    e(f'{chk}:\ns_mov_b64 exec, -1')
    if e.o['stamps']:
        e('v_mov_b32 v13, 0')
        for r in range(BM, BM+32, 2): e(f'v_max3_u32 v13, v13, v{r}, v{r+1}')
        e('v_cmp_eq_u32 vcc, -1, v13\ns_cmp_lg_u64 vcc, 0\ns_cselect_b32 s40, 0x1000000, 0x10000\ns_add_u32 s29, s29, s40') if False else e('v_cmp_eq_u32 vcc, -1, v13\ns_mov_b32 s41, 0x10000\ns_cmp_lg_u64 vcc, 0\ns_cselect_b32 s40, 0x1000000, s41\ns_add_u32 s29, s29, s40')
    e(f's_cmp_lt_u32 s34, 2\ns_cbranch_scc1 {bad}\nv_mov_b32 v13, 0')
    for r in range(AM, BM+32, 2): e(f'v_max3_u32 v13, v13, v{r}, v{r+1}')
    e(f'v_cmp_eq_u32 vcc, -1, v13\ns_cmp_eq_u32 0, 0\ns_cbranch_vccz {bk}')
    e(f'{bad}:\ns_add_u32 s34, s34, 1\ns_nop 7'); e.tmo(rt)
    e(f'{slowO}:\ns_nop 7')
    if e.o['stamps']: e('s_add_u32 s34, s34, 0x10000')
    opass(True)
    e(f's_nop 7\nv_cmp_eq_u32 vcc, -1, v13\ns_cbranch_vccz {okO}'); e.tmo(slowO)

def weight_prefetch(e):
    l = e.lab('npf'); per, ph, c0, dep = e.o.get('pfper', 3), e.o.get('pfph', 1), e.o.get('pfc0', 4), e.o.get('pfdep', 4)
    e(f's_cmp_ge_u32 {sJ}, 24\ns_cbranch_scc1 {l}')
    for d, slot in ((8, 2), (12, 3), (44, 4), (48, 5)): e.srd(d, slot, 7864320)
    e(f's_sub_u32 s40, {sJ}, 16\ns_sub_u32 s41, {sW}, 1\ns_lshl_b32 s52, {sSIDE}, 1\ns_xor_b32 s53, {sXQ}, s52\ns_lshl_b32 s53, s53, 2\nv_lshlrev_b32 v2, 4, v1')
    e(f's_mul_i32 s42, s40, {4*12288}\ns_lshl_b32 s43, s41, 10\ns_add_u32 s42, s42, s43\ns_mul_i32 s43, {sXQ}, 3072\ns_add_u32 s42, s42, s43')
    for r in range(4): e(f's_add_u32 s43, s42, {r*12288}\nv_add_u32 v{4+r}, s43, v2')
    e(f's_lshl_b32 s42, {sXQ}, 3\ns_add_u32 s42, s42, s40\ns_mul_i32 s42, s42, 245760\ns_mul_i32 s43, s41, 6656\ns_add_u32 s42, s42, s43\nv_add_u32 v8, s42, v2\nv_add_u32 v9, 4096, v8\ns_waitcnt lgkmcnt(0)')
    L = [(c/40, 's[8:11]' if c % 2 == 0 else 's[12:15]', c//2) for c in range(c0, 40) if c % per == ph]
    L += [(c/40, 's[44:47]', c) for c in range(c0, 20) if c % per == (ph+1) % per]
    L += [((20 + r*20/12)/40, 's[48:51]', -1-r) for r in range(12) if r % per == ph]
    L.sort(); n = 0
    for _, srd, kp in L:
        if kp >= 0:
            e(f's_add_u32 s54, s53, {kp}\ns_cmp_ge_u32 s54, 20\ns_cselect_b32 s55, 20, 0\ns_sub_u32 s54, s54, s55\ns_mul_i32 s54, s54, {32*12288}')
            ld = [(f'v{4+r}', 0) for r in range(4)]
        else:
            r16 = -1-kp
            e(f's_mul_i32 s54, s52, {(3 if r16 < 6 else -3)*20480}\ns_add_u32 s54, s54, {r16*20480}')
            ld = [('v8' if q < 4 else 'v9', (q % 4)*1024) for q in range(7)]
        for va, im in ld:
            e(f'buffer_load_dwordx4 {v(32+4*(n % 16),4)}, {va}, {srd}, s54 offen offset:{im}\ns_waitcnt vmcnt({dep})'); n += 1
    e(f'{l}:')

def role_pf(e):
    e('L_PF:'); e.ptrs(0, 0)
    if e.o.get('pf', 1): weight_prefetch(e)
    e.wait_start(vt=30, vF='v3')
    e(f's_lshl_b32 s40, {sJ}, 2\ns_add_u32 s40, s40, {sW}\ns_cmp_eq_u32 s40, {16*4+2}\ns_cselect_b32 s30, 0x10001, 0\ns_mov_b32 s31, s30\ns_lshl_b32 s33, {sXQ}, 8\ns_add_u32 s33, s33, {B_FL*BS}')
    e(f'v_and_b32 v9, 31, v1\nv_lshlrev_b32 v9, 7, v9\nv_and_b32 v11, 7, v1\nv_lshlrev_b32 v11, 7, v11\nv_mov_b32 v12, 0\ns_mov_b32 {sS}, {sSIDE}\ns_add_u32 s32, s3, {F_Q}')
    e(f's_mul_i32 {sU}, {sXQ}, 10\ns_add_u32 {sU}, {sU}, {sJ}\ns_sub_u32 {sU}, {sU}, 16\nv_lshlrev_b32 v2, 4, v1')
    for r in range(4, 8): e(f'v_mov_b32 v{r}, -1')
    vom_block(e, 's38')
    e(f's_and_b32 s40, {sW}, 1\ns_lshl_b32 s40, s40, 12\ns_add_u32 s38, s38, s40')
    e(f's_lshr_b32 s39, {sU}, 2\ns_add_u32 s39, s39, {B_PT}\ns_lshl_b32 s39, s39, 14\ns_and_b32 s40, {sU}, 3\ns_lshl_b32 s40, s40, 11\ns_add_u32 s39, s39, s40')
    e(f's_lshr_b32 s40, {sU}, 3\ns_lshl_b32 s40, s40, 15\ns_and_b32 s41, {sU}, 7\ns_lshl_b32 s42, s41, 8\ns_add_u32 s42, s42, s40\ns_lshl_b32 s43, s41, 9\ns_add_u32 s43, s43, s40\ns_add_u32 s43, s43, {B_P*BS - 512}')
    e('v_and_b32 v8, 255, v2\nv_add_u32 v8, s42, v8\nv_add_u32 v10, s43, v2\nv_cmp_gt_u32 vcc, 32, v1\nv_cndmask_b32 v8, v10, v8, vcc')
    e('L_PF_loop:')
    l = e.lab('nv')
    e.bulk_off('s36'); e(f's_add_u32 s36, s36, {B_VF*BS}\ns_add_u32 s34, s36, 4096\nv_mov_b32 v25, 0')
    l3 = e.lab('n3'); e(f's_cmp_lg_u32 {sW}, 3\ns_cbranch_scc1 {l3}\nbuffer_load_dword v25, v11, {sWS}, s34 offen sc1\ns_cmp_lg_u32 {sS}, 63\ns_cbranch_scc1 {l3}')
    e.poll('v11', 's34', 25, D=1, sleep=2); e(f'{l3}:')
    e(f's_cmp_lg_u32 {sW}, 1\ns_cbranch_scc1 {l}')
    e.poll('v9', 's36', 24, D=1, sleep=e.o.get('vsleep', 2))
    if e.o.get('sync0', 0):
        e(f's_lshl_b32 s40, {sS}, 8\ns_or_b32 s40, s40, {sJ}\ns_cmp_lg_u32 s40, 16\ns_cbranch_scc1 {l}')
        e.crit_off('s37'); e(f's_add_u32 s37, s37, s33\ns_mov_b32 exec_lo, 0x10001\ns_mov_b32 exec_hi, 0x10001\nbuffer_store_dword v12, v3, {sWS}, s37 offen sc1\ns_mov_b64 exec, -1')
    e(f'{l}:')
    e.crit_off('s35'); e.crit_off('s37', 1)
    e('s_add_u32 s35, s35, s32\ns_add_u32 s37, s37, s33\ns_barrier\ns_barrier')
    e.poll('v12', 's35', 20)
    e(f's_barrier\ns_add_u32 s35, s35, {F_P-F_Q}\ns_mov_b64 exec, s[30:31]\ns_barrier')
    e(f'buffer_store_dword v12, v3, {sWS}, s37 offen sc1\ns_mov_b64 exec, -1')
    l4 = e.lab('n4'); e(f'v_cmp_eq_u32 vcc, -1, v25\ns_cbranch_vccz {l4}'); e.poll('v11', 's34', 25, D=1, sleep=2); e(f'{l4}:\ns_barrier')
    l = e.lab('c1'); l2 = e.lab('c2'); l5 = e.lab('c3')
    e(f's_cmp_ge_u32 {sS}, 60\ns_cbranch_scc1 {l5}')
    e.crit_off('s36', 4)
    e(f's_cmp_eq_u32 {sW}, 1\ns_cbranch_scc1 {l}\ns_add_u32 s36, s36, s38')
    for o in range(4): e(f'buffer_store_dwordx4 v[4:7], v2, {sWS}, s36 offen offset:{o*1024} sc1')
    e(f's_branch {l2}\n{l}:\nbuffer_store_dwordx4 v[4:7], v8, {sWS}, s36 offen sc1\ns_add_u32 s36, s36, {BS}\nbuffer_store_dwordx4 v[4:7], v8, {sWS}, s36 offen sc1')
    e.bulk_off('s36', 4); e('s_add_u32 s36, s36, s39')
    for o in range(2): e(f'buffer_store_dwordx4 v[4:7], v2, {sWS}, s36 offen offset:{o*1024} sc1')
    e(f'{l2}:\ns_waitcnt vmcnt(0)\n{l5}:')
    e.poll('v12', 's35', 20)
    e(f's_barrier\ns_barrier\ns_add_u32 {sS}, {sS}, 2\ns_cmp_lt_u32 {sS}, {e.o["nseg"]}\ns_cbranch_scc1 L_PF_loop\ns_branch L_end')

HEAD = open('cdna_kernels/' + NAME[:-7] + '.s.ref').read().split('; Override launch')[0]
def gen(aslist=False, **o):
    e = G(**o)
    e.ts(0)
    if e.o.get('empty'): e('s_branch L_end')
    e(f'''s_cmp_ge_u32 s2, 256
    s_cbranch_scc1 L_end
    s_add_u32 s3, s2, {e.o.get('rot', 0)}
    s_and_b32 s3, s3, 7
    s_and_b32 s2, s2, 0xf8
    s_or_b32 {sS}, s2, s3
    s_getreg_b32 s3, hwreg(HW_REG_XCC_ID, 0, 3)
    s_or_b32 s2, s2, s3
    s_load_dwordx2 s[4:5], s[0:1], 96
    s_load_dwordx2 s[16:17], s[0:1], 88
    v_and_b32 v1, 63, v0
    v_lshrrev_b32 v2, 6, v0
    s_mov_b32 {sC0}, 0
    v_readfirstlane_b32 {sW}, v2
    s_lshr_b32 {sJ}, s2, 3
    s_mov_b32 {sTO}, 0
    s_mov_b32 s18, 256
    s_mov_b32 s19, 0x20000
    s_mov_b32 s6, {252<<20}
    s_mov_b32 s7, 0x20000
    L_dispatch:
    s_cmp_lt_u32 {sJ}, 28
    s_cselect_b32 s3, 64, 0
    s_cmp_lt_u32 {sJ}, 26
    s_cselect_b32 s3, 0, s3
    s_cmp_lt_u32 {sJ}, 16
    s_cselect_b32 s3, 32, s3
    s_cmp_lt_u32 {sJ}, 8
    s_cselect_b32 s3, 16, s3
    s_load_dwordx4 s[12:15], s[0:1], s3
    s_and_b32 {sXQ}, s2, 3
    s_bfe_u32 {sSIDE}, s2, 0x10002
    s_cmp_ge_u32 {sJ}, 8
    s_cbranch_scc1 L_other''')
    role_qk(e)
    e(f'L_other:\ns_cmp_ge_u32 {sJ}, 28\ns_cbranch_scc1 L_LN\ns_cmp_ge_u32 {sJ}, 26\ns_cbranch_scc1 L_FFN\ns_cmp_ge_u32 {sJ}, 16\ns_cbranch_scc1 L_R')
    role_vo(e); role_r(e); role_pf(e); e('L_hot_end:'); role_ln(e)
    e(f'L_restart:\ns_waitcnt vmcnt(0) lgkmcnt(0)\ns_barrier\ns_mov_b32 s2, {sS}\ns_mov_b32 {sC0}, 64\ns_branch L_dispatch')
    e(f'L_abort:\nv_mov_b32 v30, 8\nv_mov_b32 v31, 1\ns_mov_b64 exec, 1\nbuffer_atomic_add v31, v30, {sDBG}, 0 offen sc1\nL_end:\ns_endpgm')
    L = resolve(e.L)
    if e.o.get('xp'):
        out = []; zone = False; n = 0
        for ln in L:
            t = ln.strip()
            if t in ('L_QK_loop:', 'L_VF_loop:'): zone = True
            if t.startswith('poll_'): zone = False
            if zone and t.startswith('v_mfma'):
                n += 1
                if e.o['xp'] == 1 or (e.o['xp'] == 2 and n % 2): ln = '    s_nop 2'
            if zone and e.o['xp'] == 3 and t.startswith('ds_read_b128') and ', v2 ' in t: ln = '    ds_read_b32 ' + t.split()[1].split(':')[0].replace('[', '') + ', v2'
            out.append(ln)
        L = out
    body, nn = hazard.run(L)
    al = e.o.get('align', 6)
    if al:
        out = []; nxt = None; st = 2 if e.o['stamps'] and (e.o.get('tsmask', -1) >> 1) & 1 else 0
        for i, ln in enumerate(body):
            t = ln.strip()
            if t in ('L_QK_loop:', 'L_VF_C:', 'L_R_loop:'): nxt = e.o.get({'Q': 'qpad', 'V': 'vpad', 'R': 'rpad'}[t[2]], {'Q': 0, 'V': 2, 'R': 2}[t[2]])
            if t.startswith('pd_') or t in ('L_QK_loop:', 'L_VF_loop:', 'L_R_loop:', 'L_QK_w23:', 'L_PF_loop:') or t.startswith('poll_'):
                out.append(f'.p2align {al}')
                if t.startswith('pd_') and nxt is not None: out += ['    s_nop 0']*((nxt - st) % 8); nxt = None
                if t == 'L_QK_w23:': out += ['    s_nop 0']*e.o.get('wpad', 0)
            out.append(ln)
        body = out
        for key, pat in (('tm1', 'v_cvt_pk_bf16_f32 v90, '), ('tm2', 's_cmp_ge_u32 s23, 2')):
            n = e.o.get(key, 0)
            if n:
                i = [k for k, x in enumerate(body) if pat in x][0]
                assert all(body[i-1-k].strip() == 's_nop 0' for k in range(n+1)), body[i-4:i]
                body[i-n-1:i] = [f'    s_nop {n}']
    launch = f'; @launch kernel={NAME} grid=(256,1,1) block=(256,1,1) lds=163840' if aslist else '; @launch grid=(256,1,1) block=(256,1,1) lds=163840'
    return HEAD + launch + '\n.amdgcn_target "amdgcn-amd-amdhsa--gfx950"\n.text\n' + kernel_head(NAME) + '\n'.join(body) + '\n' + kernel_desc(NAME, 512, 102, 256)

if __name__ == '__main__':
    o = dict(kv.split('=') for kv in sys.argv[2:]); o = {k: (int(x) if x.lstrip('-').isdigit() else x) for k, x in o.items()}
    open(sys.argv[1], 'w').write(gen(**o))
```

```python
import sys
from asmlib import *
import hazard

NAME = 'parallel_sum__memory_aug_recurrent_mem_tr__dense_activation_silu__prompt_kernel'
BS = 16384
BULK = 36 << 20
XN = 172 << 20
DBGW = 180 << 20
B_MEM, B_P, B_FL, B_VOM, B_CAL = 0, 10, 20, 24, 22
F_R, F_Q, F_P = 0, 1024, 2048
B_PT, B_VF = 100, 110
L_X, L_MISC, L_W = 0, 40960, 57344
WPW = 26624
TMO = 1 << 17
NARR = 112
LOG2E = 1.4426950408889634
import struct
def f2u(x): return struct.unpack('<I', struct.pack('<f', x))[0]
CSC = f2u(LOG2E / 192 ** 0.5)

sWS, sA, sB, sDBG = 's[4:7]', 's[8:11]', 's[12:15]', 's[16:19]'
sXQ, sJ, sSIDE, sW, sU, sS, sTO, sC0 = 's20', 's21', 's22', 's23', 's25', 's26', 's27', 's28'

class G(A):
    def __init__(self, **o):
        super().__init__(); self.o = dict(leadQ=15, rflag=8, rseq='vvvvtttttttmvvtttmvvtttmtttm', fplead=34, stamps=0, nseg=64); self.o.update(o)
    def crit_off(self, dst, add=0, t0='s40', t1='s41'):
        e = self
        e(f's_add_u32 {t0}, {sS}, {add}\ns_lshr_b32 {t1}, {t0}, 2\ns_xor_b32 {t1}, {t1}, {t0}\ns_xor_b32 {t1}, {t1}, {sC0}\ns_and_b32 {t1}, {t1}, 1\ns_lshl_b32 {t1}, {t1}, 13')
        e(f's_lshr_b32 {t0}, {t0}, 1\ns_lshl_b32 {t0}, {t0}, 20\ns_or_b32 {dst}, {t0}, {t1}')
    def bulk_off(self, dst, add=0, t0='s40', t1='s41'):
        e = self
        e(f's_add_u32 {t0}, {sS}, {add}\ns_xor_b32 {t1}, {t0}, {sC0}\ns_and_b32 {t1}, {t1}, 1\ns_lshl_b32 {t1}, {t1}, 13')
        e(f's_lshr_b32 {t0}, {t0}, 1\ns_lshl_b32 {t0}, {t0}, 22\ns_add_u32 {t0}, {t0}, {BULK}\ns_or_b32 {dst}, {t0}, {t1}')
    def tmo(self, again):
        self(f's_add_u32 {sTO}, {sTO}, 1\ns_cmp_lt_u32 {sTO}, {TMO}\ns_cbranch_scc1 {again}\ns_branch L_abort')
    def srd(self, dst, slot, nbytes):
        self(f's_load_dwordx2 s[{dst}:{dst+1}], s[0:1], {slot*8}\ns_mov_b32 s{dst+2}, {nbytes}\ns_mov_b32 s{dst+3}, 0x20000')
    def ptrs(self, nA, nB):
        self(f's_waitcnt lgkmcnt(0)\ns_mov_b32 s8, s12\ns_mov_b32 s9, s13\ns_mov_b32 s10, {nA}\ns_mov_b32 s11, 0x20000\ns_mov_b32 s12, s14\ns_mov_b32 s13, s15\ns_mov_b32 s14, {nB}\ns_mov_b32 s15, 0x20000')
        self('s_add_u32 s4, s4, 0x3fffff\ns_addc_u32 s5, s5, 0\ns_and_b32 s4, s4, 0xffc00000')
    def rotword(self, dst):
        e = self
        e(f's_sub_u32 s40, s2, {sS}\ns_and_b32 {dst}, s40, 1\ns_bfe_u32 s41, s40, 0x10001\ns_lshl_b32 s41, s41, 9\ns_or_b32 {dst}, {dst}, s41')
        e(f's_bfe_u32 s41, s40, 0x10002\ns_lshl_b32 s41, s41, 18\ns_or_b32 {dst}, {dst}, s41')
    def arrive(self, extra=None, vt=2):
        e = self; l = e.lab('nla'); lp = e.lab('all'); dn = e.lab('alld')
        e.rotword('s42')
        e(f's_add_u32 s43, {"1" if extra is None else extra}, 128\nv_mov_b32 v{vt+2}, 0\nv_mov_b32 v{vt}, s43\nv_mov_b32 v{vt+1}, s42')
        e(f's_mov_b64 exec, 1\nbuffer_atomic_add_x2 {v(vt,2)}, v{vt+2}, {sDBG}, {sC0} offen sc0 sc1\ns_waitcnt vmcnt(0)')
        ck = e.lab('allc')
        e(f'v_readfirstlane_b32 s40, v{vt}\nv_readfirstlane_b32 s41, v{vt+1}\ns_add_u32 s40, s40, s43\ns_add_u32 s41, s41, s42\ns_and_b32 s42, s40, 127\ns_cmp_lg_u32 s42, {NARR}\ns_cbranch_scc1 {l}\ns_branch {ck}')
        e(f'{lp}:\nbuffer_load_dwordx2 {v(vt,2)}, v{vt+2}, {sDBG}, {sC0} offen sc1\ns_waitcnt vmcnt(0)\nv_readfirstlane_b32 s40, v{vt}\nv_readfirstlane_b32 s41, v{vt+1}')
        e(f'{ck}:\ns_bfe_u32 s42, s40, 0x90007\ns_cmp_eq_u32 s42, 256\ns_cbranch_scc1 {dn}\ns_sleep 8'); e.tmo(lp)
        e(f'{dn}:\ns_and_b32 s41, s41, {255 | 255 << 9 | 255 << 18}\ns_cselect_b32 s41, 0x80000000, 0\ns_or_b32 s40, s40, s41\nv_mov_b32 v{vt}, s40')
        e(f'buffer_store_dword v{vt}, v{vt+2}, {sDBG}, {sC0} offen offset:128 sc1\n{l}:\ns_mov_b64 exec, -1')
    def start_prime(self, vt): self(f'v_mov_b32 v{vt}, 0\nbuffer_load_dword v{vt+1}, v{vt}, {sDBG}, {sC0} offen offset:128 sc1')
    def wait_start(self, vt=2, vF=None, primed=False):
        e = self; lp = e.lab('ws'); dn = e.lab('wsd'); ck = e.lab('wsc')
        if primed: e(f's_branch {ck}')
        e(f'{lp}:'); e.start_prime(vt); e.L[-1] += ' ;!'; e(f's_waitcnt vmcnt(0)\n{ck}:')
        e(f'v_readfirstlane_b32 s40, v{vt+1}\ns_cmp_lt_i32 s40, 0\ns_cbranch_scc1 L_restart\ns_cmp_lg_u32 s40, 0\ns_cbranch_scc1 {dn}\ns_sleep 4')
        e.tmo(lp)
        e(f'{dn}:\ns_bfe_u32 s41, s40, 0x40010\ns_cmp_ge_u32 s41, 5\ns_cselect_b32 {sC0}, 1, 0')
        c1x = e.o.get('c1x', 0)
        e(f's_bfe_u32 s41, s40, 0x40018\ns_cmp_ge_u32 s41, 5\ns_cselect_b32 s41, {1 ^ c1x}, {c1x}')
        e(f's_xor_b32 s3, {sXQ}, s41\ns_and_b32 s3, s3, {0 if e.o.get("nofine") else 1}\ns_lshl_b32 s3, s3, 14\ns_lshl_b32 s40, {sW}, 8\ns_add_u32 s3, s3, s40')
        if e.o.get('nofine'): e(f's_and_b32 s40, {sXQ}, 1\ns_lshl_b32 s40, s40, 12\ns_add_u32 s3, s3, s40')
        e(f's_lshr_b32 s40, {sXQ}, 1\ns_lshl_b32 s40, s40, 7\ns_add_u32 s3, s3, s40\ns_add_u32 s3, s3, {B_FL*BS}')
        if vF:
            if e.o.get('nofine'): e(f'v_bfe_u32 {vF}, v1, 4, 1\nv_lshlrev_b32 {vF}, 12, {vF}')
            else: e(f'v_bfe_u32 {vF}, v1, 4, 1\nv_xor_b32 {vF}, s41, {vF}\nv_lshlrev_b32 {vF}, 14, {vF}')
            e(f'v_lshrrev_b32 v{vt}, 5, v1\nv_lshl_add_u32 {vF}, v{vt}, 7, {vF}')
        e.ts(3)
    def startflush(self, vt):
        if self.o['stamps']:
            self(f's_xor_b32 {sS}, {sSIDE}, 1'); self.tsflush(8, vt)
    def poll_prime(self, vaddr, soff, r0):
        return [f'buffer_load_dword v{r0+i}, {vaddr}, {sWS}, {soff} offen sc1' for i in range(self.o.get('pd', 3))]
    def poll(self, vaddr, soff, r0, D=None, sleep=0, primed=False):
        e = self; lp = e.lab('poll'); dn = e.lab('pd')
        one = vaddr in ('v12', 'v6') and e.o.get('poll1', 0)
        if D is None: D = e.o.get('pd', 3)
        if one: e('s_mov_b64 exec, 1')
        iss = lambda i: e(f'buffer_load_dword v{r0+i}, {vaddr}, {sWS}, {soff} offen sc1')
        for i in range(0 if primed else D):
            iss(i)
            if i < D-1: e('s_nop 15')
        e(f'{lp}:')
        for i in range(D):
            e(f's_waitcnt vmcnt({D-1})\nv_cmp_eq_u32 vcc, -1, v{r0+i}\ns_cbranch_vccz {dn}')
            if sleep: e(f's_sleep {sleep}')
            iss(i)
        e.tmo(lp)
        e(f'{dn}:')
        if one: e('s_mov_b64 exec, -1')
    def ts(self, i):
        if self.o['stamps'] and (self.o.get('tsmask', -1) >> i) & 1: self(f'{"s_memrealtime" if self.o["stamps"] == 1 else "s_memtime"} s[{70+2*i}:{71+2*i}]')
    def tsflush(self, n, vbase):
        if not self.o['stamps']: return
        e = self
        e(f's_waitcnt lgkmcnt(0)\ns_lshl_b32 s40, s2, 2\ns_add_u32 s40, s40, {sW}\ns_lshl_b32 s40, s40, 6\ns_add_u32 s40, s40, {sS}\ns_lshl_b32 s40, s40, 6\ns_add_u32 s40, s40, {DBGW}')
        e(f'v_mov_b32 v{vbase}, 0')
        for i in range(n): e(f'v_writelane_b32 v{vbase}, s{70+2*i}, {i}')
        e(f'v_writelane_b32 v{vbase}, s34, 15\nv_writelane_b32 v{vbase}, s29, 14')
        e(f'v_lshlrev_b32 v{vbase+1}, 2, v1\ns_mov_b64 exec, 0xffff\nbuffer_store_dword v{vbase}, v{vbase+1}, {sWS}, s40 offen\ns_mov_b64 exec, -1')

def resolve(lines):
    out = []; nl = nv = 0; tag = {}; masked = False
    for ln in lines:
        t = ln.strip()
        w = t.replace(',', ' ').split()
        if len(w) > 2 and w[0].startswith('s_') and w[1] == 'exec': masked = w[2:] != ['-1']
        if t.startswith('@wl '): out.append(f'    s_waitcnt lgkmcnt({min(15, nl - tag[t[4:]])})'); continue
        if t.startswith('@wv '): out.append(f'    s_waitcnt vmcnt({min(63, nv - tag[t[4:]])})'); continue
        if t.startswith('ds_') and not masked: nl += 1
        if t.startswith('buffer_') and not masked and ';!' not in t: nv += 1
        ln = ln.split(';!')[0].rstrip()
        assert not (masked and ';@' in t)
        if ';@' in t:
            tag[t.split(';@')[1].strip()] = nl if t.startswith('ds_') else nv
            ln = ln.split(';@')[0].rstrip()
        out.append(ln)
    return out

def xsum(e, r, t, op='v_add_f32', steps=(16, 32)):
    for st in steps:
        e(f'v_mov_b32 v{t}, v{r}\nv_permlane{st}_swap_b32 v{r}, v{t}\n{op} v{r}, v{r}, v{t}')

def role_ln(e):
    e('L_LN:')
    e(f's_and_b32 s40, s2, 7\ns_lshl_b32 s40, s40, 2\ns_add_u32 s40, s40, {sJ}\ns_sub_u32 s40, s40, 28\ns_lshl_b32 s40, s40, 2\ns_add_u32 s42, s40, {sW}')
    e(f'v_and_b32 v2, 15, v1\nv_lshrrev_b32 v3, 4, v1\nv_mul_u32_u24 v2, 1280, v2\nv_lshl_add_u32 v2, v3, 4, v2\ns_mul_i32 s43, s42, {16*1280}')
    e.ptrs(2621440, 10240)
    R0, F0 = 8, 88
    for k in range(20): e(f'buffer_load_dwordx4 {v(R0+4*k,4)}, v2, {sA}, s43 offen offset:{k*64}')
    e('v_mov_b64 v[4:5], 0\ns_mov_b32 s44, 0xffff0000')
    BC = 'op_sel_hi:[1,0]'; NEG = 'neg_lo:[0,1] neg_hi:[0,1]'
    for k in range(20):
        e(f's_waitcnt vmcnt({19-k})')
        for r in range(4):
            x = R0+4*k+r; f = F0+8*k+2*r
            e(f'v_lshlrev_b32 v{f}, 16, v{x}\nv_and_b32 v{f+1}, s44, v{x}\nv_pk_add_f32 v[4:5], v[4:5], {v(f,2)}')
    e('v_add_f32 v4, v4, v5'); xsum(e, 4, 5)
    e(f'v_mul_f32 v4, {f2u(1/640)}, v4\nv_mov_b64 v[6:7], 0')
    for i in range(0, 160, 2):
        e(f'v_pk_add_f32 v[248:249], {v(F0+i,2)}, v[4:5] {BC} {NEG}\nv_pk_fma_f32 v[6:7], v[248:249], v[248:249], v[6:7]')
    e('v_add_f32 v6, v6, v7'); xsum(e, 6, 7)
    e(f'v_mul_f32 v6, {f2u(1/640)}, v6')
    e('v_cvt_pk_bf16_f32 v6, v4, v6\nv_lshlrev_b32 v4, 16, v6\nv_and_b32 v6, s44, v6')
    e(f'v_add_f32 v6, {f2u(1e-5)}, v6\nv_cvt_pk_bf16_f32 v6, v6, v6\nv_lshlrev_b32 v6, 16, v6\nv_sqrt_f32 v6, v6\nv_cvt_pk_bf16_f32 v6, v6, v6\nv_lshlrev_b32 v6, 16, v6\nv_rcp_f32 v6, v6')
    e(f's_lshr_b32 s40, s42, 1\ns_lshl_b32 s40, s40, 16\ns_and_b32 s41, s42, 1\ns_lshl_b32 s41, s41, 10\ns_add_u32 s40, s40, s41\ns_add_u32 s40, s40, {XN}\nv_lshlrev_b32 v2, 4, v1\nv_add_u32 v3, 40960, v2')
    for k in range(20):
        for r in range(4):
            x = R0+4*k+r; f = F0+8*k+2*r
            e(f'v_pk_add_f32 {v(f,2)}, {v(f,2)}, v[4:5] {BC} {NEG}\nv_cvt_pk_bf16_f32 v{f+1}, v{f}, v{f+1}\nv_lshlrev_b32 v{f}, 16, v{f+1}\nv_and_b32 v{f+1}, s44, v{f+1}')
            e(f'v_pk_mul_f32 {v(f,2)}, {v(f,2)}, v[6:7] {BC}\nv_cvt_pk_bf16_f32 v{x}, v{f}, v{f+1}')
        e(f'buffer_store_dwordx4 {v(R0+4*k,4)}, v2, {sWS}, s40 offen offset:{(k%2)*2048} sc1')
        if k < 12: e(f'buffer_store_dwordx4 {v(R0+4*k,4)}, v3, {sWS}, s40 offen offset:{(k%2)*2048} sc1')
        if k % 2: e('s_add_u32 s40, s40, 4096')
    e(f's_waitcnt vmcnt(0)\ns_barrier\ns_cmp_lg_u32 {sW}, 0\ns_cbranch_scc1 L_LN2')
    e.ts(2)
    e.arrive()
    e('L_LN2:'); e.wait_start(vt=30); e.startflush(30)
    e(f's_cmp_ge_u32 {sJ}, 29\ns_cbranch_scc1 {"L_CP" if e.o.get("cpf", 1) else "L_end"}')
    if not e.o.get('nref', 1): e('s_branch L_end')
    e(f'v_mov_b32 v12, 0\ns_mov_b32 {sS}, {sSIDE}\nL_RF_loop:')
    e.crit_off('s35'); e('s_add_u32 s35, s35, s3')
    e.poll('v12', 's35', 20, D=4)
    e(f's_add_u32 {sS}, {sS}, 2\ns_cmp_lt_u32 {sS}, {e.o["nseg"]}\ns_cbranch_scc1 L_RF_loop\ns_branch L_end')
    e(f'L_CP:\ns_cmp_lg_u32 {sJ}, 29\ns_cbranch_scc1 L_end')
    e(f's_getpc_b64 s[8:9]\nL_pc:\ns_sub_u32 s8, s8, L_pc-L_QK\ns_subb_u32 s9, s9, 0\ns_mov_b32 s10, L_hot_end-L_QK\ns_mov_b32 s11, 0x20000')
    e(f'v_mov_b32 v12, 0\nv_lshlrev_b32 v2, 6, v1\ns_lshl_b32 s42, {sW}, 12\ns_mov_b32 {sS}, {sSIDE}')
    e.crit_off('s35'); e(f's_add_u32 s35, s35, s3\ns_add_u32 s35, s35, {F_P}\nL_CP_loop:')
    for q in range(3): e(f's_add_u32 s43, s42, {q*16384}\nbuffer_load_dword v{4+q}, v2, s[8:11], s43 offen sc1')
    e(f'buffer_load_dword v8, v12, {sWS}, s35 offen sc1\ns_waitcnt vmcnt(0)\nv_cmp_eq_u32 vcc, -1, v8\ns_cbranch_vccz L_end\ns_sleep 24')
    e.tmo('L_CP_loop')

class Units:
    def __init__(self, keys_reg, keys_lds):
        self.m = {}
        for i, k in enumerate(keys_reg):
            self.m[k] = ('a', 8*i) if i < 32 else ('v', 136 + 8*(i-32))
        assert len(keys_reg) <= 47 and len(keys_lds) <= 13
        for i, k in enumerate(keys_lds): self.m[k] = ('l', i)
    def reg(self, k, off=0, n=8):
        t, r = self.m[k]; assert t != 'l'
        return (a if t == 'a' else v)(r+off, n)
    def islds(self, k): return self.m[k][0] == 'l'
    def ldsoff(self, k, half): return self.m[k][1]*2048 + half*1024

sROT = 's36'
vL16, vWL = 'v2', 'v3'

def common_wsetup(e):
    e(f's_mul_i32 s48, {sSIDE}, {2 if e.o.get("srot", 1) else 0}\ns_xor_b32 {sROT}, {sXQ}, s48')
    e(f'v_lshlrev_b32 {vL16}, 4, v1\ns_mul_i32 s40, {sW}, {WPW}\ns_add_u32 s40, s40, {L_W}\nv_add_u32 {vWL}, s40, {vL16}')

def load_weights(e, U, chunks, started, sX, full, setup, sizes):
    n = len(chunks); TMP = 40; idn = e.lab('w'); assert n % 4 == 0
    e(f's_mul_i32 s44, {sW}, 3072')
    def issue(c):
        ch = chunks[c]
        ch['soff'](); base = (c % 4)*12288
        for ii in range(3):
            e(f's_add_u32 m0, s44, {base + 1024*ii}\nbuffer_load_dwordx4 v{ch["voff"]+ii}, {ch["srd"]}, s45 offen {e.o.get("wfl", "")} lds ;@{idn}_{c}')
    e.ptrs(sizes, sizes)
    e.ts(1)
    for c in range(3): issue(c)
    e.L += setup
    e(f's_mul_i32 s44, {sW}, 3072')
    e.rotword('s42')
    e(f'v_mov_b32 v32, 128\nv_mov_b32 v33, s42\nv_mov_b32 v34, 0\ns_and_b32 s46, {sJ}, 7\ns_lshl_b32 s47, {sW}, 3\ns_or_b32 s46, s46, s47')
    for c in range(n):
        e(f'@wv {idn}_{c}\ns_barrier')
        if c in (0, 10, 20, 30): e.ts(4 + c//10)
        if 1 <= c <= 8:
            e(f's_cmp_eq_u32 s46, {c-1}\ns_cselect_b64 exec, 1, 0\nbuffer_atomic_add_x2 v[32:33], v34, {sDBG}, {sC0} offen sc1\ns_mov_b64 exec, -1')
        if c == n-7: e.start_prime(30)
        if c+3 < n: issue(c+3)
        if c == n-3:
            started()
            e(f's_lshl_b32 {sX}, {sSIDE}, 3\ns_add_u32 {sX}, {sX}, {sROT}\ns_lshl_b32 {sX}, {sX}, 13\ns_add_u32 {sX}, {sX}, {XN}')
        if c >= n-3:
            k0 = 6*(c-n+3); L = xdma_list(k0, k0+6, sX); L[-1] += f' ;@{idn}_x{k0}'
            for x in L: e(x)
        base = (c % 4)*12288; pend = []; t = TMP
        for (key, ro, va, imm) in chunks[c]['reads']:
            if U.islds(key):
                e(f'ds_read_b64_tr_b16 {v(t,2)}, {va} offset:{base+imm}'); pend.append((key, ro, t)); t += 2
            else:
                e(f'ds_read_b64_tr_b16 {U.reg(key, ro, 2)}, {va} offset:{base+imm}')
        e('s_waitcnt lgkmcnt(0)')
        for i in range(0, len(pend), 2):
            key, ro, t = pend[i]; assert pend[i+1][0] == key and pend[i+1][1] == ro+2 and ro % 4 == 0
            e(f'ds_write_b128 {vWL}, {v(t,4)} offset:{U.ldsoff(key, ro//4)}')
    e(f'@wv {idn}_x{6 if full else 12}\ns_waitcnt lgkmcnt(0)\ns_barrier')
    if full: xdma(e, 18, 20, sX)
    e.ts(2); e.startflush(30)

def setup_colchunk(e, vo, vr, sStride):
    for ii in range(3):
        e(f'v_add_u32 v10, {64*ii}, v1\nv_mul_u32_u24 v11, 2731, v10\nv_lshrrev_b32 v11, 16, v11')
        e(f'v_mul_u32_u24 v12, 24, v11\nv_sub_u32 v10, v10, v12\ns_lshl_b32 s40, {sW}, 3\nv_add_u32 v11, s40, v11\nv_mul_lo_u32 v11, v11, {sStride}\nv_lshl_add_u32 v{vo+ii}, v10, 4, v11')
    e(f'v_lshrrev_b32 v10, 4, v1\nv_lshlrev_b32 v10, 3, v10\nv_bfe_u32 v11, v1, 2, 2\nv_add_u32 v10, v10, v11\nv_mul_u32_u24 v10, 384, v10')
    e(f'v_and_b32 v11, 3, v1\nv_lshl_add_u32 v10, v11, 3, v10\ns_xor_b32 s40, {sW}, s48\ns_mul_i32 s40, s40, 96\nv_add_u32 v{vr}, s40, v10')

def col_chunks(e, srd, vo, vr, sBase, sStep, keyf):
    out = []
    for kp in range(20):
        def soff(kp=kp): e(f's_lshl_b32 s45, {sROT}, 2\ns_add_u32 s45, s45, {kp}\ns_cmp_ge_u32 s45, 20\ns_cselect_b32 s43, 20, 0\ns_sub_u32 s45, s45, s43\ns_mul_i32 s45, {sStep}, s45\ns_add_u32 s45, s45, {sBase}')
        reads = []
        for t in range(3):
            for q in range(2): reads.append((keyf(t, kp//2), 4*(kp % 2)+2*q, f'v{vr}', 32*t + 1536*q))
        out.append(dict(srd=srd, voff=vo, soff=soff, reads=reads))
    return out

def xdma_list(k0, k1, sX, t0='s44', t1='s45'):
    per = (k1-k0)*2 // 4; L = []
    for i in range(per):
        if i == 0: L.append(f's_mul_i32 {t0}, {sW}, {per*1024}\ns_add_u32 m0, {t0}, {L_X + k0*2048}\ns_add_u32 {t1}, m0, {sX}')
        elif i % 4 == 0: L.append(f's_add_u32 m0, m0, 4096\ns_add_u32 {t1}, {t1}, 4096')
        L.append(f'buffer_load_dwordx4 {vL16}, {sWS}, {t1} offen offset:{(i % 4)*1024} sc1 lds')
    return L
def xdma(e, k0, k1, sX):
    for x in xdma_list(k0, k1, sX): e(x)

def memloads_def(e, MF, sM):
    def ld(k, fl=''):
        e(f'buffer_load_dwordx4 {v(MF+4*k,4)}, {vL16}, {sWS}, {sM[k//2]} offen offset:{(k%2)*1024} {fl}')
    return ld

def mem_offs(t, sM, sCR):
    t(f's_and_b32 {sM[4]}, s3, 0x4000\ns_add_u32 {sM[4]}, {sM[4]}, {sCR}')
    for pr in range(5):
        t(f's_add_u32 s40, {sROT}, {pr}\ns_cmp_ge_u32 s40, 5\ns_cselect_b32 s41, 5, 0\ns_sub_u32 s40, s40, s41\ns_lshl_b32 s40, s40, 15\ns_add_u32 {sM[pr]}, {sM[4]}, s40')

def smf(D, Af, B, idx='v4'): return f'v_smfmac_f32_16x16x64_bf16 {v(D,4)}, {v(Af,4)}, {B}, {idx}'
def mf32(D, Aop, Bop, C=None): return f'v_mfma_f32_16x16x32_bf16 {v(D,4)}, {Aop}, {Bop}, {"0" if C is None else v(C,4)}'
def mf16(D, Aop, Bop, C=None): return f'v_mfma_f32_16x16x16_bf16 {v(D,4)}, {Aop}, {Bop}, {"0" if C is None else v(C,4)}'

class Ring:
    def __init__(self, e, U, keys, base, ns):
        self.e, self.U, self.keys, self.base, self.ns = e, U, [k for k in keys if U.islds(k)], base, ns
        self.reset()
    def reset(self): self.q = 0; self.nq = 0; self.emitted = 0; self.pend = []
    def queue(self):
        if self.nq < len(self.keys):
            k = self.keys[self.nq]; r = self.base + 8*(self.nq % self.ns)
            self.pend += [f'ds_read_b128 {v(r+4*h,4)}, {vWL} offset:{self.U.ldsoff(k,h)}' for h in range(2)]
            self.nq += 1
    def fill(self, n=1):
        c = 0
        while self.pend and c < n: self.e(self.pend.pop(0)); self.emitted += 1; c += 1
        return c
    def prime(self):
        self.reset()
        for _ in range(self.ns): self.queue()
        self.fill(99)
    def wait(self, key, other=0):
        if self.U.islds(key):
            assert self.keys[self.q] == key
            need = 2*(self.q+1)
            if self.emitted < need: self.fill(need - self.emitted)
            self.e(f's_waitcnt lgkmcnt({self.emitted - need + other})')
    def op(self, D, Af, key):
        if not self.U.islds(key): self.e(smf(D, Af, self.U.reg(key))); return
        self.e(smf(D, Af, v(self.base + 8*(self.q % self.ns), 8)))
        self.q += 1; self.queue()
    def state(self): return (self.q, self.nq, self.emitted, tuple(self.pend))

NPRE = 7
def crit_pass1(e, ring, MF, sM, tiles, vMax, zero_regs, KO=tuple(range(10))):
    ld0 = memloads_def(e, MF, sM)
    ld = lambda k, fl: ld0(KO[k], fl)
    slow, ok = e.lab('slow'), e.lab('ok')
    NPRE = e.o.get('npre', 7); PACE = e.o.get('pace', 14)
    ek = [0 if e.o.get('early', 1) else 2]
    def early():
        e(f'v_cmp_u_f32 vcc, v{MF+4*KO[0]}, v{MF+4*KO[1]+3}' if ek[0] == 0 else f's_cbranch_vccnz {slow}'); ek[0] += 1
    def body(fl, first):
        zr = list(zero_regs)[::2]; per = -(-len(zr)//(NPRE-1))
        for k in range(NPRE):
            ld(k, fl)
            if k == 0 and not first: e('s_waitcnt lgkmcnt(0)'); ring.prime()
            if k < NPRE-1:
                z = [zr.pop(0) for _ in range(min(per, len(zr)))]; left = max(0, PACE - len(z))
                for j, r in enumerate(z):
                    n = (left*(j+1))//len(z) - (left*j)//len(z)
                    e(f'v_mov_b64 {v(r,2)}, 0' + (f'\ns_nop {n-1}' if n else ''))
        issued = NPRE
        for k in range(10):
            e(f's_waitcnt vmcnt({issued-1-k})')
            if k == 0 and first: e.ts(2)
            todo = ['ld'] if issued < 10 else []
            for i, (D, kf) in enumerate(tiles):
                ring.wait(kf(KO[k]))
                ring.op(D, MF+4*KO[k], kf(KO[k]))
                if i == len(tiles)-1:
                    ring.fill(99)
                    if todo: ld(issued, fl); issued += 1
                    elif first and ek[0] < 2 and k >= 3 and len(tiles) == 3: early()
                elif ring.fill(1): pass
                elif todo: todo.pop(); ld(issued, fl); issued += 1
                elif first and ek[0] < 2: early()
    e.ts(1)
    body('', True)
    end = ring.state()
    backs = []
    def nancheck(D, summed=False):
        c = e.lab('chk'); bk = e.lab('bk'); backs.append((c, bk))
        if summed: return [f'v_cmp_u_f32 vcc, v{D}, v{D+2}', f's_cbranch_vccnz {c}\n{bk}:']
        return [f'v_cmp_u_f32 s[62:63], v{D}, v{D+1}', f'v_cmp_u_f32 vcc, v{D+2}, v{D+3}', f's_or_b64 vcc, vcc, s[62:63]\ns_cbranch_scc1 {c}\n{bk}:']
    def slowpath():
        (c, bk), = backs
        e(f'{c}:\ns_cmp_lt_u32 s34, 2\ns_cbranch_scc1 {slow}\nv_mov_b32 {vMax}, 0')
        for k in range(10):
            r = MF+4*k; e(f'v_max3_u32 {vMax}, {vMax}, v{r}, v{r+1}\nv_max3_u32 {vMax}, {vMax}, v{r+2}, v{r+3}')
        e(f'v_cmp_eq_u32 vcc, -1, {vMax}\ns_cbranch_vccz {bk}')
        go = e.lab('go'); e.tmo(go); e(f'{go}:')
        e(f'{slow}:\ns_add_u32 s34, s34, 1\ns_nop 7')
        body('sc1', False)
        assert ring.state() == end
        e(f's_nop 7\ns_branch {ok}')
    e(f'{ok}:')
    return nancheck, slowpath

class Tok1:
    def __init__(self, e, U, tiles, XB, ST):
        self.e, self.U, self.tiles, self.XB, self.ST, self.id = e, U, tiles, XB, ST, e.lab('t')
    def lds_keys(self, kp): return [kf(kp//2) for (_, kf) in self.tiles if self.U.islds(kf(kp//2))]
    def reads(self, kp):
        b = kp % 3
        out = [f'ds_read_b128 {v(self.XB+8*b+4*tt,4)}, {vL16} offset:{L_X + kp*2048 + tt*1024}' for tt in range(2)]
        out += [f'ds_read_b128 {v(self.ST+8*b+4*i,4)}, {vWL} offset:{self.U.ldsoff(k, kp%2)}' for i, k in enumerate(self.lds_keys(kp))]
        out[-1] += f' ;@{self.id}_{kp}'
        return out
    def prologue(self): return self.reads(0) + self.reads(1)
    def run(self, hooks, extra, late=None):
        e, U = self.e, self.U
        extra = list(extra); hk = list(hooks[-1]()) if -1 in hooks else []; late = late or {}
        cost = lambda x: 2 if x.startswith(('v_exp', 'v_rcp', 'v_perml', 'buffer_', 'ds_', 's_')) or 'barrier' in x else 1
        def fill(room):
            c = 0
            while extra and c < room:
                x = extra[0]
                if x == '-':
                    if c == 0: extra.pop(0)
                    break
                if x == '|':
                    extra.pop(0)
                    if c: break
                    continue
                if c + cost(x) > room or (room < 2 and x.startswith('@')): break
                e(extra.pop(0)); c += cost(x)
        e(f'@wl {self.id}_0'); NT = 2*len(self.tiles); since = 9
        for kp in range(20):
            nxt = self.reads(kp+2) if kp+2 < 20 else []
            b = kp % 3; lk = self.lds_keys(kp); n = 0
            for (acc, kf) in self.tiles:
                k = kf(kp//2)
                Aop = v(self.ST+8*b+4*lk.index(k), 4) if U.islds(k) else U.reg(k, 4*(kp % 2), 4)
                for tt in range(2):
                    e(mf32(acc+4*tt, Aop, v(self.XB+8*b+4*tt, 4), None if kp == 0 else acc+4*tt)); n += 1; since += 1
                    last = n == NT and kp < 19
                    if last: e(f'@wl {self.id}_{kp+1}')
                    n1 = len(e.L)
                    if n == NT and kp in hooks: hk += hooks[kp]()
                    if len(e.L) > n1: pass
                    elif (kp, n) in late: e(late[(kp, n)])
                    elif nxt: e(nxt.pop(0)); fill(1)
                    elif hk and not last and (since >= 4 or not 'buffer_' in hk[0]):
                        if 'buffer_' in hk[0]: since = 0
                        e(hk.pop(0))
                    elif last and extra and extra[0].startswith(('s_', '@')): pass
                    else: fill(2)
            assert not nxt
        assert not hk and not [x for x in extra if x not in '|-'], (hk, extra)

def salu_groups(t):
    sal = [x.strip() for x in t.L]; L = []; cur = []
    for x in sal:
        if len(cur) == 3 or (x.startswith('s_cmp') and len(cur) == 2): L.append('\n'.join(cur)); cur = []
        cur.append(x)
    L.append('\n'.join(cur))
    return L

def schedule(e, main, ops, pos0, burst=99):
    pos = dict(pos0); n0 = len(e.L); ops = list(ops); main = list(main)
    cur = lambda: sum(1 for x in e.L[n0:] if not x.strip().endswith(':'))
    def dist(d):
        L = [x.strip() for x in e.L[n0:] if not x.strip().endswith(':')]
        a = len(L) - pos[d] - 1
        ism = lambda x: x.startswith(('v_mfma', 'v_smfmac'))
        if pos[d] < 0 or ism(L[pos[d]]):
            later = [i for i in range(max(pos[d]+1, 0), len(L)) if ism(L[i])]
            if later: a = max(a, 4*len(later) + len(L) - later[-1] - 1)
        return a
    def ready(o): return all(d in pos and dist(d) >= k for d, k in o[3])
    def emit(o): pos[o[0]] = cur(); e(o[1]); ops.remove(o)
    def fillers(n):
        for o in [o for o in ops if o[2] == 's' and ready(o)]: emit(o)
        for _ in range(n):
            c = [o for o in ops if o[2] == 'v' and ready(o)]
            if c: emit(c[0])
    while main:
        c = [o for o in ops if o[2] == 'm' and ready(o)]
        if c: emit(c[0]); fillers(2); continue
        nm, fn = main.pop(0); c0 = cur(); fn(); L = [x.strip() for x in e.L[n0:] if not x.strip().endswith(':')]; pos[nm] = max(i for i in range(c0, len(L)) if L[i].startswith('v_smf')); fillers(1)
        if len([o for o in ops if o[2] == 'v' and all(d in pos for d, _ in o[3])]) >= burst: fillers(1)
    while ops:
        c = [o for o in ops if ready(o)]
        if c: emit(c[0])
        else: e('s_nop 0')

def flagclear_bulk(e, blk, vt):
    e(f'v_lshlrev_b32 v{vt}, 22, v1\ns_lshl_b32 s40, {sSIDE}, 13\ns_add_u32 s40, s40, s42\ns_add_u32 s40, s40, {BULK + blk*BS}')
    e(f'v_mov_b32 v{vt+1}, -1\ns_mov_b32 exec_hi, 0\nbuffer_store_dword v{vt+1}, v{vt}, {sWS}, s40 offen sc1\ns_mov_b32 exec_hi, -1')

def role_vo(e):
    keys_l = [('v', 2, k) for k in range(10)] + [('v', 1, k) for k in (2, 5, 8)]
    keys_r = [('o', u, k) for u in range(10) for k in range(3)] + [('v', t, k) for t in range(2) for k in range(10) if ('v', t, k) not in keys_l]
    U = Units(keys_r, keys_l)
    sFFN, sSTR, sWB, sSTP, sOB = 's29', 's30', 's31', 's32', 's33'
    sCR, sCR2, sB0, sB1, sX, sM = 's35', 's36', 's37', 's38', 's39', ('s46', 's47', 's48', 's58', 's59')
    sSL, sFR = 's49', 's50'
    L_VX, L_VM = L_MISC, L_MISC + 12288
    e('L_VO:')
    e('s_mov_b32 s47, 7864320')
    e(f's_lshl_b32 {sU}, {sXQ}, 3\ns_add_u32 {sU}, {sU}, {sJ}\ns_sub_u32 {sU}, {sU}, 8\ns_mov_b32 {sFFN}, 0\ns_mov_b32 {sSTR}, 12288\ns_mov_b32 s42, {sU}\ns_branch L_VF')
    e('L_FFN:')
    e('s_mov_b32 s47, 1966080')
    e(f's_lshl_b32 {sU}, {sXQ}, 1\ns_add_u32 {sU}, {sU}, {sJ}\ns_sub_u32 {sU}, {sU}, 26\ns_mov_b32 {sFFN}, 1\ns_mov_b32 {sSTR}, 3072\ns_add_u32 s42, {sU}, 32')
    e('L_VF:')
    e(f's_lshr_b32 s40, s42, 3\ns_lshl_b32 s40, s40, 14\ns_and_b32 s41, s42, 7\ns_lshl_b32 s41, s41, 10\ns_add_u32 {sSL}, s40, s41\ns_lshl_b32 s51, s42, 7')
    e(f's_mul_i32 {sWB}, {sU}, 384\ns_lshl_b32 {sSTP}, {sSTR}, 5\ns_mul_i32 {sOB}, {sU}, 245760')
    common_wsetup(e)
    VO1, VR1, VO2, VR2 = 16, 19, 20, 23
    setup_colchunk(e, VO1, VR1, sSTR)
    nset = len(e.L)
    for ii in range(3):
        e(f's_mul_i32 s40, {sW}, 192\ns_add_u32 s40, s40, {64*ii}\ns_min_u32 s40, s40, 576\nv_add_u32 v10, s40, v1\nv_mul_u32_u24 v11, 1639, v10\nv_lshrrev_b32 v11, 16, v11')
        e(f'v_mul_u32_u24 v12, 40, v11\nv_sub_u32 v12, v10, v12\nv_mul_u32_u24 v11, 1280, v11\nv_lshl_add_u32 v{VO2+ii}, v12, 4, v11')
    e(f'v_lshrrev_b32 v10, 2, v1\nv_mul_u32_u24 v10, 640, v10\nv_and_b32 v11, 3, v1\nv_lshl_add_u32 v10, v11, 3, v10\ns_mul_i32 s40, {sW}, 160\nv_add_u32 v{VR2}, s40, v10')
    chunks = col_chunks(e, sA, VO1, VR1, sWB, sSTP, lambda t, k: ('v', t, k))
    for r16 in range(12):
        for hf in range(2):
            def soff(r16=r16, hf=hf): e(f's_mul_i32 s45, s48, {(3 if r16 < 6 else -3)*16*1280}\ns_add_u32 s45, s45, {sOB}\ns_add_u32 s45, s45, {r16*16*1280 + hf*640}')
            chunks.append(dict(srd=sB, voff=VO2, soff=soff, reads=[(('o', 5*hf+uu, r16//4), 2*(r16 % 4), f'v{VR2}', 32*uu) for uu in range(5)]))
    e(f'v_and_b32 v13, 15, v1\nv_lshrrev_b32 v14, 4, v1')
    e(f'v_and_b32 v4, 1, v1\nv_mul_u32_u24 v4, 0xaaaa, v4\nv_add_u32 v4, 0x4444, v4')
    for (dst, tau) in ((5, 0), (6, 1)):
        e(f's_mul_i32 s40, {sW}, 3\ns_add_u32 s40, s40, {tau}\ns_lshr_b32 s41, s40, 1\ns_and_b32 s40, s40, 1')
        e(f's_lshl_b32 s43, s41, 10\ns_lshl_b32 s44, s40, 3\ns_add_u32 s43, s43, s44\ns_add_u32 s43, s43, {L_VX}\nv_add_u32 v{dst}, s43, {vL16}')
        e(f's_lshl_b32 s43, s41, 9\ns_lshl_b32 s44, s40, 2\ns_add_u32 s43, s43, s44\ns_add_u32 s43, s43, {L_VM}\nv_mov_b32 v{dst+2}, s43')
    e('''v_lshrrev_b32 v10, 3, v13
    v_lshlrev_b32 v10, 8, v10
    v_bfe_u32 v11, v13, 1, 1
    v_lshl_add_u32 v10, v11, 4, v10
    v_bfe_u32 v11, v13, 2, 1
    v_lshl_add_u32 v10, v11, 3, v10
    v_and_b32 v11, 1, v13
    v_lshl_add_u32 v10, v11, 5, v10
    v_lshl_add_u32 v10, v14, 6, v10
    v_add_u32 v7, v7, v10
    v_add_u32 v8, v8, v10''')
    e(f'''v_and_b32 v10, 1, v14
    v_lshrrev_b32 v11, 1, v14
    v_lshl_add_u32 v12, v10, 1, v11
    s_and_b32 s40, {sW}, 1
    s_mul_i32 s40, s40, 10
    s_add_u32 s40, s40, {B_VOM}
    s_lshl_b32 s40, s40, 14
    s_lshl_b32 s41, {sU}, 8
    s_add_u32 s40, s40, s41
    v_lshl_add_u32 v15, v13, 4, s40
    v_lshl_add_u32 v9, v12, 15, v15
    v_lshlrev_b32 v10, 3, v10
    v_add_u32 v11, 13, v11
    v_lshl_add_u32 v11, v11, 15, v15
    v_add_u32 v11, v11, v10
    v_add_u32 v10, {18*BS}, v9
    v_add_u32 v15, {8*BS}, v9
    v_cmp_eq_u32 vcc, 0, v12
    v_cndmask_b32 v10, v10, v15, vcc
    v_lshrrev_b32 v15, 19, v9
    v_lshl_add_u32 v9, v15, 14, v9
    v_lshrrev_b32 v15, 19, v10
    v_lshl_add_u32 v10, v15, 14, v10
    v_lshrrev_b32 v15, 19, v11
    v_lshl_add_u32 v11, v15, 14, v11
    v_and_b32 v12, 1, v1
    v_cmp_eq_u32 vcc, 1, v12
    v_mov_b32 v14, 0x05040100
    v_mov_b32 v12, 0x03020706
    v_cndmask_b32 v14, v14, v12, vcc
    v_mov_b32 v12, 0''')
    def clear_vom(so):
        for r in range(124, 128): e(f'v_mov_b32 v{r}, -1')
        e(f'buffer_store_dwordx4 v[124:127], v9, {sWS}, {so} offen sc1\nbuffer_store_dwordx4 v[124:127], v10, {sWS}, {so} offen sc1\nbuffer_store_dwordx2 v[124:125], v11, {sWS}, {so} offen sc1')
    setup = e.L[nset:]; del e.L[nset:]
    def started():
        e.wait_start(vt=30, primed=True)
        e(f's_lshr_b32 s40, {sW}, 1\ns_xor_b32 s40, s40, s41\ns_lshl_b32 s40, s40, 14\nv_xor_b32 v9, s40, v9\nv_xor_b32 v10, s40, v10\nv_xor_b32 v11, s40, v11')
    load_weights(e, U, chunks, started, sX, True, setup, 's47')
    XB, ST, AC1, VF, AC2, PK = 40, 64, 92, 84, 16, 32
    T1 = Tok1(e, U, [(AC1+8*t, (lambda k, t=t: ('v', t, k))) for t in range(3)], XB, ST)
    e(f's_sub_u32 {sS}, {sSIDE}, 2\ns_mov_b32 s43, 0\ns_mov_b32 s52, 0\ns_or_b32 s64, {sFFN}, {sSIDE}\ns_xor_b32 s64, s64, 1')
    e('L_VF_E:\ns_mov_b64 s[54:55], 0\ns_mov_b64 s[56:57], 0\ns_mov_b64 s[60:61], 0\ns_mov_b32 s53, 1')
    for x in T1.prologue(): e(x.split(';@')[0])
    e('s_waitcnt lgkmcnt(0)\ns_branch L_VF_B')
    e('L_VF_loop:')
    e.ts(0)
    for kp in range(6):
        for tt in range(2): e(f'ds_read_b128 {v(VF+8*kp+4*tt,4)}, {vL16} offset:{L_VX + (tt*6+kp)*1024} ;@vf{kp}')
    t = G(**e.o); t(f's_add_u32 {sX}, {sX}, 131072\ns_mov_b32 s53, {sFFN}\ns_mov_b64 s[60:61], -1'); t.bulk_off(sB0)
    t(f's_add_u32 {sB1}, {sB0}, {2<<20}\ns_xor_b32 {sB1}, {sB1}, 8192')
    t(f's_mul_i32 s42, {sW}, {25*BS}\ns_add_u32 s42, s42, {sSL}\ns_add_u32 s43, s42, {sB1}\ns_add_u32 s42, s42, {sB0}')
    t(f's_add_u32 s52, {sB0}, s51\ns_add_u32 s52, s52, {B_VF*BS}')
    t(f's_cmp_eq_u32 {sFFN}, 0\ns_cselect_b64 s[54:55], -1, 0\ns_cmp_eq_u32 {sW}, 0\ns_cselect_b64 s[56:57], 1, 0')
    sa = salu_groups(t)
    dm = xdma_list(0, 20, sX); dm[-1] += ' ;@xdma'
    def fin(u):
        ac = AC2+8*(u % 2); pk = PK+4*(u % 2); sr = 's42' if u < 5 else 's43'
        c = [f'v_cvt_pk_bf16_f32 v{pk+i}, v{ac+4*(i&1)+2*(i>>1)}, v{ac+4*(i&1)+2*(i>>1)+1}' for i in (0, 2, 1, 3)]
        st = f'buffer_store_dwordx4 {v(pk,4)}, {vL16}, {sWS}, {sr} offen sc1'
        return [c[0]+'\n'+c[1], c[2]+'\n'+c[3], (f's_add_u32 {sr}, {sr}, {5*BS}\n' if u % 5 else '') + st]
    pro = T1.prologue()
    for u in range(10):
        ac = AC2+8*(u % 2); pend = fin(u-1) if u else []
        n = 0
        for kp in range(6):
            if u == 0: e(f'@wl vf{kp}')
            for tt in range(2):
                e(mf32(ac+4*tt, v(VF+8*kp+4*tt, 4), U.reg(('o', u, kp//2), 4*(kp % 2), 4), None if kp == 0 else ac+4*tt)); n += 1
                if u == 0:
                    if sa: e(sa.pop(0))
                elif n in (2, 3, 4): e(pend.pop(0))
                elif dm and (n in (7, 11) or (n in (6, 10) and dm[0].startswith('s_'))): e(dm.pop(0))
                elif u == 9 and n == 5: e('@wv xdma\ns_barrier')
                elif u == 9 and n >= 6 and pro: e(pro.pop(0))
        assert not sa
    assert not pro and not dm
    e('s_cmp_lg_u32 s64, 0\ns_cbranch_scc1 L_VF_lite')
    e('L_VF_B:')
    e.ts(6)
    t = G(**e.o); t.crit_off(sCR); mem_offs(t, sM, sCR)
    t(f's_add_u32 {sFR}, {sCR}, s3\ns_mov_b32 s34, 0')
    f9 = fin(9); x = f9[2].split('\n')
    ex = ['-'] + f9[0].split('\n') + f9[1].split('\n') + [x[0], f's_mov_b64 exec, s[60:61]\n{x[1]}\ns_mov_b64 exec, -1'] + salu_groups(t)
    def hkflag():
        e('s_waitcnt vmcnt(0)\ns_barrier')
        return [f's_mov_b64 exec, s[56:57]\nbuffer_store_dword v12, v12, {sWS}, s52 offen sc1\ns_mov_b64 exec, -1']
    def hkclr(): return [f's_mov_b64 exec, s[54:55]\nbuffer_store_{x}, {sWS}, {sCR2} offen sc1\ns_mov_b64 exec, -1' for x in ('dwordx4 v[124:127], v9', 'dwordx4 v[124:127], v10', 'dwordx2 v[124:125], v11')]
    pp = e.poll_prime('v12', sFR, 132)
    n0 = len(e.L); e('L_VF_lite:\ns_nop 7')
    for x in ex:
        if x not in '|-': e(x)
    for x in hkflag() + pp: e(x)
    e('s_waitcnt lgkmcnt(0)\ns_branch L_VF_C'); lite = e.L[n0:]; del e.L[n0:]
    T1.run({7: hkflag}, ex, {(19, 2): pp[0]})
    e.ts(7)
    l = e.lab('nsilu'); e(f's_cmp_lg_u32 {sFFN}, 0\ns_cbranch_scc1 L_silu\n{l}:')
    n0 = len(e.L); e('L_silu:\ns_nop 7')
    for r in range(AC1, AC1+24, 2):
        e(f'v_cvt_pk_bf16_f32 v16, v{r}, v{r+1}\nv_lshlrev_b32 v{r}, 16, v16\nv_and_b32 v{r+1}, 0xffff0000, v16')
        e(f'v_mul_f32 v16, {f2u(-LOG2E)}, v{r}\nv_mul_f32 v17, {f2u(-LOG2E)}, v{r+1}\nv_exp_f32 v16, v16\nv_exp_f32 v17, v17\nv_add_f32 v16, 1.0, v16\nv_add_f32 v17, 1.0, v17')
        e(f'v_rcp_f32 v16, v16\nv_rcp_f32 v17, v17\nv_mul_f32 v{r}, v{r}, v16\nv_mul_f32 v{r+1}, v{r+1}, v17')
    e(f's_branch {l}'); silu_code = e.L[n0:]; del e.L[n0:]
    for t in range(3):
        for tt in range(2):
            r = AC1+8*t+4*tt; d = 16+4*t+2*tt
            e(f'v_cvt_pk_bf16_f32 v{d}, v{r}, v{r+1}\nv_cvt_pk_bf16_f32 v{d+1}, v{r+2}, v{r+3}')
            e(f'ds_write_b64 {"v6" if t == 1 else "v5"}, {v(d,2)} offset:{tt*6144 + (1024 if t == 2 else 0)}')
        if t < 2: e(pp[1+t])
    e(f's_cmp_lg_u32 s53, 0\ns_cbranch_scc1 L_VF_skip\nL_VF_C:')
    MF, AC, RS, AD = 16, 56, 68, 92
    KO = [k ^ e.o.get('vswap', 0) for k in range(10)]
    order = [('v', t, k) for k in KO for t in (2, 1, 0)]
    ring = Ring(e, U, order, RS, 3)
    ring.prime()
    e.ts(5)
    e.poll('v12', sFR, 132, primed=True)
    e('s_barrier')
    nanchk, slow = crit_pass1(e, ring, MF, sM, [(AC+4*t, (lambda k, t=t: ('v', t, k))) for t in (2, 1, 0)], 'v13', list(range(AC, AC+12)) + list(range(AD, AD+32)), KO)
    e.ts(10)
    nc = nanchk(AC+8, True)
    z = [f'v_mov_b64 {v(r,2)}, 0' for r in range(AD+32, AD+40, 2)]
    vb = e.o.get('vb', 4)
    def s1(t): d = AC+4*t; return f'v_add_f32 v{d}, v{d}, v{d+1}\nv_add_f32 v{d+2}, v{d+2}, v{d+3}\nv_cvt_pk_bf16_f32 v{d+1}, v{d}, v{d+2}'
    def s2(t):
        d = AC+4*t
        return f'v_mov_b32_dpp v{d+3}, v{d+1} quad_perm:[1,0,3,2] row_mask:0xf bank_mask:0xf\nv_perm_b32 v{d+1}, v{d+3}, v{d+1}, v14\nds_write_b32 {"v8" if t == 1 else "v7"}, v{d+1} offset:{512 if t == 2 else 0}'
    for x in (s1(2), s1(1), s2(2), s1(0), s2(1), s2(0), nc[0], z[0], 's_nop 2', nc[1]): e(x)
    e(f's_waitcnt lgkmcnt(0)\n{z[1]}\ns_barrier')
    for k in range(3): e(f'ds_read_b128 {v(MF+4*k,4)}, {vL16} offset:{L_VM + k*1024}')
    e(f'{z[2]}\ns_nop {vb}\n{z[3]}')
    e.ts(3)
    OT = 28
    main = []; ops = []
    for pi in range(5):
        for u in (2*pi, 2*pi+1):
            for k in range(3):
                def fn(pi=pi, k=k, u=u):
                    if u == 0: e(f's_waitcnt lgkmcnt({2-k})')
                    e(smf(AD+4*u, MF+4*k, U.reg(('o', u, k))))
                main.append((f's{u}_{k}', fn))
        for u in (2*pi, 2*pi+1):
            d = AD+4*u; o = OT+u
            ops.append((f'a{u}', f'v_add_f32 v{d}, v{d}, v{d+1}', 'v', [(f's{u}_2', 8)]))
            ops.append((f'b{u}', f'v_add_f32 v{d+2}, v{d+2}, v{d+3}', 'v', [(f'a{u}', 0)]))
            ops.append((f'c{u}', f'v_cvt_pk_bf16_f32 v{o}, v{d}, v{d+2}', 'v', [(f'b{u}', 0)]))
        o = OT+2*pi
        ops.append((f'w{pi}', f'v_permlane32_swap_b32 v{o}, v{o+1}', 'v', [(f'c{2*pi}', 2), (f'c{2*pi+1}', 2)]))
        if pi in (1, 3):
            g0 = OT+4*(pi//2)
            ops.append((f'x{pi}_0', f'v_permlane16_swap_b32 v{g0}, v{g0+2}', 'v', [(f'w{pi}', 2), (f'w{pi-1}', 2)]))
            ops.append((f'x{pi}_1', f'v_permlane16_swap_b32 v{g0+1}, v{g0+3}', 'v', [(f'w{pi}', 2), (f'w{pi-1}', 2)]))
            ops.append((f'st{pi}', f'buffer_store_dwordx4 {v(g0,4)}, v{9+pi//2}, {sWS}, {sCR} offen sc1', 'v', [(f'x{pi}_1', 0), (f'x{pi}_0', 0)]))
        if pi == 4:
            ops.append(('st4', f'buffer_store_dwordx2 {v(o,2)}, v11, {sWS}, {sCR} offen sc1', 'v', [('w4', 0)]))
    schedule(e, main, ops, {}, burst=e.o.get('burst', 9))
    if e.o.get('ackts') == 1: e.ts(9); e('s_waitcnt vmcnt(0)')
    e.ts(4)
    e.tsflush(11, 60)
    e('s_cmp_lg_u32 s64, 0\ns_mov_b32 s64, 0\ns_cbranch_scc1 L_VF_E')
    e('L_VF_next:')
    e(f's_add_u32 {sS}, {sS}, 2\ns_cmp_lt_u32 {sS}, {e.o["nseg"]}\ns_cbranch_scc1 L_VF_loop\ns_branch L_end')
    e('L_VF_skip:\ns_waitcnt lgkmcnt(0)')
    fg = e.o.get('fgate', 2)
    if fg:
        l = e.lab('ng')
        e(f's_cmp_eq_u32 {sFFN}, 0\ns_cbranch_scc1 {l}\ns_cmp_lt_i32 {sS}, {fg}\ns_cbranch_scc1 {l}')
        e.crit_off('s42', -fg); e(f's_add_u32 s42, s42, s3\ns_add_u32 s42, s42, {F_Q}')
        e.poll('v12', 's42', 132, D=1, sleep=1); e(f'{l}:')
    e('s_barrier\ns_branch L_VF_next')
    slow()
    e.L += silu_code + lite

def dppred(op, m):
    return [f'{op}_dpp v{m}, v{m}, v{m} {c} row_mask:0xf bank_mask:0xf' for c in ('quad_perm:[1,0,3,2]', 'quad_perm:[2,3,0,1]', 'row_half_mirror', 'row_ror:8')]

def role_qk(e):
    keys_l = [('q', 2, k) for k in range(10)] + [('k', 1, k) for k in (5, 7, 9)]
    K1ORD = [0, 5, 1, 2, 7, 3, 4, 9, 6, 8]
    keys_r = [(m, t, k) for m in 'qk' for t in range(3) for k in range(10) if (m, t, k) not in keys_l]
    U = Units(keys_r, keys_l)
    sSTR, sWB, sSTP = 's30', 's31', 's32'
    sCR, sCR2, sB0, sX, sM = 's35', 's36', 's37', 's39', ('s46', 's47', 's48', 's56', 's57')
    sFR, sPT, sPTc, sLead, sRP, sPTo = 's50', 's51', 's52', 's53', 's49', 's33'
    sC2 = 's[54:55]'
    mN8, mMM, mV, mTA = 's[56:57]', 's[58:59]', 's[60:61]', 's[64:65]'
    L_SM, L_TM = L_MISC, L_MISC + 12288
    vZ = 'v6'; SEL = 12
    CM = [f's[{r}:{r+1}]' for r in (8, 10, 12, 14, 94, 96, 98, 100)]
    e('L_QK:')
    e(f's_lshl_b32 {sU}, {sXQ}, 3\ns_add_u32 {sU}, {sU}, {sJ}\ns_mov_b32 {sSTR}, 12288\ns_mul_i32 {sWB}, {sU}, 384\ns_lshl_b32 {sSTP}, {sSTR}, 5')
    common_wsetup(e)
    VO1, VR1 = 16, 19
    setup_colchunk(e, VO1, VR1, sSTR)
    cq = col_chunks(e, sA, VO1, VR1, sWB, sSTP, lambda t, k: ('q', t, k))
    ck = col_chunks(e, sB, VO1, VR1, sWB, sSTP, lambda t, k: ('k', t, k))
    chunks = [c for p in zip(cq, ck) for c in p]
    nset = len(e.L)
    e(f's_mov_b32 s56, 0x00ff00ff\ns_mov_b32 s57, 0x00ff00ff\ns_mov_b32 s58, 0\ns_mov_b32 s59, 0x00ff00ff\ns_mov_b32 s60, 0x03ff03ff\ns_mov_b32 s61, 0x03ff03ff\ns_mov_b32 s54, {CSC}\ns_mov_b32 s55, {CSC}')
    e(f's_lshl_b32 s40, {sJ}, 2\ns_add_u32 s40, s40, {sW}\ns_cmp_eq_u32 s40, 3\ns_cselect_b32 {sLead}, 1, 0')
    e(f's_cmp_lt_u32 {sW}, 2\ns_cselect_b64 s[42:43], {mV}, 0\ns_mov_b32 s24, s42\ns_add_u32 s40, {sW}, 1\ns_bitcmp1_b32 s40, 1\ns_cselect_b64 {mTA}, -1, 0')
    e(f'v_and_b32 v20, 15, v1\nv_lshrrev_b32 v21, 4, v1\nv_and_b32 v22, 1, v21\nv_lshrrev_b32 v23, 1, v21')
    e(f'v_and_b32 v4, 1, v1\nv_mul_u32_u24 v4, 0xaaaa, v4\nv_add_u32 v4, 0x4444, v4')
    e(f"""s_mul_i32 s40, {sW}, 1536
    s_add_u32 s40, s40, {L_SM + 6160}
    v_lshrrev_b32 v24, 2, v20
    v_mul_u32_u24 v5, 176, v24
    v_and_b32 v24, 1, v20
    v_mul_u32_u24 v24, 768, v24
    v_add3_u32 v5, v5, v24, s40
    v_bfe_u32 v25, v20, 1, 1
    v_mul_u32_u24 v24, 6160, v25
    v_sub_u32 v5, v5, v24
    v_add_u32 v25, v25, v21
    v_lshl_add_u32 v8, v25, 3, v5
    v_lshl_add_u32 v5, v23, 6, v5
    v_lshl_add_u32 v5, v22, 4, v5
    s_and_b32 s43, {sW}, 1
    s_lshl_b32 s43, s43, 2
    v_add_u32 v24, s43, v21
    v_lshrrev_b32 v0, 1, v24
    v_mul_u32_u24 v0, 176, v0
    v_mul_u32_u24 v25, 768, v22
    v_add_u32 v0, v0, v25
    v_lshl_add_u32 v0, v20, 4, v0
    v_mov_b32 {vZ}, 0
    s_lshl_b32 s40, {sW}, 10
    v_add_u32 v7, s40, {vL16}
    s_lshr_b32 s41, {sW}, 1
    s_lshl_b32 s40, s41, 4
    v_add_u32 v10, s40, v20
    v_lshlrev_b32 v11, 2, v21
    v_sub_u32 v10, v10, v11
    v_lshlrev_b32 v11, 4, v20
    v_lshl_add_u32 v11, v22, 3, v11
    v_lshl_add_u32 v11, v23, 2, v11""")
    e(f"""s_mul_i32 s41, s41, 40
    s_add_u32 s40, s41, {sU}
    s_lshr_b32 s42, s40, 3
    s_lshl_b32 s42, s42, 14
    s_and_b32 s40, s40, 7
    s_lshl_b32 s40, s40, 10
    s_add_u32 {sPTc}, s42, s40
    s_lshr_b32 s40, {sU}, 2
    s_add_u32 s40, s40, s41
    s_add_u32 s40, s40, 32
    s_lshr_b32 s42, s40, 3
    s_lshl_b32 s42, s42, 14
    s_and_b32 s40, s40, 7
    s_lshl_b32 s40, s40, 10
    s_add_u32 s42, s42, s40
    s_and_b32 s40, {sU}, 3
    s_lshl_b32 s40, s40, 8
    s_add_u32 s42, s42, s40
    s_sub_u32 s42, s42, {sPTc}
    v_add_u32 v11, s42, v11
    s_add_u32 {sPTc}, {sPTc}, {B_PT*BS}""")
    e(f"""v_lshlrev_b32 v25, 5, v24
    v_and_b32 v26, 1, v20
    v_lshl_add_u32 v27, v26, 4, v25
    v_and_b32 v26, 3, v20
    v_lshl_add_u32 v25, v26, 3, v25
    s_lshr_b32 s40, {sU}, 1
    s_lshl_b32 s40, s40, 8
    s_and_b32 s41, {sU}, 1
    s_lshl_b32 s41, s41, 3
    s_add_u32 s40, s40, s41
    s_add_u32 s40, s40, {B_P*BS}
    v_add_u32 v27, s40, v27
    s_lshr_b32 s41, {sU}, 3
    s_lshl_b32 s41, s41, 15
    s_and_b32 s40, {sU}, 7
    s_lshl_b32 s40, s40, 9
    s_add_u32 s40, s40, s41
    s_add_u32 s40, s40, {(B_P+2)*BS}
    v_bfe_u32 v26, v20, 2, 1
    v_lshl_add_u32 v25, v26, 8, v25
    v_add_u32 v9, s40, v25
    v_cmp_gt_u32 vcc, 8, v20
    v_cndmask_b32 v9, v27, v9, vcc""")
    e('v_lshlrev_b32 v25, 2, v21\nv_sub_u32 v25, v20, v25\nv_mov_b32 v26, 0x3f803f80')
    for r, j in ((0, 2), (1, 3), (2, 0), (3, 1)):
        e(f'v_cmp_eq_u32 vcc, {j}, v25\nv_cndmask_b32 v{SEL+r}, 0, v26, vcc')
    def started():
        for i in range(8): e(f'v_cmp_le_i32 {CM[i]}, {(i//4)*16 + i % 4}, v10')
        e.wait_start(vt=30, vF='v10', primed=True)
        e(f's_mul_i32 s68, {sLead}, 0x10001\ns_mov_b32 s69, s68\nv_mov_b32 v30, 0x40000000\nv_cndmask_b32 v10, v30, v10, s[68:69]')
    setup = e.L[nset:]; del e.L[nset:]
    load_weights(e, U, chunks, started, sX, False, setup, 7864320)
    e(f's_mov_b32 {sS}, {sSIDE}\ns_mov_b64 s[66:67], 0\ns_mov_b32 {sPT}, 0')
    X = 16
    SA = [116, 124, 132, 28, 32]
    def ta_pre():
        L = [f'ds_write_b128 v7, {v(SA[i],4)} offset:{L_MISC + i*4096}' for i in range(3)]
        L += [f'ds_write_b64 v7, {v(SA[3+tq],2)} offset:{L_TM + tq*8}' for tq in range(2)]
        L = [L[3], L[4], L[0], f's_lshr_b32 s40, {sW}, 1\ns_lshl_b32 s41, s40, 3\ns_lshl_b32 s40, s40, 12', L[1], f'v_add_u32 v38, s40, {vL16}', 'v_add_u32 v39, s40, v38',
             L[2] + ' ;@sw', f'v_mov_b32 v37, {f2u(-1e9 * 192**0.5)}', f'v_add_u32 v36, s41, {vL16}', '-', '-', '-', '-', '@wl sw\ns_barrier']
        dst = [(X, X+4, X+8), (26, 30, 34), (116, 124, 132), (26, 30, 34)]
        rd = lambda w: [f'ds_read_b128 {v(dst[w][0],4)}, v38 offset:{L_MISC + w*1024}', f'ds_read_b128 {v(dst[w][1],4)}, v39 offset:{L_MISC + w*1024}', f'ds_read_b64 {v(dst[w][2],2)}, v36 offset:{L_TM + w*1024} ;@sr{w}']
        ad = lambda w: ['|'] + [(f'@wl sr{w}\n' if i == 0 else '') + f'v_add_f32 v{X+i}, v{X+i}, v{dst[w][i//4] + i % 4}' for i in range(10)]
        return L + rd(0) + rd(1) + rd(2) + ['-'] + ad(1) + rd(3) + ad(2) + ad(3)
    def ta_ops(inter=True):
        m, t = 34, 36
        L = []
        for i in range(8): L.append(f'v_cndmask_b32 v{X+i}, v37, v{X+i}, {CM[i]}')
        L += [f'v_max3_f32 v{m}, v{X}, v{X+1}, v{X+2}'] + [f'v_max3_f32 v{m}, v{m}, v{X+i}, v{X+i+1}' for i in (3, 5, 7)] + [f'v_max_f32 v{m}, v{m}, v{X+9}']
        def xs(op):
            o = []
            for st in (16, 32): o += [f'v_mov_b32 v{t}, v{m}', f'v_permlane{st}_swap_b32 v{m}, v{t}', f'{op} v{m}, v{m}, v{t}']
            return o
        L += xs('v_max_f32')
        L += [f'v_mul_f32 v{m}, s54, v{m}']
        L += [f'v_fma_f32 v{X+i}, v{X+i}, s54, -v{m}' for i in range(10)]
        L += [f'v_exp_f32 v{X+i}, v{X+i}' for i in range(10)]
        L += [f'v_add_f32 v{m}, v{X}, v{X+1}'] + [f'v_add_f32 v{m}, v{m}, v{X+i}' for i in range(2, 10)]
        L += xs('v_add_f32')
        L += ['|', f'v_rcp_f32 v{m}, v{m}']
        L += [f'v_mul_f32 v{X+i}, v{X+i}, v{m}' for i in range(10)]
        L += [f'v_cvt_pk_bf16_f32 v{28+d}, v{X+4*(d&1)+2*(d>>1)}, v{X+4*(d&1)+2*(d>>1)+1}' for d in range(4)] + [f'v_cvt_pk_bf16_f32 v32, v{X+8}, v{X+9}', '|']
        L += [f's_mov_b64 exec, s[66:67]\nbuffer_store_dwordx4 v[28:31], {vL16}, {sWS}, {sPTo} offen sc1\ns_mov_b64 exec, -1', '|',
              f's_mov_b64 exec, s[66:67]\nbuffer_store_dword v32, v11, {sWS}, {sPTo} offen sc1\ns_mov_b64 exec, -1', '|']
        fp = f'buffer_store_dword {vZ}, v10, {sWS}, s32 offen sc1 ;!'
        pos = max(0, len(L) - (e.o.get('fplead', 30) if inter else e.o.get('fplast', 75)))
        L[pos:pos] = ['|', fp]
        return L
    e(f's_mov_b32 s32, 0x40000000\ns_mov_b32 s69, s32\ns_mov_b32 s42, s24\ns_mov_b32 s43, s24')
    e('L_QK_loop:')
    e.ts(0)
    AC, XB, ST = 40, 88, 112
    Q = lambda tt: 16+6*tt
    Kt = lambda tt: 28+6*tt
    tiles = [(AC+8*(3*mi+t), (lambda k, m=m, t=t: (m, t, k))) for mi, m in enumerate('qk') for t in range(3)]
    T1 = Tok1(e, U, tiles, XB, ST)
    for x in T1.prologue(): e(x)
    e(f's_mov_b32 {sPTo}, {sPT}')
    def hk0():
        L = xdma_list(14, 20, sX); L[-1] += ' ;@xlate'; return L + [f's_add_u32 {sX}, {sX}, 131072']
    def hk(k0, k1):
        def f(): e('s_barrier'); return xdma_list(k0, k1, sX)
        return f
    def hk9(): e('@wv xlate\ns_barrier'); return []
    t = G(**e.o); t.crit_off(sCR); t.bulk_off(sB0); t(f's_add_u32 {sPT}, {sB0}, {sPTc}'); mem_offs(t, sM, sCR)
    t(f's_add_u32 {sFR}, {sCR}, s3\ns_mov_b32 s34, 0\ns_mov_b64 s[66:67], {mTA}')
    t(f's_lshl_b32 s40, {sXQ}, 8\ns_add_u32 s40, s40, {sCR}\ns_add_u32 s38, s40, {B_FL*BS + F_Q}\ns_add_u32 s32, s40, {B_FL*BS + F_P}')
    t(f's_cmp_lt_u32 {sS}, {2 if e.o.get("fdamp", 1) else 0}\ns_cselect_b32 s30, s69, s38\ns_cmp_lt_u32 {sS}, {2 if e.o.get("fdamp", 1) else 0}\ns_cselect_b32 s31, s38, s69')
    t(f's_and_b32 s40, s3, 0x4000\ns_add_u32 s29, {sCR}, s40\ns_xor_b32 s49, s29, 0x4000')
    cl = salu_groups(t)
    MF, AD, RS, TQ = 40, 80, 104, 128
    def cv(i, tt):
        mi, t = divmod(i, 3); r = AC+8*i+4*tt; d = (Kt if mi else Q)(tt)+2*t
        return f'v_cvt_pk_bf16_f32 v{d}, v{r}, v{r+1}\nv_cvt_pk_bf16_f32 v{d+1}, v{r+2}, v{r+3}'
    order = [('q', 2, k) for k in range(10)] + [('k', 1, k) for k in K1ORD]
    ring = Ring(e, U, order, RS, 3)
    n0 = len(e.L); ring.prime(); pr = [x.strip() for x in e.L[n0:]]; del e.L[n0:]
    late = {(18, 1): pr[0], (18, 2): pr[1], (19, 1): pr[2], (19, 2): pr[3]}
    for i in range(5):
        for tt in range(2): late[(19, 2*i+3+tt)] = cv(i, tt)
    pp = e.poll_prime(vZ, sFR, 128); assert len(pp) == 3
    late[(18, 7)] = pp[0]; late[(18, 12)] = pp[1]
    T1.run({e.o.get('xl', 6): hk0, 11: hk9, 13: hk(0, 14)}, ta_pre() + ta_ops() + cl, late)
    e.ts(7)
    e(pp[2]); e(pr[4]); e(pr[5]); e(cv(5, 0)); e(cv(5, 1))
    e.ts(5)
    e.poll(vZ, sFR, 128, primed=True)
    e('s_barrier')
    q0, k0, q1, q2, k1, k2 = (AD+4*i for i in range(6))
    p1 = [(q2, lambda k: ('q', 2, k)), (q0, lambda k: ('q', 0, k)), (k0, lambda k: ('k', 0, k)), (q1, lambda k: ('q', 1, k))]
    nanchk, slow = crit_pass1(e, ring, MF, sM, p1, 'v134', range(AD, AD+24))
    if not e.o.get('ackts'): e.ts(9)
    def flagQ(cond): return f'buffer_store_dword {vZ}, v10, {sWS}, {"s31" if cond else "s30"} offen sc1 ;!'
    lq = e.o['leadQ']
    cvt = lambda d, r: f'v_cvt_pk_bf16_f32 v{d}, v{r}, v{r+1}'
    main = []
    for (D, m) in ((k1, ('k', 1)), (k2, ('k', 2))):
        for p, k in enumerate(K1ORD):
            def fn(D=D, m=m, k=k, p=p):
                ring.op(D, MF+4*k, m + (k,))
                if m == ('k', 1) and p in (0, 3): e(f's_waitcnt lgkmcnt({4 if p == 0 else 0})')
            main.append((f'{m[0]}{m[1]}_{p}', fn))
    len_main = [0]
    TK = q1; S0, S1, SM = q0, k0, q2
    Selq, Selk = v(SEL, 2), v(SEL+2, 2)
    T_a, T_b, T_c = 104, 108, 112
    slot = lambda j: RS + 8*((10+j) % 3)
    Ta, Tb, Tc = slot(0), slot(0)+4, slot(1)
    nc = nanchk(Ta, True)
    ops = [
        ('zq2a', cvt(q2, q2), 'v', [('q2', 8)]), ('zq2b', cvt(q2+1, q2+2), 'v', [('zq2a', 0)]),
        ('zq0a', cvt(q0, q0), 'v', [('q0', 8)]), ('zq0b', cvt(q0+1, q0+2), 'v', [('zq0a', 0)]),
        ('zk0a', cvt(q0+2, k0), 'v', [('k0', 8), ('zq0b', 0)]), ('zk0b', cvt(q0+3, k0+2), 'v', [('zk0a', 0)]),
        ('zq1a', cvt(q1, q1), 'v', [('q1', 8)]), ('zq1b', cvt(q1+1, q1+2), 'v', [('zq1a', 0)]),
        ('Tq2', mf16(Ta, v(q2, 2), Selq), 'm', [('zq2b', 2), ('k1_1', 0)]),
        ('T0', mf32(Tb, v(q0, 4), v(SEL, 4)), 'm', [('zk0b', 2), ('k1_1', 0)]),
        ('Tq1', mf16(Tc, v(q1, 2), Selq), 'm', [('zq1b', 2), ('k1_4', 0)]),
        ('c2', nc[0], 'v', [('Tq2', 8)]), ('c3', nc[1], 'v', [('c2', 6), ('p1b', 0)]),
        ('p2a', cvt(TQ+4, Ta), 'v', [('Tq2', 8)]), ('p2b', cvt(TQ+5, Ta+2), 'v', [('p2a', 0)]),
        ('p0a', cvt(TQ, Tb), 'v', [('T0', 8)]), ('p0b', cvt(TQ+1, Tb+2), 'v', [('p0a', 0)]),
        ('p1a', cvt(TQ+2, Tc), 'v', [('Tq1', 8)]), ('p1b', cvt(TQ+3, Tc+2), 'v', [('p1a', 0)]),
        ('zk1a', cvt(k1, k1), 'v', [('k1_9', 8)]), ('zk1b', cvt(k1+1, k1+2), 'v', [('zk1a', 0)]),
        ('S0a', mf16(S0, v(Kt(0)+4, 2), v(TQ+4, 2)), 'm', [('p2b', 2), ('T0', 0)]),
        ('S1a', mf16(S1, v(Kt(1)+4, 2), v(TQ+4, 2)), 'm', [('p2b', 2), ('T0', 0)]),
        ('S0b', mf32(S0, v(Kt(0), 4), v(TQ, 4), S0), 'm', [('p0b', 2), ('p1b', 2), ('S0a', 6)]),
        ('S1b', mf32(S1, v(Kt(1), 4), v(TQ, 4), S1), 'm', [('p0b', 2), ('p1b', 2), ('S1a', 6)] + ([('k2_9', 0)] if e.o.get('s1late', 1) else [])),
        ('w0', f'ds_write_b128 v5, {v(S0,4)}', 'v', [('S0b', 8), ('c3', 0)]),
        ('w1', f'ds_write_b128 v5, {v(S1,4)} offset:32', 'v', [('S1b', 8), ('w0', 2)] + ([('Tk2', 0)] if e.o.get('w1late', 1) else [])),
        ('zk2a', cvt(k2, k2), 'v', [('k2_9', 8)]), ('zk2b', cvt(k2+1, k2+2), 'v', [('zk2a', 0)]),
        ('Tk2', mf16(Tb, v(k2, 2), Selk), 'm', [('zk2b', 2)]),
        ('Tk1', mf16(Ta, v(k1, 2), Selk), 'm', [('zk1b', 2), ('k2_9', 0)]),
        ('SMa', mf16(SM, v(TQ, 2), v(TQ, 2)), 'm', [('p0b', 2), ('w1' if e.o.get('s1late', 1) else 'k2_9', 0)]),
        ('pk1a', cvt(TK, Ta), 'v', [('Tk1', 8)]), ('pk1b', cvt(TK+1, Ta+2), 'v', [('pk1a', 0)]),
        ('pk2a', cvt(TK+2, Tb), 'v', [('Tk2', 8)]), ('pk2b', cvt(TK+3, Tb+2), 'v', [('pk2a', 0)]),
        ('SMb', mf32(SM, v(TK, 4), v(TQ+2, 4), SM), 'm', [('pk2b', 2), ('pk1b', 2), ('SMa', 6)]),
    ]
    PB = 44
    ops.append(('pre', 'v_mov_b32 v60, 0', 'v', [('SMb', 3)]))
    if lq < 20: ops.insert(0, ('fl', flagQ(0), 'v', [(main[lq][0], 0), ('c3', 0)]))
    if lq == 20: ops.append(('fl', flagQ(0), 'v', [('Tk2', 0)]))
    if lq == 21: ops.append(('fl', flagQ(0), 'v', [('SMb', 0)]))
    ops.append(('wm', f's_cmp_ge_u32 {sW}, 2\nds_write_b64 v8, {v(SM,2)} offset:120', 'v', [('SMb', 7)]))
    schedule(e, main, ops, {'q2': -8, 'q0': -6, 'k0': -4, 'q1': -2})
    e.ts(10)
    tt3 = ((0, 0), (0, 1), (1, 1))
    a16 = [mf16(SA[i], v(Kt(tk)+4, 2), v(Q(tq)+4, 2)) for i, (tk, tq) in enumerate(tt3)]
    a32 = [mf32(SA[i], v(Kt(tk), 4), v(Q(tq), 4), SA[i]) for i, (tk, tq) in enumerate(tt3)]
    n1 = e.o.get('nh1', 0)
    h1 = (a16 + a32)[:3+n1]
    h2 = (a16 + a32)[3+n1:] + [mf16(SA[3+tq], v(TQ, 2), v(Q(tq), 2)) for tq in range(2)] + [mf32(SA[3+tq], v(TK, 4), v(Q(tq)+2, 4), SA[3+tq]) for tq in range(2)]
    e('s_cbranch_scc1 L_QK_w23')
    for x in h1: e(x)
    e('s_mov_b64 exec, s[42:43]\ns_waitcnt lgkmcnt(0)\nv_mov_b32 v61, 0\ns_barrier')
    e.ts(3)
    Tt, m, t = PB-4, 60, 62
    for w in range(4): e(f'ds_read_b128 {v(PB+4*w,4)}, v0 offset:{L_SM + w*1536}')
    nh = 0
    e('s_waitcnt lgkmcnt(2)')
    for i in (0, 2): e(f'v_pk_add_f32 {v(PB+i,2)}, {v(PB+i,2)}, {v(PB+4+i,2)}')
    for i in (0, 2): e(f'v_pk_mul_f32 {v(PB+i,2)}, {v(PB+i,2)}, {sC2}')
    e('s_waitcnt lgkmcnt(0)')
    for i in (0, 2): e(f'v_pk_add_f32 {v(PB+8+i,2)}, {v(PB+8+i,2)}, {v(PB+12+i,2)}')
    for i in (0, 2): e(f'v_pk_fma_f32 {v(Tt+i,2)}, {v(PB+8+i,2)}, {sC2}, {v(PB+i,2)}')
    EX = PB+4; u = PB+8
    for i in range(4): e(f'v_exp_f32 v{EX+i}, v{Tt+i}')
    dp = dppred('v_add_f32', m)
    e(f'v_max3_f32 v{u}, abs(v{Tt}), abs(v{Tt+1}), abs(v{Tt+2})\nv_pk_add_f32 {v(t,2)}, {v(EX,2)}, {v(EX+2,2)}\nv_add_f32 v{m}, v{t}, v{t+1}')
    e(f's_mov_b64 exec, -1\nv_max_f32 v{u}, abs(v{Tt+3}), v{u}\n{dp[0]}')
    e(f'v_cmp_lt_f32 vcc, {f2u(e.o.get("thr", 64.0))}, v{u}\n{dp[1]}\n{dp[2]}\ns_and_b64 vcc, vcc, {mV}\ns_cselect_b64 s[62:63], 0, s[42:43]\n{dp[3]}\nL_QK_maxd:')
    n0 = len(e.L); e(f'L_QK_max:\nv_mov_b32 v{u}, {f2u(-1e30)}')
    for i in range(4): e(f'v_cndmask_b32 v{Tt+i}, v{u}, v{Tt+i}, {mV}')
    e(f'v_max3_f32 v{m}, v{Tt}, v{Tt+1}, v{Tt+2}\nv_max_f32 v{m}, v{m}, v{Tt+3}')
    for x in dppred('v_max_f32', m): e(x)
    for i in range(4): e(f'v_sub_f32 v{Tt+i}, v{Tt+i}, v{m}')
    for i in range(4): e(f'v_exp_f32 v{EX+i}, v{Tt+i}')
    e(f'v_pk_add_f32 {v(t,2)}, {v(EX,2)}, {v(EX+2,2)}\nv_add_f32 v{m}, v{t}, v{t+1}\nv_cndmask_b32 v{m}, 0, v{m}, {mV}')
    for x in dp: e(x)
    e('s_mov_b64 s[62:63], s[42:43]\ns_cmp_lg_u32 0, 0\ns_branch L_QK_maxd'); maxcode = e.L[n0:]; del e.L[n0:]
    e(f'v_rcp_f32 v{m}, v{m}\ns_mov_b64 exec, s[62:63]')
    for i in (0, 2): e(f'v_pk_mul_f32 {v(EX+i,2)}, {v(EX+i,2)}, {v(m,2)} op_sel_hi:[1,0]')
    e(f'{cvt(PB, EX)}\n{cvt(PB+1, EX+2)}')
    if e.o.get('ackts'): e.ts(9)
    e(f'buffer_store_dwordx2 {v(PB,2)}, v9, {sWS}, s49 offen sc1\nbuffer_store_dwordx2 {v(PB,2)}, v9, {sWS}, s29 offen sc1\ns_mov_b64 exec, -1\ns_cbranch_scc1 L_QK_max')
    if e.o.get('ackts') == 1: e('s_waitcnt vmcnt(0)')
    e.ts(4)
    for x in h2: e(x)
    e('L_QK_sk:')
    hh = h1 + h2; npb = e.o.get('w23pre', 2)
    n0 = len(e.L); e('L_QK_w23:')
    for x in hh[:npb]: e(x)
    e('s_waitcnt lgkmcnt(0)\ns_barrier')
    for x in hh[npb:]: e(x + (f'\ns_nop {e.o["w23nop"]}' if e.o.get('w23nop') else ''))
    e('s_branch L_QK_sk'); maxcode += e.L[n0:]; del e.L[n0:]
    if lq == 24: e(flagQ(0))
    e.ts(6)
    e.tsflush(11, 72)
    e('s_barrier'); e(flagQ(1))
    e(f's_add_u32 {sS}, {sS}, 2\ns_cmp_lt_u32 {sS}, {e.o["nseg"]}\ns_cbranch_scc1 L_QK_loop')
    e(f's_mov_b32 {sPTo}, {sPT}')
    for x in ta_pre() + ta_ops(False):
        if x not in '|-': e(x)
    e('s_branch L_end')
    slow()
    e.L += maxcode

def vom_block(e, dst):
    e(f's_lshr_b32 s40, {sXQ}, 1\ns_mul_i32 s40, s40, 10\ns_add_u32 s40, s40, {sJ}\ns_add_u32 s40, s40, {B_VOM//2 - 16}\ns_lshl_b32 {dst}, s40, 15')
    e(f's_lshr_b32 s40, s40, 4\ns_lshl_b32 s40, s40, 14\ns_xor_b32 s40, s40, s3\ns_and_b32 s40, s40, 0x4000\ns_or_b32 {dst}, {dst}, s40')

def role_r(e):
    sCR, sCN, sB0, sTB = 's35', 's36', 's37', 's38'
    sP = ['s46', 's47', 's48', 's49', 's50']; sV = ['s51', 's52']; sFQ, sLead, sTC, sPG, sXO = 's53', 's54', 's55', 's56', 's57'
    sN = ['s58', 's59', 's60', 's61']
    e(f'L_R:\ns_cmp_lg_u32 {sW}, 0\ns_cbranch_scc1 L_PF')
    e.srd(64, 10, 2621440)
    e(f's_mul_i32 {sU}, {sXQ}, 10\ns_add_u32 {sU}, {sU}, {sJ}\ns_sub_u32 {sU}, {sU}, 16\ns_cmp_eq_u32 {sJ}, 16\ns_cselect_b32 {sLead}, 0x10001, 0\ns_lshl_b32 s32, {sXQ}, 8\ns_add_u32 s32, s32, {B_FL*BS}')
    e(f's_cmp_ge_u32 {sU}, 20\ns_cselect_b32 {sPG}, 1, 0\ns_mul_i32 s40, {sPG}, 20\ns_sub_u32 s40, {sU}, s40\ns_mul_i32 {sTC}, s40, {5*BS}\ns_lshl_b32 s40, {sPG}, 21\ns_add_u32 {sTC}, {sTC}, s40\ns_lshl_b32 {sPG}, {sPG}, 13')
    e(f'''v_lshlrev_b32 {vL16}, 4, v1
    v_and_b32 v20, 15, v1
    v_lshrrev_b32 v21, 4, v1
    v_and_b32 v4, 1, v1
    v_mul_u32_u24 v4, 0xaaaa, v4
    v_add_u32 v4, 0x4444, v4
    v_and_b32 v10, 7, v1
    v_lshlrev_b32 v10, 4, v10
    v_lshl_add_u32 v10, v21, 7, v10
    v_bfe_u32 v11, v1, 3, 1
    v_lshl_add_u32 v5, v11, 3, v10
    v_and_b32 v11, 1, v20
    v_lshl_add_u32 v10, v21, 1, v11
    v_mov_b32 v7, 0x05040100
    v_mov_b32 v22, 0x03020706
    v_cmp_eq_u32 vcc, 1, v11
    v_cndmask_b32 v7, v7, v22, vcc
    v_mul_u32_u24 v23, 1280, v10
    v_and_b32 v11, 14, v20
    v_lshl_add_u32 v23, v11, 1, v23
    s_lshl_b32 s40, {sU}, 5
    v_add_u32 v23, s40, v23
    v_bfe_u32 v11, v20, 1, 1
    v_lshl_add_u32 v10, v10, 1, v11
    v_lshlrev_b32 v10, 4, v10
    v_lshrrev_b32 v11, 2, v20
    v_lshl_add_u32 v10, v11, 2, v10
    s_lshr_b32 s42, {sU}, 3
    s_lshl_b32 s42, s42, 15
    s_and_b32 s41, {sU}, 7
    s_lshl_b32 s41, s41, 8
    s_add_u32 s41, s41, s42
    v_add_u32 v6, s41, v10
    v_mul_u32_u24 v8, 1280, v20
    v_lshl_add_u32 v8, v21, 3, v8
    v_add_u32 v8, s40, v8
    v_and_b32 v9, 31, v1
    v_lshlrev_b32 v9, 7, v9
    v_and_b32 v0, 7, v1
    v_lshlrev_b32 v0, 7, v0
    v_lshlrev_b32 v3, 8, v1
    v_mov_b32 v12, 0
    v_mov_b32 v14, -1
    v_lshlrev_b32 v13, 2, v21
    v_sub_u32 v13, v20, v13
    v_mov_b32 v24, 0x3f80
    v_mov_b32 v25, 0x3f800000
    ''')
    e.ptrs(2621440, 10240)
    e(f'''buffer_load_dword v15, v23, s[12:15], 0 offen
    v_cmp_eq_u32 vcc, 0, v13
    v_cndmask_b32 v16, 0, v24, vcc
    v_cmp_eq_u32 vcc, 1, v13
    v_cndmask_b32 v16, v16, v25, vcc
    v_cmp_eq_u32 vcc, 2, v13
    v_cndmask_b32 v18, 0, v24, vcc
    v_cmp_eq_u32 vcc, 3, v13
    v_cndmask_b32 v18, v18, v25, vcc
    v_mov_b32 v17, 0
    v_mov_b32 v19, 0
    v_mov_b32 v20, 0
    v_mov_b32 v21, v16
    v_mov_b32 v22, 0
    v_mov_b32 v23, v18''')
    def reps(base): pass
    def pub(reg): e(f'buffer_store_dword {reg}, v6, {sWS}, {sCN} offen sc1\nbuffer_store_dword {reg}, v11, {sWS}, {sCN} offen sc1')
    for g in range(4): e(f's_add_u32 {sN[g]}, {sXQ}, {g}\ns_and_b32 {sN[g]}, {sN[g]}, 3')
    l = e.lab('nl'); l2 = e.lab('nc'); l3 = e.lab('ncl')
    for r in range(24, 28): e(f'v_mov_b32 v{r}, -1')
    e(f's_mul_i32 s42, {sSIDE}, 40\ns_add_u32 s42, s42, {sU}\ns_cmp_ge_u32 s42, 64\ns_cbranch_scc1 {l3}')
    e(f's_lshr_b32 s40, s42, 1\ns_and_b32 s41, s42, 1\ns_lshl_b32 s41, s41, 13\ns_lshl_b32 s43, s40, 20\ns_add_u32 s43, s43, s41\ns_add_u32 s43, s43, {B_FL*BS}')
    for o in range(6):
        if o == 3: e(f's_add_u32 s43, s43, {4096 if e.o.get("nofine") else BS}')
        e(f'buffer_store_dwordx4 v[24:27], {vL16}, {sWS}, s43 offen offset:{(o%3)*1024} sc1')
    e(f's_lshl_b32 s43, s40, 22\ns_add_u32 s43, s43, s41\ns_add_u32 s43, s43, {BULK + B_VF*BS}')
    for o in range(4): e(f'buffer_store_dwordx4 v[24:27], {vL16}, {sWS}, s43 offen offset:{o*1024} sc1')
    e(f's_add_u32 s43, s43, 4096\nbuffer_store_dwordx4 v[24:27], {vL16}, {sWS}, s43 offen sc1')
    e(f's_sub_u32 s43, s42, {B_FL}\ns_cmp_lt_u32 s43, 4\ns_cbranch_scc1 {l3}\ns_lshl_b32 s43, s42, 14')
    for o in range(32):
        e(f'buffer_store_dwordx4 v[24:27], {vL16}, {sWS}, s43 offen offset:{(o % 4)*1024} sc1')
        if o % 4 == 3: e(f's_add_u32 s43, s43, {4096 if o != 15 else (1 << 20) - 12288}')
    e(f'{l3}:\ns_lshl_b32 s43, {sSIDE}, 22\ns_lshl_b32 s41, {sU}, 12\ns_add_u32 s43, s43, s41\ns_add_u32 s43, s43, {BULK + B_PT*BS}')
    for o in range(4): e(f'buffer_store_dwordx4 v[24:27], {vL16}, {sWS}, s43 offen offset:{o*1024} sc1')
    e(f'\ns_mov_b32 s45, 1\ns_cmp_lg_u32 {sJ}, 25\ns_cbranch_scc1 {l}')
    e('s_barrier\nv_lshlrev_b32 v30, 2, v1\nds_read_b32 v31, v30 offset:16\nds_read_b32 v32, v30 offset:32\nds_read_b32 v33, v30 offset:48\ns_waitcnt lgkmcnt(0)\nv_min3_u32 v31, v31, v32, v33')
    for c in range(4): e(f'v_readlane_b32 s{46+c}, v31, {c}')
    e('s_min_u32 s40, s46, s48\ns_min_u32 s41, s47, s49\ns_cmp_lt_u32 s41, s40\ns_cselect_b32 s45, 1, 0\ns_cselect_b32 s46, s47, s46\ns_cselect_b32 s48, s49, s48')
    e(f's_xor_b32 s45, s45, {sSIDE}\ns_lshl_b32 s45, s45, 16\ns_or_b32 s45, s45, 1')
    e(f's_cmp_lt_u32 s48, s46\ns_cselect_b32 s46, 1, 0\ns_xor_b32 s46, s46, {sXQ}\ns_and_b32 s46, s46, 1\ns_lshl_b32 s46, s46, 24\ns_or_b32 s45, s45, s46')
    e(f'{l}:\ns_waitcnt vmcnt(0)')
    e.ts(2)
    e.arrive(extra='s45', vt=30)
    e.wait_start(vt=30, vF='v3'); e.startflush(30)
    vom_block(e, 's50')
    e(f'v_add_u32 v11, {BS}, v6\nv_add_u32 v5, 4096, {vL16}\nv_add_u32 v9, {5*BS}, {vL16}\nv_add_u32 v10, {5*BS + 4096}, {vL16}')
    def flagR(msk):
        e(f's_add_u32 s40, {sCN}, s32\ns_mov_b32 exec_lo, {msk}\ns_mov_b32 exec_hi, {msk}\nbuffer_store_dword v12, v3, {sWS}, s40 offen sc1\ns_mov_b64 exec, -1')
    e(f's_cmp_eq_u32 {sSIDE}, 0\ns_cbranch_scc1 {l2}\ns_mov_b32 {sS}, 0')
    e('v_min_u32 v15, -2, v15')
    e.crit_off(sCN, 0); reps(sCN); pub('v15')
    if not e.o.get('sync0', 0): e('s_waitcnt vmcnt(0)'); flagR(sLead)
    e(f'{l2}:\ns_mov_b32 {sS}, {sSIDE}')
    e('L_R_loop:')
    e.ts(0)
    e.bulk_off(sB0)
    e(f's_xor_b32 {sTB}, {sB0}, {sPG}\ns_add_u32 {sTB}, {sTB}, {sTC}\ns_barrier')
    e.ts(7)
    def ldvot(k0, k1):
        for k in range(k0, k1):
            if k % 8 == 0 and k < 32: e(f's_lshl_b32 s40, {sN[k//8]}, 14\ns_add_u32 s40, s40, {sTB}')
            elif k == 32: e(f's_add_u32 s40, {sTB}, {4*BS}')
            elif k % 4 == 0: e('s_add_u32 s40, s40, 4096')
            e(f'buffer_load_dwordx4 {a(4*k,4)}, {vL16}, {sWS}, s40 offen offset:{(k%4)*1024} sc1')
    ldvot(0, 32)
    e.crit_off(sCR); e.crit_off(sCN, 1)
    sPm = ['s94', 's95', 's96', 's97']; sVm = ['s98', 's99', 's100', 's101']
    e(f's_add_u32 s41, s50, {sCR}\ns_and_b32 s42, s3, 0x4000\ns_add_u32 s42, s42, {sCR}')
    for g in range(4):
        e(f's_lshl_b32 s40, {sN[g]}, 15\ns_add_u32 s40, s40, s42\ns_add_u32 {sP[g]}, s40, {(B_P+2)*BS}')
        e(f's_lshl_b32 s40, {sN[g]}, 10\ns_add_u32 s40, s40, s42\ns_add_u32 {sPm[g]}, s40, {B_P*BS}')
        e(f's_lshl_b32 s40, {sN[g]}, 11\ns_add_u32 {sVm[g]}, s40, s41')
    e(f's_add_u32 {sFQ}, {sCR}, s3\ns_add_u32 {sFQ}, {sFQ}, {F_Q}\ns_mul_i32 {sXO}, {sS}, 40960')
    AC, AM, AT, BM, AO = 24, 40, 56, 120, 28
    def ffn():
        for i in range(4): e(f'v_lshlrev_b32 v{AO+2*i}, 16, v{36+i}\nv_and_b32 v{AO+2*i+1}, 0xffff0000, v{36+i}')
        for k in range(8):
            for tt in range(2): e(mf32(AO+4*tt, a(128+4*k, 4), 'v[20:23]' if tt else 'v[16:19]', AO+4*tt))
    def ffnx():
        ldvot(32, 40)
        e(f's_add_u32 s43, {sXO}, 20480\nbuffer_load_dwordx2 v[36:37], v8, {sA}, {sXO} offen\nbuffer_load_dwordx2 v[38:39], v8, {sA}, s43 offen\ns_waitcnt vmcnt(0)')
        ffn()
    l = e.lab('nl63'); e(f's_cmp_lg_u32 {sS}, 63\ns_cselect_b64 s[62:63], -1, 0\ns_cbranch_scc1 {l}'); ffnx(); e(f'{l}:')
    e('s_mov_b32 s34, 0\ns_mov_b32 s29, 0\ns_mov_b32 s30, 0')
    e.ts(5)
    e('s_barrier')
    e.poll('v12', sFQ, 252)
    e('s_barrier')
    e.ts(1)
    rt = e.lab('rt'); bad = e.lab('bad')
    e(f'{rt}:')
    nv = e.o.get('vfirst', 0)
    pat = e.o.get('rseq')
    if pat:
        cnt = {'v': 0, 't': 0, 'm': 0}; seq = []
        for ch in pat: seq.append((ch, cnt[ch])); cnt[ch] += 1
        assert cnt == {'v': 8, 't': 16, 'm': 4}
    else:
        seq = [('v', k) for k in range(nv)] + [('t', k) for k in range(16)]
        for g in range(4): seq += [('m', g)] + [('v', k) for k in (2*g, 2*g+1) if k >= nv]
    for kind, k in seq:
        if kind == 't': e(f'buffer_load_dwordx4 {v(AT+4*k,4)}, {vL16}, {sWS}, {sP[k//4]} offen offset:{(k%4)*1024} sc1')
        elif kind == 'm': e(f'buffer_load_dwordx4 {v(AM+4*k,4)}, {vL16}, {sWS}, {sPm[k]} offen sc1')
        else: e(f'buffer_load_dwordx4 {v(BM+4*k,4)}, {vL16}, {sWS}, {sVm[k//2]} offen offset:{(k%2)*1024} sc1')
    for r in range(AC, AC+4): e(f'v_mov_b32 v{r}, 0')
    e('v_mov_b32 v13, s30')
    rf = e.o['rflag']; assert 2 <= rf < 28
    chk = e.lab('chk'); bk = e.lab('bk')
    lastm = {g: max(seq.index(x) for x in (('m', g), ('v', 2*g), ('v', 2*g+1))) for g in range(4)}
    e('s_waitcnt vmcnt(27)'); e.ts(2)
    for i, (kind, k) in enumerate(seq):
        if kind == 't': e(smf(AC, AT+4*k, a(8*k, 8)))
        for g in range(4):
            if lastm[g] == i: e(smf(AC, AM+4*g, v(BM+8*g, 8)))
        if i == rf:
            e(f's_cbranch_vccnz L_R_nf\ns_barrier\ns_mov_b32 s30, -1\nL_R_nfb:')
        if i < 27: e(f's_waitcnt vmcnt({26-i})')
        if i <= rf-2: r = {'t': AT, 'v': BM, 'm': AM}[kind]+4*k; e(f'v_max3_u32 v13, v13, v{r}, v{r+3}')
        if i == rf-1: e('v_cmp_eq_u32 vcc, -1, v13')
    e.ts(3)
    e(f'v_add_f32 v{AC}, v{AC}, v{AC+1}\nv_add_f32 v{AC+1}, v{AC+2}, v{AC+3}')
    e(f'v_cvt_pk_bf16_f32 v{AC+2}, v{AC}, v{AC+1}\nv_cmp_u_f32 vcc, v{AC}, v{AC+1}')
    e(f'v_mov_b32_dpp v{AC+1}, v{AC+2} quad_perm:[1,0,3,2] row_mask:0xf bank_mask:0xf\ns_cmp_eq_u64 vcc, 0\nv_perm_b32 v{AC}, v{AC+1}, v{AC+2}, v7\n{bk}:\ns_cselect_b64 exec, s[62:63], 0')
    if e.o.get('ackts'): e.ts(2)
    pub(f'v{AC}'); e(f's_mov_b64 exec, -1\ns_cbranch_scc0 {chk}')
    if e.o.get('ackts') == 1: e('s_waitcnt vmcnt(0)')
    e.ts(4)
    okO = e.lab('okO'); slowO = e.lab('slowO')
    AO = 28
    ringr = list(range(152, 252, 4)) + list(range(40, 120, 4)); NR = e.o.get('nr', 32); ringr = ringr[:NR]
    def opass(explicit):
        def ldp(n):
            j, tt = n//2, n % 2
            if j < 32: so, va, im = sP[j//8], (vL16, 'v5', 'v9', 'v10')[2*tt + (j//4) % 2], (j % 4)*1024
            else: so, va, im = sPm[(j-32)//2], (vL16, 'v9')[tt], (j % 2)*1024
            e(f'buffer_load_dwordx4 {v(ringr[n % NR],4)}, {va}, {sWS}, {so} offen offset:{im} sc1')
        if not explicit:
            l = e.lab('nffn')
            e('s_barrier')
            for g in range(4):
                e(f's_lshl_b32 s40, {sN[g]}, 14\ns_add_u32 s40, s40, {sB0}\ns_add_u32 {sP[g]}, s40, {B_PT*BS}')
                e(f's_lshl_b32 s40, {sN[g]}, 11\ns_add_u32 s40, s40, {sB0}\ns_add_u32 {sPm[g]}, s40, {(B_PT+4)*BS}')
            e(f's_cmp_eq_u32 {sS}, 63\ns_cbranch_scc1 {l}'); ffnx(); e(f'{l}:')
            e(f's_add_u32 s43, {sFQ}, {F_P-F_Q}'); e.poll('v12', 's43', 252)
            e('s_barrier')
            e.ts(8)
        if explicit: ffn()
        for n in range(NR): ldp(n)
        if explicit: e('v_mov_b32 v13, 0')
        iss = NR
        for n in range(80):
            j, tt = n//2, n % 2; r = ringr[n % NR]
            if n == 0: e(f's_waitcnt vmcnt({iss-1})')
            e(mf32(AO+4*tt, a(4*j, 4) if j < 32 else v(BM+4*(j-32), 4), v(r, 4), AO+4*tt))
            if n < 79: e(f's_waitcnt vmcnt({iss-2-n})')
            if explicit: e(f'v_max3_u32 v13, v13, v{r}, v{r+1}\nv_max3_u32 v13, v13, v{r+2}, v{r+3}')
            if iss < 80: ldp(iss); iss += 1
            elif n == 80-NR and not explicit: e('s_barrier')
    opass(False)
    e(f'v_cmp_u_f32 vcc, v{AO}, v{AO+4}\ns_cbranch_vccnz {slowO}\n{okO}:')
    for i in range(4): e(f'v_cvt_pk_bf16_f32 v{42+i}, v{AO+2*i}, v{AO+2*i+1}')
    e(f's_add_u32 s43, {sXO}, 20480\nbuffer_store_dwordx2 v[42:43], v8, s[64:67], {sXO} offen {e.o.get("outfl", "")}\nbuffer_store_dwordx2 v[44:45], v8, s[64:67], s43 offen {e.o.get("outfl", "")}')
    e.ts(6)
    e.tsflush(9, 48)
    e(f's_add_u32 {sS}, {sS}, 2\ns_cmp_lt_u32 {sS}, {e.o["nseg"]}\ns_cbranch_scc1 L_R_loop\ns_branch L_end')
    e(f'L_R_nf:\ns_cmp_lg_u32 s30, 0\ns_cbranch_scc1 L_R_nfb\ns_branch {bad}')
    e(f'{chk}:')
    if e.o['stamps']:
        e('v_mov_b32 v13, 0')
        for r in range(BM, BM+32, 2): e(f'v_max3_u32 v13, v13, v{r}, v{r+1}')
        e('v_cmp_eq_u32 vcc, -1, v13\ns_cmp_lg_u64 vcc, 0\ns_cselect_b32 s40, 0x1000000, 0x10000\ns_add_u32 s29, s29, s40') if False else e('v_cmp_eq_u32 vcc, -1, v13\ns_mov_b32 s41, 0x10000\ns_cmp_lg_u64 vcc, 0\ns_cselect_b32 s40, 0x1000000, s41\ns_add_u32 s29, s29, s40')
    e(f's_cmp_lt_u32 s34, 2\ns_cbranch_scc1 {bad}\nv_mov_b32 v13, 0')
    for r in range(AM, BM+32, 2): e(f'v_max3_u32 v13, v13, v{r}, v{r+1}')
    e(f'v_cmp_eq_u32 vcc, -1, v13\ns_cmp_eq_u32 0, 0\ns_cbranch_vccz {bk}')
    e(f'{bad}:\ns_add_u32 s34, s34, 1\ns_nop 7'); e.tmo(rt)
    e(f'{slowO}:\ns_nop 7')
    if e.o['stamps']: e('s_add_u32 s34, s34, 0x10000')
    opass(True)
    e(f's_nop 7\nv_cmp_eq_u32 vcc, -1, v13\ns_cbranch_vccz {okO}'); e.tmo(slowO)

def weight_prefetch(e):
    l = e.lab('npf'); per, ph, c0, dep = e.o.get('pfper', 3), e.o.get('pfph', 1), e.o.get('pfc0', 4), e.o.get('pfdep', 4)
    e(f's_cmp_ge_u32 {sJ}, 24\ns_cbranch_scc1 {l}')
    for d, slot in ((8, 2), (12, 3), (44, 4), (48, 5)): e.srd(d, slot, 7864320)
    e(f's_sub_u32 s40, {sJ}, 16\ns_sub_u32 s41, {sW}, 1\ns_lshl_b32 s52, {sSIDE}, 1\ns_xor_b32 s53, {sXQ}, s52\ns_lshl_b32 s53, s53, 2\nv_lshlrev_b32 v2, 4, v1')
    e(f's_mul_i32 s42, s40, {4*12288}\ns_lshl_b32 s43, s41, 10\ns_add_u32 s42, s42, s43\ns_mul_i32 s43, {sXQ}, 3072\ns_add_u32 s42, s42, s43')
    for r in range(4): e(f's_add_u32 s43, s42, {r*12288}\nv_add_u32 v{4+r}, s43, v2')
    e(f's_lshl_b32 s42, {sXQ}, 3\ns_add_u32 s42, s42, s40\ns_mul_i32 s42, s42, 245760\ns_mul_i32 s43, s41, 6656\ns_add_u32 s42, s42, s43\nv_add_u32 v8, s42, v2\nv_add_u32 v9, 4096, v8\ns_waitcnt lgkmcnt(0)')
    L = [(c/40, 's[8:11]' if c % 2 == 0 else 's[12:15]', c//2) for c in range(c0, 40) if c % per == ph]
    L += [(c/40, 's[44:47]', c) for c in range(c0, 20) if c % per == (ph+1) % per]
    L += [((20 + r*20/12)/40, 's[48:51]', -1-r) for r in range(12) if r % per == ph]
    L.sort(); n = 0
    for _, srd, kp in L:
        if kp >= 0:
            e(f's_add_u32 s54, s53, {kp}\ns_cmp_ge_u32 s54, 20\ns_cselect_b32 s55, 20, 0\ns_sub_u32 s54, s54, s55\ns_mul_i32 s54, s54, {32*12288}')
            ld = [(f'v{4+r}', 0) for r in range(4)]
        else:
            r16 = -1-kp
            e(f's_mul_i32 s54, s52, {(3 if r16 < 6 else -3)*20480}\ns_add_u32 s54, s54, {r16*20480}')
            ld = [('v8' if q < 4 else 'v9', (q % 4)*1024) for q in range(7)]
        for va, im in ld:
            e(f'buffer_load_dwordx4 {v(32+4*(n % 16),4)}, {va}, {srd}, s54 offen offset:{im}\ns_waitcnt vmcnt({dep})'); n += 1
    e(f'{l}:')

def role_pf(e):
    e('L_PF:'); e.ptrs(0, 0)
    if e.o.get('pf', 1): weight_prefetch(e)
    l = e.lab('ncal'); lp = e.lab('cal')
    e(f's_cmp_lg_u32 {sJ}, 25\ns_cbranch_scc1 {l}')
    e(f's_and_b32 s40, {sW}, 1\ns_lshl_b32 s40, s40, 20\ns_lshr_b32 s41, {sW}, 1\ns_lshl_b32 s41, s41, 3\ns_and_b32 s42, s2, 7\ns_add_u32 s41, s41, s42\ns_lshl_b32 s41, s41, 7\ns_add_u32 s40, s40, s41\ns_add_u32 s40, s40, {B_CAL*BS}')
    e(f'v_lshrrev_b32 v2, 3, v1\nv_lshlrev_b32 v2, 11, v2\nv_and_b32 v3, 7, v1\nv_lshl_add_u32 v2, v3, 4, v2\nv_mov_b32 v12, 0\ns_add_u32 s41, s40, {BS}')
    e(f'buffer_store_dwordx4 v[0:3], v2, {sWS}, s40 offen sc1\nbuffer_store_dwordx4 v[0:3], v2, {sWS}, s41 offen sc1\ns_mov_b32 s42, 0')
    for c in range(4): e(f's_mov_b32 s{46+c}, -1')
    e(f's_waitcnt vmcnt(0)\n{lp}:')
    for c in range(4):
        e(f's_add_u32 s41, s40, {8192*c}\ns_memtime s[50:51]\ns_waitcnt lgkmcnt(0)\nbuffer_load_dword v4, v12, {sWS}, s41 offen sc1\ns_waitcnt vmcnt(0)\ns_memtime s[52:53]\ns_waitcnt lgkmcnt(0)')
        e(f's_sub_u32 s52, s52, s50\ns_min_u32 s{46+c}, s{46+c}, s52')
    e(f's_add_u32 s40, s40, 2048\ns_add_u32 s42, s42, 1\ns_cmp_lt_u32 s42, {e.o.get("ncal", 3)}\ns_cbranch_scc1 {lp}')
    for c in range(4): e(f'v_mov_b32 v{4+c}, s{46+c}')
    e(f's_lshl_b32 s40, {sW}, 4\nv_mov_b32 v2, s40\nds_write_b128 v2, v[4:7]\ns_waitcnt lgkmcnt(0)\ns_barrier\n{l}:')
    e.wait_start(vt=30, vF='v3')
    e(f's_lshl_b32 s40, {sJ}, 2\ns_add_u32 s40, s40, {sW}\ns_cmp_eq_u32 s40, {16*4+2}\ns_cselect_b32 s30, 0x10001, 0\ns_mov_b32 s31, s30\ns_lshl_b32 s33, {sXQ}, 8\ns_add_u32 s33, s33, {B_FL*BS}')
    e(f'v_and_b32 v9, 31, v1\nv_lshlrev_b32 v9, 7, v9\nv_and_b32 v11, 7, v1\nv_lshlrev_b32 v11, 7, v11\nv_mov_b32 v12, 0\ns_mov_b32 {sS}, {sSIDE}\ns_add_u32 s32, s3, {F_Q}')
    e(f's_mul_i32 {sU}, {sXQ}, 10\ns_add_u32 {sU}, {sU}, {sJ}\ns_sub_u32 {sU}, {sU}, 16\nv_lshlrev_b32 v2, 4, v1')
    for r in range(4, 8): e(f'v_mov_b32 v{r}, -1')
    vom_block(e, 's38')
    e(f's_and_b32 s40, {sW}, 1\ns_lshl_b32 s40, s40, 12\ns_add_u32 s38, s38, s40')
    e(f's_lshr_b32 s39, {sU}, 2\ns_add_u32 s39, s39, {B_PT}\ns_lshl_b32 s39, s39, 14\ns_and_b32 s40, {sU}, 3\ns_lshl_b32 s40, s40, 11\ns_add_u32 s39, s39, s40')
    e(f's_lshr_b32 s40, {sU}, 3\ns_lshl_b32 s40, s40, 15\ns_and_b32 s41, {sU}, 7\ns_lshl_b32 s42, s41, 8\ns_add_u32 s42, s42, s40\ns_lshl_b32 s43, s41, 9\ns_add_u32 s43, s43, s40\ns_add_u32 s43, s43, {B_P*BS - 512}')
    e('v_and_b32 v8, 255, v2\nv_add_u32 v8, s42, v8\nv_add_u32 v10, s43, v2\nv_cmp_gt_u32 vcc, 32, v1\nv_cndmask_b32 v8, v10, v8, vcc')
    e('L_PF_loop:')
    l = e.lab('nv')
    e.bulk_off('s36'); e(f's_add_u32 s36, s36, {B_VF*BS}\ns_add_u32 s34, s36, 4096\nv_mov_b32 v25, 0')
    l3 = e.lab('n3'); e(f's_cmp_lg_u32 {sW}, 3\ns_cbranch_scc1 {l3}\nbuffer_load_dword v25, v11, {sWS}, s34 offen sc1\ns_cmp_lg_u32 {sS}, 63\ns_cbranch_scc1 {l3}')
    e.poll('v11', 's34', 25, D=1, sleep=2); e(f'{l3}:')
    e(f's_cmp_lg_u32 {sW}, 1\ns_cbranch_scc1 {l}')
    e.poll('v9', 's36', 24, D=1, sleep=e.o.get('vsleep', 2))
    if e.o.get('sync0', 0):
        e(f's_lshl_b32 s40, {sS}, 8\ns_or_b32 s40, s40, {sJ}\ns_cmp_lg_u32 s40, 16\ns_cbranch_scc1 {l}')
        e.crit_off('s37'); e(f's_add_u32 s37, s37, s33\ns_mov_b32 exec_lo, 0x10001\ns_mov_b32 exec_hi, 0x10001\nbuffer_store_dword v12, v3, {sWS}, s37 offen sc1\ns_mov_b64 exec, -1')
    e(f'{l}:')
    e.crit_off('s35'); e.crit_off('s37', 1)
    e('s_add_u32 s35, s35, s32\ns_add_u32 s37, s37, s33\ns_barrier\ns_barrier')
    e.poll('v12', 's35', 20)
    e(f's_barrier\ns_add_u32 s35, s35, {F_P-F_Q}\ns_mov_b64 exec, s[30:31]\ns_barrier')
    e(f'buffer_store_dword v12, v3, {sWS}, s37 offen sc1\ns_mov_b64 exec, -1')
    l4 = e.lab('n4'); e(f'v_cmp_eq_u32 vcc, -1, v25\ns_cbranch_vccz {l4}'); e.poll('v11', 's34', 25, D=1, sleep=2); e(f'{l4}:\ns_barrier')
    l = e.lab('c1'); l2 = e.lab('c2'); l5 = e.lab('c3')
    e(f's_cmp_ge_u32 {sS}, 60\ns_cbranch_scc1 {l5}')
    e.crit_off('s36', 4)
    e(f's_cmp_eq_u32 {sW}, 1\ns_cbranch_scc1 {l}\ns_add_u32 s36, s36, s38')
    for o in range(4): e(f'buffer_store_dwordx4 v[4:7], v2, {sWS}, s36 offen offset:{o*1024} sc1')
    e(f's_branch {l2}\n{l}:\nbuffer_store_dwordx4 v[4:7], v8, {sWS}, s36 offen sc1\ns_add_u32 s36, s36, {BS}\nbuffer_store_dwordx4 v[4:7], v8, {sWS}, s36 offen sc1')
    e.bulk_off('s36', 4); e('s_add_u32 s36, s36, s39')
    for o in range(2): e(f'buffer_store_dwordx4 v[4:7], v2, {sWS}, s36 offen offset:{o*1024} sc1')
    e(f'{l2}:\ns_waitcnt vmcnt(0)\n{l5}:')
    e.poll('v12', 's35', 20)
    e(f's_barrier\ns_barrier\ns_add_u32 {sS}, {sS}, 2\ns_cmp_lt_u32 {sS}, {e.o["nseg"]}\ns_cbranch_scc1 L_PF_loop\ns_branch L_end')

HEAD = open('cdna_kernels/' + NAME[:-7] + '.s.ref').read().split('; Override launch')[0]
def gen(aslist=False, **o):
    e = G(**o)
    e.ts(0)
    if e.o.get('empty'): e('s_branch L_end')
    e(f'''s_cmp_ge_u32 s2, 256
    s_cbranch_scc1 L_end
    s_add_u32 s3, s2, {e.o.get('rot', 0)}
    s_and_b32 s3, s3, 7
    s_and_b32 s2, s2, 0xf8
    s_or_b32 {sS}, s2, s3
    s_getreg_b32 s3, hwreg(HW_REG_XCC_ID, 0, 3)
    s_or_b32 s2, s2, s3
    s_load_dwordx2 s[4:5], s[0:1], 96
    s_load_dwordx2 s[16:17], s[0:1], 88
    v_and_b32 v1, 63, v0
    v_lshrrev_b32 v2, 6, v0
    s_mov_b32 {sC0}, 0
    v_readfirstlane_b32 {sW}, v2
    s_lshr_b32 {sJ}, s2, 3
    s_mov_b32 {sTO}, 0
    s_mov_b32 s18, 256
    s_mov_b32 s19, 0x20000
    s_mov_b32 s6, {252<<20}
    s_mov_b32 s7, 0x20000
    L_dispatch:
    s_cmp_lt_u32 {sJ}, 28
    s_cselect_b32 s3, 64, 0
    s_cmp_lt_u32 {sJ}, 26
    s_cselect_b32 s3, 0, s3
    s_cmp_lt_u32 {sJ}, 16
    s_cselect_b32 s3, 32, s3
    s_cmp_lt_u32 {sJ}, 8
    s_cselect_b32 s3, 16, s3
    s_load_dwordx4 s[12:15], s[0:1], s3
    s_and_b32 {sXQ}, s2, 3
    s_bfe_u32 {sSIDE}, s2, 0x10002
    s_cmp_ge_u32 {sJ}, 8
    s_cbranch_scc1 L_other''')
    role_qk(e)
    e(f'L_other:\ns_cmp_ge_u32 {sJ}, 28\ns_cbranch_scc1 L_LN\ns_cmp_ge_u32 {sJ}, 26\ns_cbranch_scc1 L_FFN\ns_cmp_ge_u32 {sJ}, 16\ns_cbranch_scc1 L_R')
    role_vo(e); role_r(e); role_pf(e); e('L_hot_end:'); role_ln(e)
    e(f'L_restart:\ns_waitcnt vmcnt(0) lgkmcnt(0)\ns_barrier\ns_mov_b32 s2, {sS}\ns_mov_b32 {sC0}, 64\ns_branch L_dispatch')
    e(f'L_abort:\nv_mov_b32 v30, 8\nv_mov_b32 v31, 1\ns_mov_b64 exec, 1\nbuffer_atomic_add v31, v30, {sDBG}, 0 offen sc1\nL_end:\ns_endpgm')
    L = resolve(e.L)
    if e.o.get('xp'):
        out = []; zone = False; n = 0
        for ln in L:
            t = ln.strip()
            if t in ('L_QK_loop:', 'L_VF_loop:'): zone = True
            if t.startswith('poll_'): zone = False
            if zone and t.startswith('v_mfma'):
                n += 1
                if e.o['xp'] == 1 or (e.o['xp'] == 2 and n % 2): ln = '    s_nop 2'
            if zone and e.o['xp'] == 3 and t.startswith('ds_read_b128') and ', v2 ' in t: ln = '    ds_read_b32 ' + t.split()[1].split(':')[0].replace('[', '') + ', v2'
            out.append(ln)
        L = out
    body, nn = hazard.run(L)
    al = e.o.get('align', 6)
    if al:
        out = []; nxt = None; st = 2 if e.o['stamps'] and (e.o.get('tsmask', -1) >> 1) & 1 else 0
        for i, ln in enumerate(body):
            t = ln.strip()
            if t in ('L_QK_loop:', 'L_VF_C:', 'L_R_loop:'): nxt = e.o.get({'Q': 'qpad', 'V': 'vpad', 'R': 'rpad'}[t[2]], {'Q': 0, 'V': 2, 'R': 2}[t[2]])
            if t.startswith('pd_') or t in ('L_QK_loop:', 'L_VF_loop:', 'L_R_loop:', 'L_QK_w23:', 'L_PF_loop:') or t.startswith('poll_'):
                out.append(f'.p2align {al}')
                if t.startswith('pd_') and nxt is not None: out += ['    s_nop 0']*((nxt - st) % 8); nxt = None
                if t == 'L_QK_w23:': out += ['    s_nop 0']*e.o.get('wpad', 0)
            out.append(ln)
        body = out
        for key, pat in (('tm1', 'v_cvt_pk_bf16_f32 v90, '), ('tm2', 's_cmp_ge_u32 s23, 2')):
            n = e.o.get(key, 0)
            if n:
                i = [k for k, x in enumerate(body) if pat in x][0]
                assert all(body[i-1-k].strip() == 's_nop 0' for k in range(n+1)), body[i-4:i]
                body[i-n-1:i] = [f'    s_nop {n}']
    launch = f'; @launch kernel={NAME} grid=(256,1,1) block=(256,1,1) lds=163840' if aslist else '; @launch grid=(256,1,1) block=(256,1,1) lds=163840'
    return HEAD + launch + '\n.amdgcn_target "amdgcn-amd-amdhsa--gfx950"\n.text\n' + kernel_head(NAME) + '\n'.join(body) + '\n' + kernel_desc(NAME, 512, 102, 256)

if __name__ == '__main__':
    o = dict(kv.split('=') for kv in sys.argv[2:]); o = {k: (int(x) if x.lstrip('-').isdigit() else x) for k, x in o.items()}
    open(sys.argv[1], 'w').write(gen(**o))
```
